```python
import torch

def _softmax(x, axis=-1):
    return torch.softmax(x, dim=axis)
def _gelu(x):
    return torch.nn.functional.gelu(x, approximate="tanh")
def _silu(x):
    return torch.nn.functional.silu(x)
def _sigmoid(x):
    return torch.sigmoid(x)
def _layernorm(x, axis=-1, eps=1e-5):
    m = x.mean(dim=axis, keepdim=True)
    v = x.var(dim=axis, keepdim=True, unbiased=False)
    return (x - m) / torch.sqrt(v + eps)
def _scatter_add(tgt, idx, src, axis=0):
    return tgt.clone().index_add_(axis, idx, src)
def _segment_sum(src, seg, n):
    out = torch.zeros((n,) + src.shape[1:], dtype=src.dtype)
    return out.index_add_(0, seg, src)
def _pad(x, pw):
    flat = tuple(v for pair in reversed(pw) for v in pair)
    return torch.nn.functional.pad(x, flat)

kernel_name = 'parallel_sum__compressed_kv_cla__dense_activation_relu__prompt'

def setup_inputs():

    _w = (lambda a: (lambda t: t.to(torch.bfloat16) if t.is_floating_point() else t)(torch.as_tensor(a)))
    def _A_setup():
        B, H, Sq, Sk, D, M = 1, 32, 2048, 2048, 128, 640
        Dc = 4 * D
        return {
            "x": _w((lambda *s: torch.randn(*s, dtype=torch.bfloat16) * 0.05)(B, Sq, M)),
            "c_kv": _w((lambda *s: torch.randn(*s, dtype=torch.bfloat16) * 1.6)(B, Sk, Dc)),
            "w_q": _w((lambda *s: torch.randn(*s, dtype=torch.bfloat16) * 0.8)(M, H, D) * (M ** -0.5)),
            "w_uk": _w((lambda *s: torch.randn(*s, dtype=torch.bfloat16) * 0.8)(Dc, H, D) * (Dc ** -0.5)),
            "w_uv": _w((lambda *s: torch.randn(*s, dtype=torch.bfloat16) * 1.6)(Dc, H, D) * (Dc ** -0.5)),
            "w_o": _w((lambda *s: torch.randn(*s, dtype=torch.bfloat16) * 1.6)(H, D, M) * ((H * D) ** -0.5)),
        }
    _A_in = _A_setup()

    def _B_setup():
        B, S, D, Dff = 1, 2048, 640, 1728
        return {
            "x": _w((lambda *s: torch.randn(*s, dtype=torch.bfloat16) * 0.05)(B, S, D)),
            "w1": _w((lambda *s: torch.randn(*s, dtype=torch.bfloat16) * 0.05)(D, Dff)),
            "w2": _w((lambda *s: torch.randn(*s, dtype=torch.bfloat16) * 0.05)(Dff, D)),
        }
    _B_in = _B_setup()

    return {
        "A_x": _A_in["x"],
        "A_c_kv": _A_in["c_kv"],
        "A_w_q": _A_in["w_q"],
        "A_w_uk": _A_in["w_uk"],
        "A_w_uv": _A_in["w_uv"],
        "A_w_o": _A_in["w_o"],
        "B_x": _B_in["x"],
        "B_w1": _B_in["w1"],
        "B_w2": _B_in["w2"],
    }

def reference(A_x, A_c_kv, A_w_q, A_w_uk, A_w_uv, A_w_o, B_x, B_w1, B_w2):
    def _A_ref(x, c_kv, w_q, w_uk, w_uv, w_o):
        B, Sq, M = x.shape[0], x.shape[1], x.shape[2]
        Sk = c_kv.shape[1]
        H, D = w_q.shape[1], w_q.shape[2]
        q = torch.einsum("bqm,mhd->bhqd", x, w_q)
        k = torch.einsum("bkc,chd->bhkd", c_kv, w_uk)
        v = torch.einsum("bkc,chd->bhkd", c_kv, w_uv)
        scores = torch.einsum("bhqd,bhkd->bhqk", q, k) * (D ** -0.5)
        off = Sk - Sq
        qi = torch.arange(Sq)[:, None]
        kj = torch.arange(Sk)[None, :]
        cmask = kj <= (qi + off)
        scores = torch.where(cmask[None, None], scores, -1e9)
        p = _softmax(scores, axis=-1)
        ctx = torch.einsum("bhqk,bhkd->bhqd", p, v)
        return torch.einsum("bhqd,hdm->bqm", ctx, w_o)

    def _B_ref(x, w1, w2):
        h = torch.einsum("bsd,df->bsf", x, w1)
        zero = torch.zeros_like(h)
        h = torch.maximum(h, zero)
        return torch.einsum("bsf,fd->bsd", h, w2)

    x = A_x
    xn = _layernorm(x, axis=-1)
    return x + _A_ref(xn, A_c_kv, A_w_q, A_w_uk, A_w_uv, A_w_o) + _B_ref(xn, B_w1, B_w2)
```

```python
from kb import *
import build as B
from build import *

sM, sRem, sLast, sKp, sVp, sLd, sSafe, sDr, sCtx, sFl = 67, 68, 69, 70, 71, 72, 73, 74, 75, 76
sK0, sV0 = 77, 78
PF = [48, 56]; RING = 64; SB = [96, 112]; CB = 128; LACC = 144; ONES = 152; TE = 156; OA = 160
vRd, vD, vNinf = 13, 14, 224
OPK = 224
VOTE = 163824
AH = 6

def ld_setup(k):
    k.e('s_mul_i32 s%d, s%d, 0x%x' % (sK0, sH, 2 * KVS)); k.e('s_add_u32 s%d, s%d, 0x%x' % (sK0, sK0, WS_KV))
    k.e('s_and_b32 s%d, s%d, 3' % (sT, sW)); k.e('s_lshl_b32 s%d, s%d, 12' % (sT, sT))
    k.e('s_add_u32 s%d, s%d, s%d' % (sK0, sK0, sT))
    k.e('s_add_u32 s%d, s%d, 0x%x' % (sVp, sK0, KVS - 8192))
    k.e('s_add_u32 s%d, s%d, 8192' % (sKp, sK0))
    k.e('s_mov_b32 s%d, s%d' % (sLd, sT))
    k.e('s_cmp_lt_u32 s%d, 8192' % sT); k.e('s_cselect_b32 s%d, s%d, s%d' % (sV0, sK0, sVp))

def ld_group(k, which, first=False):
    it = []
    for j in range(4):
        def f(j=j):
            if j == 0:
                k.e('s_add_u32 m0, s%d, %d' % (sLd, which * 16384)); k.e('s_nop 0')
            so = sKp if which == 0 else (sV0 if first else sVp)
            k.e('buffer_load_dwordx4 v%d, %s, s%d offen offset:%d sc1 lds' % (vL16, S(SWS), so, j * 1024))
            if which == 1 and j == 3:
                k.e('s_add_u32 s%d, s%d, 16384' % (sKp, sKp)); k.e('s_add_u32 s%d, s%d, 16384' % (sVp, sVp))
                k.e('s_add_u32 s%d, s%d, 32768' % (sLd, sLd)); k.e('s_and_b32 s%d, s%d, 0x1ffff' % (sLd, sLd))
        it.append(f)
    return it

def ld_stage(k, first=False):
    for f in ld_group(k, 0) + ld_group(k, 1, first): f()

def xmax(k, v, t):
    k.e('v_mov_b32 v%d, v%d' % (t, v)); k.e('s_nop 1')
    k.e('v_permlane16_swap_b32 v%d, v%d' % (v, t)); k.e('v_max_f32 v%d, v%d, v%d' % (v, v, t))
    k.e('v_mov_b32 v%d, v%d' % (t, v)); k.e('s_nop 1')
    k.e('v_permlane32_swap_b32 v%d, v%d' % (v, t)); k.e('v_max_f32 v%d, v%d, v%d' % (v, v, t))

def rowmax(k, Sb, qb, d, t):
    r = [Sb + 8 * kb + 4 * qb + i for kb in range(2) for i in range(4)]
    k.e('v_max3_f32 v%d, v%d, v%d, v%d' % (d, r[0], r[1], r[2]))
    k.e('v_max3_f32 v%d, v%d, v%d, v%d' % (d, d, r[3], r[4]))
    k.e('v_max3_f32 v%d, v%d, v%d, v%d' % (d, d, r[5], r[6]))
    k.e('v_max_f32 v%d, v%d, v%d' % (d, d, r[7]))
    xmax(k, d, t)

def build_mask(k):
    for r in range(4):
        k.e('v_cmp_le_i32 vcc, %d, v%d' % (r, vD)); k.e('v_mov_b32 v%d, v%d' % (CB + 8 + r, vNinf)); k.e('s_nop 0')
        k.e('v_cndmask_b32 v%d, v%d, v%d, vcc' % (CB + r, vNinf, CB + r))
        k.e('v_cndmask_b32 v%d, v%d, v%d, vcc' % (CB + 12 + r, vNinf, CB + 12 + r))
    k.e('s_nop 1')

def safe_update(k, par):
    Sn = SB[par ^ 1]; P = PF[par]
    k.e('s_nop 7')
    for qb in range(2):
        d, t, f = TE, TE + 1, TE + 2
        rowmax(k, Sn, qb, d, t)
        k.e('v_max_f32 v%d, 0, v%d' % (d, d))
        k.e('v_exp_f32 v%d, -v%d' % (f, d))
        for kb in range(2):
            for i in range(4):
                k.e('v_sub_f32 v%d, v%d, v%d' % (Sn + 8 * kb + 4 * qb + i, Sn + 8 * kb + 4 * qb + i, d))
                k.e('v_sub_f32 v%d, v%d, v%d' % (CB + 8 * kb + 4 * qb + i, CB + 8 * kb + 4 * qb + i, d))
        for db in range(8):
            for i in range(4): k.e('v_mul_f32 v%d, v%d, v%d' % (OA + db * 8 + qb * 4 + i, OA + db * 8 + qb * 4 + i, f))
        for i in range(4):
            k.e('v_mul_f32 v%d, v%d, v%d' % (LACC + qb * 4 + i, LACC + qb * 4 + i, f))
            p = P + qb * 4 + i
            k.e('v_lshlrev_b32 v%d, 16, v%d' % (d + 3, p)); k.e('v_and_b32 v%d, 0xffff0000, v%d' % (t, p))
            k.e('v_mul_f32 v%d, v%d, v%d' % (d + 3, d + 3, f)); k.e('v_mul_f32 v%d, v%d, v%d' % (t, t, f))
            k.e('v_cvt_pk_bf16_f32 v%d, v%d, v%d' % (p, d + 3, t))
    k.e('s_nop 1')

BODY_OFF = [0 + 1024 * i for i in range(8)] + [16384 + 1024 * i for i in range(8)] + [8192 + 1024 * i for i in range(8)] + [24576 + 1024 * i for i in range(8)]
def rd(k, n, off):
    k.e('ds_read_b128 %s, v%d offset:%d' % (R(RING + 4 * (n % 8)), vRd, off))
def next_stage_addr(k):
    k.e('v_add_u32 v%d, 0x8000, v%d' % (vRd, vRd)); k.e('v_and_b32 v%d, 0x1ffff, v%d' % (vRd, vRd))
def sm_order(Sc):
    return [Sc + 8 * kb + 4 * qb + r for qb in range(2) for kb in range(2) for r in range(4)]
def lm(P, qb):
    return mfma(LACC + 4 * qb, ONES, P + 4 * qb, LACC + 4 * qb)

def bar(k, loader):
    if loader: k.e('s_waitcnt vmcnt(8)')
    k.e('s_barrier')

def step(k, par, loader):
    Sc, Sn, Pc, Pp = SB[par], SB[par ^ 1], PF[par], PF[par ^ 1]
    order = sm_order(Sc)
    dm = ld_group(k, 0) + ld_group(k, 1)
    dslot = {10: dm[0:1], 11: dm[1:3], 12: dm[3:4], 13: dm[4:6], 14: dm[6:7], 15: dm[7:8]}
    for g in range(16):
        n = 16 * par + g; fr = RING + 4 * (n % 8)
        if g % 2 == 0: k.e('s_waitcnt lgkmcnt(%d)' % (AH - 2))
        ms = []
        for qb in range(2):
            if g < 8:
                kb, ks = g // 4, g % 4; D = Sn + 8 * kb + 4 * qb
                ms.append(mfma(D, fr, QF + (qb * 4 + ks) * 4, (CB + 8 * kb + 4 * qb) if ks == 0 else D))
            else:
                D = OA + (g - 8) * 8 + 4 * qb
                ms.append(mfma(D, fr, Pp + 4 * qb, D))
        k.e(ms[0])
        k.e('v_exp_f32 v%d, v%d' % (TE + g % 4, order[g]))
        k.e(ms[1])
        if par == 1 and g == 16 - AH:
            next_stage_addr(k)
            bar(k, loader)
        rd(k, n + AH, BODY_OFF[(n + AH) % 32])
        if g % 2 == 0 and g >= 2:
            k.e('v_cvt_pk_bf16_f32 v%d, v%d, v%d' % (Pc + (g - 2) // 2, TE + (g - 2) % 4, TE + (g - 1) % 4))
        if g == 15: k.e('v_cvt_pk_bf16_f32 v%d, v%d, v%d' % (Pc + 7, TE + 2, TE + 3))
        if g == 9: k.e(lm(Pp, 0))
        if g == 13: k.e(lm(Pp, 1))
        if loader and par == 1:
            for f in dslot.get(g, []): f()

def tail(k, par, loader):
    Sc, Pc, Pp = SB[par], PF[par], PF[par ^ 1]
    order = sm_order(Sc)
    k.e('s_waitcnt lgkmcnt(0)')
    o1 = 16384 if par == 0 else 24576
    for i in range(8): rd(k, i, o1 + 1024 * i)
    for g in range(16):
        k.e('v_exp_f32 v%d, v%d' % (TE + g % 4, order[g]))
        if g % 2 == 0 and g >= 2:
            k.e('v_cvt_pk_bf16_f32 v%d, v%d, v%d' % (Pc + (g - 2) // 2, TE + (g - 2) % 4, TE + (g - 1) % 4))
    k.e(lm(Pp, 0))
    k.e('v_cvt_pk_bf16_f32 v%d, v%d, v%d' % (Pc + 7, TE + 2, TE + 3))
    k.e(lm(Pp, 1))
    if par == 1:
        k.e('s_waitcnt lgkmcnt(0)')
        next_stage_addr(k)
        bar(k, loader)
    o2 = 24576 if par == 0 else 16384
    dm = ld_group(k, 0) + ld_group(k, 1)
    for i in range(8):
        if par == 0: k.e('s_waitcnt lgkmcnt(7)')
        for qb in range(2):
            D = OA + i * 8 + 4 * qb; k.e(mfma(D, RING + 4 * i, Pp + 4 * qb, D))
        rd(k, i, o2 + 1024 * i)
        if loader and par == 1: dm[i]()
    k.e(lm(Pc, 0)); k.e(lm(Pc, 1))
    for i in range(8):
        k.e('s_waitcnt lgkmcnt(%d)' % (7 - i))
        for qb in range(2):
            D = OA + i * 8 + 4 * qb; k.e(mfma(D, RING + 4 * i, Pc + 4 * qb, D))

def vote(k):
    lab = k.newlab('vote')
    k.e('s_nop 7')
    k.e('v_add_f32 v%d, v%d, v%d' % (TE, LACC, LACC + 4))
    k.e('v_cmp_nge_f32 vcc, 0x4e800000, v%d' % TE)
    k.e('s_nop 4')
    k.e('s_cbranch_vccz %s' % lab)
    k.e('v_mov_b32 v%d, %d' % (TE, VOTE)); k.e('v_mov_b32 v%d, 1' % (TE + 1))
    k.e('ds_write_b32 v%d, v%d' % (TE, TE + 1)); k.e('s_waitcnt lgkmcnt(0)')
    k.label(lab)

def ctx_epilogue(k):
    k.e('v_rcp_f32 v%d, v%d' % (TE, LACC)); k.e('v_rcp_f32 v%d, v%d' % (TE + 2, LACC + 4)); k.e('s_nop 0')
    for b in range(4):
        for qb in range(2):
            for hh in range(2):
                a = OA + (2 * b + hh) * 8 + 4 * qb
                for e in range(2):
                    k.e('v_pk_mul_f32 %s, %s, %s op_sel_hi:[1,0]' % (R(a + 2 * e, 2), R(a + 2 * e, 2), R(TE + 2 * qb, 2)))
            for hh in range(2):
                a = OA + (2 * b + hh) * 8 + 4 * qb; d = OPK + (b * 2 + qb) * 4 + 2 * hh
                k.e('v_cvt_pk_bf16_f32 v%d, v%d, v%d' % (d, a, a + 1)); k.e('v_cvt_pk_bf16_f32 v%d, v%d, v%d' % (d + 1, a + 2, a + 3))
            i = b * 2 + qb
            k.e('buffer_store_dwordx4 %s, v%d, %s, s%d offen offset:%d sc1' % (R(OPK + i * 4), vL16, S(SWS), sCtx if i < 4 else sT2, (i & 3) * 1024))
            if i == 0: k.e('s_add_u32 s%d, s%d, 4096' % (sT2, sCtx))

def phase_attn(k, opt, p3_pre, p3_h3_issue, p3_h3_check):
    k.e('s_mov_b32 s%d, 0' % sSafe)
    k.e('s_mov_b32 s%d, s%d' % (sLast, sRB))
    k.e('s_mul_i32 s%d, s%d, 0x%x' % (sCtx, sRB, CTX_BS)); k.e('s_lshl_b32 s%d, s%d, 13' % (sT, sH)); k.e('s_add_u32 s%d, s%d, s%d' % (sCtx, sCtx, sT))
    k.e('s_add_u32 s%d, s%d, 0x%x' % (sCtx, sCtx, WS_CTX))
    k.e('v_lshrrev_b32 v%d, 4, v0' % vD); k.e('v_lshlrev_b32 v%d, 2, v%d' % (vD, vD)); k.e('v_and_b32 v%d, 15, v0' % vT0); k.e('v_sub_u32 v%d, v%d, v%d' % (vD, vT0, vD))
    k.e('v_mov_b32 v%d, %d' % (vT0, VOTE)); k.e('ds_write_b32 v%d, v%d' % (vT0, vZ))
    p3_setup(k)
    k.label('L_att_start')
    k.e('v_mov_b32 v%d, 0xff800000' % vNinf)
    k.e('v_mov_b32 v%d, v%d' % (vRd, vL16))
    for i in range(16): k.e('v_mov_b32 v%d, 0' % (CB + i))
    for i in range(8): k.e('v_mov_b32 v%d, 0' % (LACC + i))
    for i in range(4): k.e('v_mov_b32 v%d, 0x3f803f80' % (ONES + i))
    for i in range(32): k.e('v_mov_b64 %s, 0' % R(OA + 2 * i, 2))
    k.e('s_lshl_b32 s%d, s%d, 1' % (sT, sP)); k.e('s_sub_u32 s%d, 32, s%d' % (sDr, sT))
    k.e('s_add_u32 s%d, s%d, 1' % (sT, sLast)); k.e('s_lshr_b32 s%d, s%d, 1' % (sT, sT)); k.e('s_sub_u32 s%d, s%d, s%d' % (sDr, sDr, sT))
    lab = k.newlab('m0')
    k.e('s_cmp_lg_u32 s%d, 0' % sLast); k.e('s_cbranch_scc1 %s' % lab)
    build_mask(k)
    k.label(lab)
    k.e('s_waitcnt vmcnt(16) lgkmcnt(0)')
    k.e('s_barrier')
    stamp(k, opt, 4)
    for i in range(8): rd(k, i, 16384 + 1024 * i)
    for i in range(8): k.e('v_mov_b32 v%d, 0' % (PF[1] + i))
    for g in range(8):
        k.e('s_waitcnt lgkmcnt(%d)' % (7 if g < 7 else 6))
        kb, ks = g // 4, g % 4
        for qb in range(2):
            D = SB[0] + 8 * kb + 4 * qb
            k.e(mfma(D, RING + 4 * g, QF + (qb * 4 + ks) * 4, (CB + 8 * kb + 4 * qb) if ks == 0 else D))
        if g < AH: rd(k, g, BODY_OFF[g])
    k.e('s_nop 7')
    for qb in range(2):
        rowmax(k, SB[0], qb, TE + qb, TE + 2)
        for kb in range(2):
            for i in range(4):
                k.e('v_sub_f32 v%d, v%d, v%d' % (SB[0] + 8 * kb + 4 * qb + i, SB[0] + 8 * kb + 4 * qb + i, TE + qb))
                k.e('v_sub_f32 v%d, 0, v%d' % (CB + 8 * kb + 4 * qb + i, TE + qb))
    lab = k.newlab('h3')
    k.e('s_cmp_ge_u32 s%d, 27' % sH); k.e('s_cbranch_scc1 %s' % lab)
    k.e('s_cmp_lg_u32 s%d, 0' % sSafe); k.e('s_cbranch_scc1 %s' % lab)
    k.e('s_lshl_b32 s%d, s%d, 7' % (sT, sRB)); k.e('s_add_u32 s%d, s%d, %d' % (sT, sT, WS_FLAGS + F_H3 * 128))
    k.e('s_waitcnt vmcnt(0)')
    signal(k, SWS, 's%d' % sT, vT0)
    k.label(lab)
    k.e('s_sub_u32 s%d, s%d, 1' % (sRem, sLast)); k.e('s_mov_b32 s%d, 0' % sM)
    lab = k.newlab('ns')
    k.e('s_cmp_lg_u32 s%d, 0' % sSafe); k.e('s_cbranch_scc1 %s' % lab)
    k.e('s_cmp_lt_u32 s%d, 2' % sLast); k.e('s_cbranch_scc1 %s' % lab)
    k.e('s_mov_b32 s%d, 1' % sRem); k.e('s_sub_u32 s%d, s%d, 2' % (sM, sLast))
    k.label(lab)
    lab = k.newlab('m1')
    k.e('s_cmp_lg_u32 s%d, 1' % sLast); k.e('s_cbranch_scc1 %s' % lab)
    build_mask(k)
    k.label(lab)
    k.e('s_cmp_ge_u32 s%d, 4' % sW); k.e('s_cbranch_scc1 L_S_entry')
    for v, loader in (('L', False), ('S', True)):
        if loader:
            k.label('L_S_entry')
            k.e('s_cmp_eq_u32 s%d, 0' % sLast); k.e('s_cbranch_scc1 L_S_tail0')
        k.e('.p2align 3')
        k.label('L_%s_loop' % v)
        for par in range(2):
            step(k, par, loader)
            k.e('s_sub_u32 s%d, s%d, 1' % (sM, sM))
            if par == 0:
                k.e('s_cbranch_scc1 L_%s_h0' % v); k.label('L_%s_c0' % v)
            else:
                k.e('s_cbranch_scc0 L_%s_loop' % v)
        for par in (1, 0):
            k.label('L_%s_h%d' % (v, par))
            lab = k.newlab('nsafe')
            k.e('s_cmp_eq_u32 s%d, 0' % sSafe); k.e('s_cbranch_scc1 %s' % lab)
            safe_update(k, par)
            k.label(lab)
            k.e('s_cmp_eq_u32 s%d, 0' % sRem); k.e('s_cbranch_scc1 L_%s_tail%d' % (v, par ^ 1))
            lab = k.newlab('nmask')
            k.e('s_cmp_lg_u32 s%d, 1' % sRem); k.e('s_cbranch_scc1 %s' % lab)
            build_mask(k)
            k.label(lab)
            k.e('s_sub_u32 s%d, s%d, 1' % (sRem, sRem)); k.e('s_mov_b32 s%d, 0' % sM)
            k.e('s_branch %s' % ('L_%s_c0' % v if par == 0 else 'L_%s_loop' % v))
        for par in range(2):
            k.label('L_%s_tail%d' % (v, par))
            if not loader: p3_h3_issue()
            tail(k, par, loader)
            if par == 0: k.e('s_branch L_%s_done' % v)
        k.label('L_%s_done' % v)
        vote(k)
        if not loader:
            lp = k.newlab('dr')
            k.e('s_cmp_eq_u32 s%d, 0' % sDr); k.e('s_cbranch_scc1 L_att_end')
            k.label(lp)
            k.e('s_barrier'); k.e('s_sub_u32 s%d, s%d, 1' % (sDr, sDr)); k.e('s_cmp_lg_u32 s%d, 0' % sDr); k.e('s_cbranch_scc1 %s' % lp)
            k.e('s_branch L_att_end')
        else:
            def it(n):
                lab = k.newlab('nd')
                k.e('s_waitcnt vmcnt(%d)' % n); k.e('s_barrier')
                k.e('s_cmp_le_u32 s%d, 2' % sDr); k.e('s_cbranch_scc1 %s' % lab)
                ld_stage(k)
                k.label(lab)
                k.e('s_sub_u32 s%d, s%d, 1' % (sDr, sDr))
            it(8)
            ctx_epilogue(k)
            for _ in range(2):
                k.e('s_cmp_eq_u32 s%d, 1' % sDr); k.e('s_cbranch_scc1 L_S_final')
                it(16)
            k.label('L_S_drain')
            k.e('s_cmp_eq_u32 s%d, 1' % sDr); k.e('s_cbranch_scc1 L_S_final')
            it(8)
            k.e('s_branch L_S_drain')
            k.label('L_S_final')
            k.e('s_waitcnt vmcnt(0)'); k.e('s_barrier')
            p3_h3_issue()
    k.label('L_att_end')
    p3_h3_check()
    k.e('v_mov_b32 v%d, %d' % (vT0, VOTE))
    k.e('s_barrier')
    k.e('ds_read_b32 v%d, v%d' % (vT0, vT0))
    stamp(k, opt, 5)
    p3_pre()
    k.e('s_waitcnt lgkmcnt(0)')
    k.e('v_readfirstlane_b32 s%d, v%d' % (sT, vT0))
    k.e('s_cmp_gt_u32 s%d, s%d' % (sT, sSafe)); k.e('s_cbranch_scc0 L_att_ok')
    k.e('s_mov_b32 s%d, 1' % sSafe)
    k.e('s_waitcnt vmcnt(0)'); k.e('s_barrier')
    k.e('s_cmp_lt_u32 s%d, 4' % sW); k.e('s_cbranch_scc1 L_att_start')
    ld_setup(k); ld_stage(k, True); ld_stage(k); ld_stage(k)
    k.e('s_branch L_att_start')
    k.label('L_att_ok')

sRBP, sKH, sAh, sAc, sW2o, sWOo, sW1024, sH4, sKeep = 79, 80, 81, 82, 83, 84, 85, 86, 87
vPD = [2, 3, 9]; vPR = 10; vA = [11, 12]; vXo = 6; vPl = 7
AR = 48
PW = 16
PACC = 160
NSL = 7; WD = 5; AD = 4; NST = 23

def p3_setup(k):
    k.e('s_and_b32 s%d, s2, 1' % sKH)
    k.e('s_bfe_u32 s%d, s2, 0x20001' % sT); k.e('s_lshl_b32 s%d, s%d, 2' % (sT, sT)); k.e('s_bfe_u32 s%d, s2, 0x20003' % sT2); k.e('s_add_u32 s%d, s%d, s%d' % (sT, sT, sT2))
    k.e('s_lshl_b32 s%d, s%d, 2' % (sRBP, sT)); k.e('s_and_b32 s%d, s%d, 3' % (sT, sW)); k.e('s_add_u32 s%d, s%d, s%d' % (sRBP, sRBP, sT))
    k.e('s_lshr_b32 s%d, s%d, 1' % (sT, sT)); k.e('s_cmp_eq_u32 s%d, s%d' % (sT, sKH)); k.e('s_cselect_b32 s%d, 1, 0' % sKeep)
    k.e('s_lshr_b32 s%d, s%d, 2' % (sT, sW))
    k.e('s_lshl_b32 s%d, s%d, 12' % (sT2, sT))
    k.e('s_mul_i32 s%d, s%d, 0x%x' % (sAh, sRBP, H_BS)); k.e('s_add_u32 s%d, s%d, s%d' % (sAh, sAh, sT2)); k.e('s_add_u32 s%d, s%d, 0x%x' % (sAh, sAh, WS_H))
    k.e('s_mul_i32 s%d, s%d, 0x%x' % (sAc, sRBP, CTX_BS)); k.e('s_add_u32 s%d, s%d, s%d' % (sAc, sAc, sT2)); k.e('s_add_u32 s%d, s%d, 0x%x' % (sAc, sAc, WS_CTX))
    k.e('s_mul_i32 s%d, s%d, %d' % (sT2, sKH, 26 * 2048)); k.e('s_add_u32 s%d, s%d, s%d' % (sAh, sAh, sT2))
    k.e('s_lshl_b32 s%d, s%d, 17' % (sT2, sKH)); k.e('s_add_u32 s%d, s%d, s%d' % (sAc, sAc, sT2))
    k.e('s_mul_i32 s%d, s%d, %d' % (sW2o, sKH, 26 * 32 * 1280)); k.e('s_mul_i32 s%d, s%d, %d' % (sWOo, sKH, 2048 * 1280))
    k.e('s_lshl_b32 s%d, s%d, 10' % (sW1024, sW))
    k.e('s_lshl_b32 s%d, s%d, 1' % (sH4, sRBP)); k.e('s_add_u32 s%d, s%d, s%d' % (sH4, sH4, sKH)); k.e('s_lshl_b32 s%d, s%d, 7' % (sH4, sH4))
    k.e('s_add_u32 s%d, s%d, %d' % (sH4, sH4, WS_FLAGS + F_H4 * 128))
    k.e('s_lshl_b32 s%d, s%d, 10' % (sT2, sT))
    k.e('v_add_u32 v%d, s%d, v%d' % (vA[0], sT2, vL16)); k.e('v_xor_b32 v%d, 0x400, v%d' % (vA[1], vA[0]))
    k.e('v_lshrrev_b32 v%d, 2, v0' % vPR); k.e('v_mul_u32_u24 v%d, 160, v%d' % (vPR, vPR))
    k.e('v_and_b32 v%d, 3, v0' % vT0); k.e('v_lshl_add_u32 v%d, v%d, 3, v%d' % (vPR, vT0, vPR))
    k.e('s_mul_i32 s%d, s%d, 10240' % (sT2, sT)); k.e('v_add_u32 v%d, s%d, v%d' % (vPR, sT2, vPR))
    k.e('s_lshl_b32 s%d, s%d, 1' % (sT2, sRBP)); k.e('s_add_u32 s%d, s%d, s%d' % (sT2, sT2, sT)); k.e('s_lshl_b32 s%d, s%d, 4' % (sT2, sT2))
    k.e('v_and_b32 v%d, 15, v0' % vT0); k.e('v_add_u32 v%d, s%d, v%d' % (vT0, sT2, vT0)); k.e('v_mul_u32_u24 v%d, 1280, v%d' % (vXo, vT0))
    k.e('v_lshrrev_b32 v%d, 4, v0' % vT0); k.e('v_lshl_add_u32 v%d, v%d, 3, v%d' % (vXo, vT0, vXo))
    k.e('s_lshr_b32 s%d, s2, 5' % sT); k.e('s_mul_i32 s%d, s%d, 160' % (sT, sT)); k.e('v_add_u32 v%d, s%d, v%d' % (vXo, sT, vXo))
    k.e('s_lshl_b32 s%d, s%d, 6' % (sT2, sW))
    for j in range(3):
        k.e('v_add_u32 v%d, s%d, v0' % (vT0, sT2))
        if j: k.e('v_add_u32 v%d, %d, v%d' % (vT0, 512 * j, vT0))
        k.e('v_mul_u32_u24 v%d, 6554, v%d' % (vPl, vT0)); k.e('v_lshrrev_b32 v%d, 16, v%d' % (vPl, vPl))
        k.e('v_mul_u32_u24 v%d, 1120, v%d' % (vPl, vPl))
        k.e('v_lshl_add_u32 v%d, v%d, 4, v%d' % (vPD[j], vT0, vPl))
        k.e('v_add_u32 v%d, s%d, v%d' % (vPD[j], sT, vPD[j]))

def p3_w_items(k, st, tok):
    srd, base, rel = (SW2, sW2o, st) if st < 7 else (SWO, sWOo, st - 7)
    slot = (st % NSL) * 20480
    def f0():
        k.e('s_add_u32 s%d, s%d, 0x%x' % (sA, base, rel * 128 * 1280))
        dma(k, vPD[0], srd, 's%d' % sA, sW1024, slot)
    def f1():
        tok[('pw', st)] = dma(k, vPD[1], srd, 's%d' % sA, sW1024, slot + 8192)
    def f2():
        lab = k.newlab('w3')
        k.e('s_cmp_ge_u32 s%d, 4' % sW); k.e('s_cbranch_scc1 %s' % lab)
        k.e('s_add_u32 m0, s%d, %d' % (sW1024, slot + 16384)); k.e('s_nop 0')
        k.e('buffer_load_dwordx4 v%d, %s, s%d offen lds' % (vPD[2], S(srd), sA))
        k.label(lab)
    return [f0, f2, f1]

def p3_a_items(k, st, tok):
    base, rel = (sAh, st) if st < 7 else (sAc, st - 7)
    it = []
    for j in range(4):
        def f(j=j):
            if j == 0: k.e('s_add_u32 s%d, s%d, %d' % (sB, base, rel * 8192))
            tok[('pa', st, j >> 1)] = k.vm('buffer_load_dwordx4 %s, v%d, %s, s%d offen offset:%d sc1' % (R(AR + (st % 5) * 16 + j * 4), vA[j & 1], S(SWS), sB, (j >> 1) * 2048))
        it.append(f)
    return it

def poll_issue(k, soff):
    k.e('buffer_load_dword v%d, v%d, %s, %s offen sc1' % (vPl, vZ, S(SWS), soff))
def poll_check(k, soff, target):
    lab = k.newlab('pok')
    k.e('v_readfirstlane_b32 s%d, v%d' % (sT, vPl))
    k.e('s_cmp_ge_u32 s%d, %d' % (sT, target)); k.e('s_cbranch_scc1 %s' % lab)
    poll(k, SWS, soff, str(target), vPl)
    k.label(lab)

def phase_attn_p3(k, opt):
    tok = {}
    def h3_issue():
        k.e('s_lshl_b32 s%d, s%d, 7' % (sFl, sRBP)); k.e('s_add_u32 s%d, s%d, %d' % (sFl, sFl, WS_FLAGS + F_H3 * 128))
        poll_issue(k, 's%d' % sFl)
    def h3_check():
        k.e('s_waitcnt vmcnt(0)')
        poll_check(k, 's%d' % sFl, 27)
    def pre():
        k.vm_issued = k.vm_done = k.ds_issued = k.ds_done = 0
        for st in range(WD):
            for f in p3_w_items(k, st, tok): f()
            if st < AD:
                for f in p3_a_items(k, st, tok): f()
    phase_attn(k, opt, pre, h3_issue, h3_check)
    k.e('s_lshl_b32 s%d, s%d, 1' % (sFl, sRB)); k.e('s_lshr_b32 s%d, s%d, 4' % (sT, sH)); k.e('s_add_u32 s%d, s%d, s%d' % (sFl, sFl, sT))
    k.e('s_lshl_b32 s%d, s%d, 7' % (sFl, sFl)); k.e('s_add_u32 s%d, s%d, %d' % (sFl, sFl, WS_FLAGS + F_H4 * 128))
    k.e('s_cmp_ge_u32 s%d, 4' % sW); k.e('s_cbranch_scc1 L_pub')
    ctx_epilogue(k)
    k.e('s_waitcnt vmcnt(0)')
    k.label('L_pub')
    signal(k, SWS, 's%d' % sFl, vT0)
    if opt.stop == 'attn':
        return
    for i in range(20): k.e('v_mov_b64 %s, 0' % R(PACC + 2 * i, 2))
    AHP = 5
    frags = [(st, e, cb) for st in range(NST) for e in range(2) for cb in range(5)]
    cur = [0]
    def read(n):
        st, e, cb = frags[n]
        if e == 0 and cb == 0 and st > 0:
            d = ((st % NSL) - ((st - 1) % NSL)) * 20480
            k.e('v_add_u32 v%d, 0x%x, v%d' % (vPR, d & 0xffffffff, vPR))
        r = PW + 4 * (n % 8); off = e * 5120 + cb * 32
        k.ds('ds_read_b64_tr_b16 %s, v%d offset:%d' % (R(r, 2), vPR, off))
        tok[('pf', n)] = k.ds('ds_read_b64_tr_b16 %s, v%d offset:%d' % (R(r + 2, 2), vPR, off + 2560))
    k.wait(vm=tok[('pw', 0)])
    k.e('s_barrier')
    stamp(k, opt, 6)
    for n in range(AHP): read(n)
    asched = {0: [4], 1: [5], 2: [6], 3: [], 4: [], 5: [7, 8, 9]}
    for st in range(6, NST): asched[st] = [st + AD] if st + AD < NST else []
    XR = 128
    for st in range(NST):
        extra = {}
        ex = []
        for a in asched[st]: ex += p3_a_items(k, a, tok)
        if st == NST - 3:
            for cb in range(5):
                ex.append(lambda cb=cb: tok.__setitem__('x', k.vm('buffer_load_dwordx2 %s, v%d, %s, 0 offen offset:%d' % (R(XR + 2 * cb, 2), vXo, S(SX), cb * 32))))
        spread(extra, ex, 0, 4)
        skip = None
        for i in range(10):
            n = st * 10 + i
            _, e, cb = frags[n]
            k.wait(ds=tok[('pf', n)])
            if cb == 0: k.wait(vm=tok[('pa', st, e)])
            for q in range(2):
                D = PACC + (cb * 2 + q) * 4
                A = AR + (st % 5) * 16 + e * 8 + q * 4
                if st == 0:
                    lab = k.newlab('sk')
                    if q == 0:
                        k.e('s_cmp_gt_u32 s%d, s%d' % (sKH, sW1024 + 0) if False else 's_lshr_b32 s%d, s%d, 2' % (sT, sW))
                        k.e('s_cmp_gt_u32 s%d, s%d' % (sKH, sT)); k.e('s_cbranch_scc1 %s' % lab)
                        k.e(mfma(D, PW + 4 * (n % 8), A, D)); k.e(mfma(D + 4, PW + 4 * (n % 8), A + 4, D + 4))
                        k.label(lab)
                else:
                    k.e(mfma(D, PW + 4 * (n % 8), A, D))
                if q == 0:
                    if i == 10 - AHP and st < NST - 1:
                        if st == 4:
                            k.wait(vm=tok['h4'])
                            poll_check(k, 's%d' % sH4, 16)
                        k.wait(vm=tok[('pw', st + 1)])
                        k.e('s_barrier')
                        if st == 3:
                            poll_issue(k, 's%d' % sH4); k.vm_issued += 1; tok['h4'] = k.last_vm()
                    if n + AHP < len(frags): read(n + AHP)
            for f in extra.get(i, []): f()
            if st + WD < NST and i >= 10 - AHP:
                items = p3_w_items(k, st + WD, tok)
                j = i - (10 - AHP)
                if j < len(items): items[j]()
    stamp(k, opt, 7)
    k.e('s_mul_i32 s%d, s%d, 5120' % (sT, sW)); k.e('v_add_u32 v%d, s%d, v%d' % (vT0, sT, vL16))
    k.e('s_xor_b32 s%d, s%d, 4' % (sT2, sW)); k.e('s_mul_i32 s%d, s%d, 5120' % (sT2, sT2)); k.e('v_add_u32 v%d, s%d, v%d' % (vPl, sT2, vL16))
    k.e('s_nop 3')
    k.e('s_barrier')
    for cb in range(5): k.e('ds_write_b128 v%d, %s offset:%d' % (vT0, R(PACC + (cb * 2 + 1) * 4), cb * 1024))
    k.e('s_and_b32 s%d, s%d, 1' % (sT, sW)); k.e('s_lshl_b32 s%d, s%d, 1' % (sT, sT)); k.e('s_lshr_b32 s%d, s%d, 2' % (sT2, sW)); k.e('s_add_u32 s%d, s%d, s%d' % (sT, sT, sT2))
    k.e('s_xor_b32 s%d, s2, s%d' % (sT2, sKeep))
    k.e('s_lshl_b32 s%d, s%d, 7' % (sFl, sT2)); k.e('s_lshl_b32 s%d, s%d, 2' % (sA, sT)); k.e('s_add_u32 s%d, s%d, s%d' % (sFl, sFl, sA))
    k.e('s_add_u32 s%d, s%d, %d' % (sFl, sFl, WS_FLAGS + F_X5 * 128))
    k.e('s_mul_i32 s%d, s%d, 0x%x' % (sA, sT2, EX_BS)); k.e('s_mul_i32 s%d, s%d, 5120' % (sT, sT)); k.e('s_add_u32 s%d, s%d, s%d' % (sA, sA, sT))
    k.e('s_add_u32 s%d, s%d, 0x%x' % (sA, sA, WS_EX)); k.e('s_add_u32 s%d, s%d, 4096' % (sB, sA))
    k.e('s_waitcnt lgkmcnt(0)')
    k.e('s_barrier')
    RX = 16
    for cb in range(5): k.e('ds_read_b128 %s, v%d offset:%d' % (R(RX + cb * 4), vPl, cb * 1024))
    for cb in range(5):
        k.e('s_waitcnt lgkmcnt(%d)' % (4 - cb))
        for e in range(2):
            a = PACC + cb * 8 + 2 * e
            k.e('v_pk_add_f32 %s, %s, %s' % (R(a, 2), R(a, 2), R(RX + cb * 4 + 2 * e, 2)))
    k.e('s_cmp_lg_u32 s%d, 0' % sKeep); k.e('s_cbranch_scc1 L_keep')
    for cb in range(5):
        k.e('buffer_store_dwordx4 %s, v%d, %s, s%d offen offset:%d sc1' % (R(PACC + cb * 8), vL16, S(SWS), sA if cb < 4 else sB, (cb & 3) * 1024))
    k.e('v_mov_b32 v%d, 1' % vT0)
    k.e('s_waitcnt vmcnt(0)')
    k.e('s_mov_b64 exec, 1')
    k.e('buffer_store_dword v%d, v%d, %s, s%d offen sc1' % (vT0, vZ, S(SWS), sFl))
    k.e('s_branch L_fin')
    k.label('L_keep')
    for cb in range(5):
        for e in range(2):
            x = XR + 2 * cb + e; a = PACC + cb * 8 + 2 * e
            if cb == 0 and e == 0: k.e('s_waitcnt vmcnt(0)')
            k.e('v_lshlrev_b32 v%d, 16, v%d' % (vT0, x)); k.e('v_and_b32 v%d, 0xffff0000, v%d' % (x, x))
            k.e('v_add_f32 v%d, v%d, v%d' % (a, a, vT0)); k.e('v_add_f32 v%d, v%d, v%d' % (a + 1, a + 1, x))
    poll(k, SWS, 's%d' % sFl, '1', vPl)
    for cb in range(5):
        k.e('buffer_load_dwordx4 %s, v%d, %s, s%d offen offset:%d sc1' % (R(RX + cb * 4), vL16, S(SWS), sA if cb < 4 else sB, (cb & 3) * 1024))
    for cb in range(5):
        k.e('s_waitcnt vmcnt(%d)' % 4)
        a = PACC + cb * 8
        for e in range(2):
            k.e('v_pk_add_f32 %s, %s, %s' % (R(a + 2 * e, 2), R(a + 2 * e, 2), R(RX + cb * 4 + 2 * e, 2)))
        k.e('v_cvt_pk_bf16_f32 v%d, v%d, v%d' % (a + 4, a, a + 1)); k.e('v_cvt_pk_bf16_f32 v%d, v%d, v%d' % (a + 5, a + 2, a + 3))
        k.e('buffer_store_dwordx2 %s, v%d, %s, 0 offen offset:%d' % (R(a + 4, 2), vXo, S(SOUT), cb * 32))
    k.label('L_fin')
    stamp(k, opt, 8)
```

```python
import re

class KB:
    def __init__(self):
        self.lines = []
        self.vm_issued = 0
        self.vm_done = 0
        self.ds_issued = 0
        self.ds_done = 0
        self.nlab = 0
    def e(self, s):
        for l in s.split('\n'):
            l = l.strip()
            if l:
                self.lines.append(l if l.endswith(':') else '    ' + l)
    def c(self, s):
        self.lines.append('    ; ' + s)
    def label(self, n):
        self.lines.append(n + ':')
    def newlab(self, base):
        self.nlab += 1
        return 'L%s_%d' % (base, self.nlab)
    def vm(self, s):
        self.e(s); self.vm_issued += 1
        return self.vm_issued - 1
    def ds(self, s):
        self.e(s); self.ds_issued += 1
        return self.ds_issued - 1
    def wait(self, vm=None, ds=None):
        parts = []
        if vm is not None and vm >= self.vm_done:
            n = self.vm_issued - 1 - vm
            if n > 63: n = 63; self.vm_done = self.vm_issued - 63
            else: self.vm_done = vm + 1
            parts.append('vmcnt(%d)' % n)
        if ds is not None and ds >= self.ds_done:
            n = self.ds_issued - 1 - ds
            if n > 15: n = 15; self.ds_done = self.ds_issued - 15
            else: self.ds_done = ds + 1
            parts.append('lgkmcnt(%d)' % n)
        if parts:
            self.e('s_waitcnt ' + ' '.join(parts))
    def wait_all(self, vm=True, ds=True):
        parts = []
        if vm: parts.append('vmcnt(0)'); self.vm_done = self.vm_issued
        if ds: parts.append('lgkmcnt(0)'); self.ds_done = self.ds_issued
        self.e('s_waitcnt ' + ' '.join(parts))
    def last_vm(self): return self.vm_issued - 1
    def last_ds(self): return self.ds_issued - 1
    def text(self):
        return '\n'.join(self.lines) + '\n'

def R(b, n=4):
    return 'v[%d:%d]' % (b, b + n - 1) if n > 1 else 'v%d' % b
def S(b, n=4):
    return 's[%d:%d]' % (b, b + n - 1) if n > 1 else 's%d' % b
def mfma(D, A, B, C):
    c = C if isinstance(C, str) else R(C)
    return 'v_mfma_f32_16x16x32_bf16 %s, %s, %s, %s' % (R(D), R(A), R(B), c)

_reg = re.compile(r'\b([vs])(\d+)\b|\b([vs])\[(\d+):(\d+)\]|\b(vcc|exec|m0|scc)\b')
def regs_of(op):
    out = set()
    for m in _reg.finditer(op):
        if m.group(1): out.add(m.group(1) + m.group(2))
        elif m.group(3):
            for i in range(int(m.group(4)), int(m.group(5)) + 1): out.add(m.group(3) + str(i))
        else: out.add(m.group(6))
    return out
TRANS = ('v_exp_f32', 'v_log_f32', 'v_rcp_f32', 'v_rsq_f32', 'v_sqrt_f32', 'v_sin_f32', 'v_cos_f32')
def parse(line):
    l = line.split(';')[0].strip()
    if not l or l.endswith(':') or l.startswith('.'): return None
    sp = l.split(None, 1)
    mn = sp[0]; ops = [x.strip() for x in sp[1].split(',')] if len(sp) > 1 else []
    d = dict(mn=mn, text=l, w=set(), r=set(), kind='other', states=1)
    if mn == 's_nop': d['states'] = int(ops[0]) + 1; return d
    if mn.startswith('v_mfma'):
        d['kind'] = 'mfma'; d['w'] = regs_of(ops[0]); d['A'] = regs_of(ops[1]) | regs_of(ops[2]); d['C'] = regs_of(ops[3]); d['r'] = d['A'] | d['C']
    elif mn.startswith('v_'):
        d['kind'] = 'valu'
        if mn.startswith('v_cmp'):
            d['w'] = regs_of(ops[0]); d['r'] = set().union(*[regs_of(o) for o in ops[1:]])
        elif mn.startswith('v_permlane') and 'swap' in mn:
            d['w'] = regs_of(ops[0]) | regs_of(ops[1]); d['r'] = set(d['w'])
        elif mn.startswith('v_readfirstlane') or mn.startswith('v_readlane'):
            d['w'] = regs_of(ops[0]); d['r'] = set().union(*[regs_of(o) for o in ops[1:]])
        else:
            d['w'] = regs_of(ops[0]); d['r'] = set().union(*[regs_of(o) for o in ops[1:]]) if len(ops) > 1 else set()
            if mn.startswith('v_fmac') or mn.startswith('v_pk_fmac'): d['r'] |= d['w']
            if mn.startswith('v_cndmask') and len(ops) == 3: d['r'].add('vcc')
            if '_co_' in mn: d['w'] |= regs_of(ops[1])
        d['trans'] = mn.replace('_e32', '').replace('_e64', '') in TRANS
        d['dpp'] = 'row_' in l or 'quad_perm' in l
    elif mn.startswith('buffer_') or mn.startswith('global_'):
        d['kind'] = 'vmem'
        allr = set().union(*[regs_of(o) for o in ops])
        if 'store' in mn or 'atomic' in mn:
            d['r'] = allr; d['data'] = regs_of(ops[0]); d['wide'] = ('x4' in mn or 'x3' in mn)
        elif ' lds' in l:
            d['r'] = allr | {'m0'}; d['ldsdma'] = True
        elif mn.startswith('buffer_inv') or mn.startswith('buffer_wbl2'):
            pass
        else:
            d['w'] = regs_of(ops[0]); d['r'] = set().union(*[regs_of(o) for o in ops[1:]])
    elif mn.startswith('ds_'):
        d['kind'] = 'ds'
        if mn.startswith('ds_read') or 'rtn' in mn or mn.startswith('ds_bpermute') or mn.startswith('ds_swizzle'):
            d['w'] = regs_of(ops[0]); d['r'] = set().union(*[regs_of(o) for o in ops[1:]])
        else:
            d['r'] = set().union(*[regs_of(o) for o in ops])
    elif mn.startswith('s_'):
        d['kind'] = 'salu'
        if mn.startswith('s_cmp') or mn.startswith('s_cbranch') or mn in ('s_waitcnt', 's_barrier', 's_branch', 's_endpgm', 's_setprio', 's_sleep'):
            d['r'] = set().union(*[regs_of(o) for o in ops]) if ops and not mn.startswith('s_waitcnt') else set()
        else:
            d['w'] = regs_of(ops[0]); d['r'] = set().union(*[regs_of(o) for o in ops[1:]]) if len(ops) > 1 else set()
    return d

def check_hazards(lines):
    ins = [(i, parse(l)) for i, l in enumerate(lines)]
    ins = [(i, d) for i, d in ins if d]
    errs = []
    for k, (li, c) in enumerate(ins):
        dist = 0
        for j in range(k - 1, max(-1, k - 24), -1):
            lj, p = ins[j]
            if p['mn'] in ('s_branch', 's_endpgm'): break
            need = 0; why = ''
            vw = {x for x in p['w'] if x[0] == 'v' and x not in ('vcc',)}
            sw = {x for x in p['w'] if x[0] == 's' or x == 'vcc'}
            if p['kind'] == 'valu':
                if c['kind'] == 'mfma' and vw & c['r']: need, why = 2, 'valu->mfma'
                if c['kind'] == 'valu' and c.get('dpp') and vw & c['r']: need, why = 2, 'valu->dpp'
                if c['kind'] == 'valu' and c['mn'].startswith('v_permlane') and vw & c['r']: need, why = 2, 'valu->permlane'
                if c['kind'] == 'valu' and (c['mn'].startswith('v_readfirstlane') or c['mn'].startswith('v_readlane')) and vw & c['r']: need, why = max(need, 1), 'valu->readlane'
                if p.get('trans') and c['kind'] in ('valu', 'mfma') and not c.get('trans') and vw & c['r']: need, why = max(need, 1), 'trans->valu'
                if sw and c['kind'] == 'valu' and sw & c['r']: need, why = max(need, 2), 'valu sgpr->valu'
                if sw and c['kind'] == 'vmem' and sw & c['r']: need, why = max(need, 5), 'valu sgpr->vmem'
            if p['kind'] == 'mfma':
                if c['kind'] == 'mfma':
                    if p['w'] & c['A']: need, why = 8, 'mfma D->mfma A/B'
                    elif p['w'] & c['C'] and p['w'] != c['C']: need, why = 6, 'mfma D->partial C'
                elif c['kind'] in ('valu', 'vmem', 'ds'):
                    if p['w'] & (c['r'] | c['w']): need, why = 8, 'mfma D->valu/mem'
                    if c['kind'] == 'valu' and p['C'] & c['w']: need, why = max(need, 3), 'mfma C WAR'
            if p['kind'] == 'vmem' and p.get('wide') and c['kind'] == 'valu' and p['data'] & c['w']: need, why = 2, 'store data WAR'
            if p['kind'] == 'vmem' and p.get('wide') and c['kind'] in ('ds', 'vmem', 'mfma') and p['data'] & c['w']: need, why = 1, 'store data WAR'
            if p['kind'] == 'salu' and 'm0' in p['w'] and c.get('ldsdma'): need, why = 1, 'm0->lds dma'
            if need > dist:
                errs.append('line %d: %s  <- line %d: %s : %s needs %d has %d' % (li + 1, c['text'], lj + 1, p['text'], why, need, dist))
            dist += p['states']
            if dist >= 20: break
    return errs
```

```python
import sys, os
sys.path.insert(0, os.path.dirname(os.path.abspath(__file__)))
from kb import *

NAME = 'parallel_sum__compressed_kv_cla__dense_activation_relu__prompt'
WS_FLAGS = 0
WS_XN = 0x10000;   XN_BS = 40960
WS_H = 0x290000;   H_BS = 0x1B000
WS_KV = 0x950000;  KVS = 0x83000
WS_CTX = 0x2A10000; CTX_BS = 0x43000
WS_EX = 0x3AD0000; EX_BS = 0x5000
WS_DBGQ = 0x4000000
WS_STAMP = 0x5000000
F_H2, F_H3, F_H4, F_X5 = 0, 32, 96, 224
SX, SCKV, SWQ, SWUK, SWUV, SWO, SW1, SW2, SOUT, SDBG, SWS = 4, 8, 12, 16, 20, 24, 28, 32, 36, 40, 44
sW, sH, sP, sRB = 48, 49, 50, 51
sW4096, sW1056 = 52, 53
sA, sB, sC, sT, sT2 = 54, 55, 56, 57, 58
sXN, sKst, sVst, sHst = 59, 60, 61, 62
sSc = 64
sSpin = 66
KV_C = [0, 66560]; KV_W = [32768, 99328]
QA, QB, QC = 138496, 113152, 87808
QSLOT = [QA, QC, QB]
LN_BUF = QA; LN_STRIDE = 1296
LDS_BYTES = 163840
vL16, vWD, vW1D, vZ = 1, 2, 3, 4
vT0, vT1, vT2, vT3 = 5, 6, 7, 8
vWQR = [9, 10]
vW1R = [11, 12]
vCD = [112, 113, 114, 115]
vCR = [[116, 117], [118, 119]]
vWR = [120, 121]
ACCK, ACCV = 128, 192
CF = [16, 64]; WF = [48, 96]

class Opt:
    stamps = False
    dumpq = False
    stop = None
    stper = 3
    h2sig = 6

def emit_interleaved(k, mf, fill, tok):
    for i, (txt, needs) in enumerate(mf):
        need = [tok[x] for x in needs if x in tok]
        if need: k.wait(ds=max(need))
        k.e(txt)
        for f in fill.get(i, []): f()

def spread(fill, items, first, last):
    n = len(items)
    for j, it in enumerate(items):
        s = first + (j * (last - first + 1)) // max(n, 1)
        fill.setdefault(s, []).append(it)

def stamp(k, opt, idx):
    if not opt.stamps: return
    lab = k.newlab('st')
    k.e('s_cmp_lg_u32 s%d, 0' % sW); k.e('s_cbranch_scc1 %s' % lab)
    k.e('s_memrealtime s[90:91]'); k.e('s_waitcnt lgkmcnt(0)')
    k.e('v_mov_b32 v15, s90')
    k.e('s_lshl_b32 s92, s2, 6'); k.e('s_add_u32 s92, s92, 0x%x' % (WS_STAMP + idx * 4))
    k.e('buffer_store_dword v15, v%d, %s, s92 offen' % (vZ, S(SWS)))
    k.label(lab)
    k.ds_done = k.ds_done

def poll(k, srd, soff, target, vtmp):
    lp = k.newlab('poll'); dn = k.newlab('polld')
    k.e('s_mov_b32 s%d, 0x8000' % sSpin)
    k.label(lp)
    k.e('buffer_load_dword v%d, v%d, %s, %s offen sc1' % (vtmp, vZ, S(srd), soff))
    k.e('s_waitcnt vmcnt(0)')
    k.e('v_readfirstlane_b32 s%d, v%d' % (sT, vtmp))
    k.e('s_cmp_ge_u32 s%d, %s' % (sT, target))
    k.e('s_cbranch_scc1 %s' % dn)
    k.e('s_sleep 8')
    k.e('s_sub_u32 s%d, s%d, 1' % (sSpin, sSpin))
    k.e('s_cmp_lg_u32 s%d, 0' % sSpin)
    k.e('s_cbranch_scc1 %s' % lp)
    k.label(dn)

def signal(k, srd, soff, vtmp):
    k.e('v_mov_b32 v%d, 1' % vtmp)
    k.e('s_mov_b64 exec, 1')
    k.e('buffer_atomic_add v%d, v%d, %s, %s offen' % (vtmp, vZ, S(srd), soff))
    k.e('s_mov_b64 exec, -1')

def dma(k, voff, srd, soff, m0base, m0imm):
    k.e('s_add_u32 m0, s%d, %d' % (m0base, m0imm))
    k.e('s_nop 0')
    return k.vm('buffer_load_dwordx4 v%d, %s, %s offen lds' % (voff, S(srd), soff))

def prologue(k, opt):
    k.e('s_cmp_ge_u32 s2, 256'); k.e('s_cbranch_scc1 L_exit')
    k.e('s_load_dwordx16 s[64:79], s[0:1], 0')
    k.e('s_load_dwordx8 s[80:87], s[0:1], 64')
    k.e('v_lshrrev_b32 v%d, 6, v0' % vT0)
    k.e('v_and_b32 v0, 63, v0')
    k.e('v_readfirstlane_b32 s%d, v%d' % (sW, vT0))
    k.e('v_lshlrev_b32 v%d, 4, v0' % vL16)
    k.e('v_mov_b32 v%d, 0' % vZ)
    k.e('s_and_b32 s%d, s2, 7' % sT); k.e('s_lshr_b32 s%d, s2, 3' % sT2)
    k.e('s_lshl_b32 s%d, s%d, 2' % (sH, sT)); k.e('s_and_b32 s%d, s%d, 3' % (sT, sT2)); k.e('s_add_u32 s%d, s%d, s%d' % (sH, sH, sT))
    k.e('s_lshr_b32 s%d, s%d, 2' % (sP, sT2))
    k.e('s_sub_u32 s%d, 15, s%d' % (sT, sP))
    k.e('s_cmp_lt_u32 s%d, 4' % sW); k.e('s_cselect_b32 s%d, s%d, s%d' % (sT, sT, sP))
    k.e('s_lshl_b32 s%d, s%d, 2' % (sRB, sT)); k.e('s_and_b32 s%d, s%d, 3' % (sT, sW)); k.e('s_add_u32 s%d, s%d, s%d' % (sRB, sRB, sT))
    k.e('s_lshl_b32 s%d, s%d, 12' % (sW4096, sW)); k.e('s_mul_i32 s%d, s%d, 1056' % (sW1056, sW))
    k.e('v_lshrrev_b32 v%d, 4, v0' % vT0); k.e('v_and_b32 v%d, 15, v0' % vT1)
    k.e('v_lshrrev_b32 v%d, 3, v0' % vT2); k.e('v_and_b32 v%d, 7, v0' % vT3)
    k.e('s_lshl_b32 s%d, s%d, 8' % (sT, sP)); k.e('s_lshl_b32 s%d, s%d, 5' % (sT2, sW)); k.e('s_add_u32 s%d, s%d, s%d' % (sT, sT, sT2))
    k.e('v_add_u32 v%d, s%d, v%d' % (vT2, sT, vT2)); k.e('v_lshlrev_b32 v%d, 10, v%d' % (vT2, vT2))
    k.e('v_xor_b32 v%d, v%d, v%d' % (vT3, vT3, vT0)); k.e('v_lshlrev_b32 v%d, 4, v%d' % (vT3, vT3))
    k.e('v_add_u32 v%d, v%d, v%d' % (vCD[0], vT2, vT3))
    k.e('v_xor_b32 v%d, 64, v%d' % (vCD[1], vCD[0])); k.e('v_add_u32 v%d, 0x2000, v%d' % (vCD[1], vCD[1]))
    k.e('v_add_u32 v%d, 0x4000, v%d' % (vCD[2], vCD[0])); k.e('v_add_u32 v%d, 0x4000, v%d' % (vCD[3], vCD[1]))
    k.e('v_and_b32 v%d, 1, v%d' % (vT2, vT0)); k.e('v_lshlrev_b32 v%d, 2, v%d' % (vT2, vT2))
    k.e('v_lshrrev_b32 v%d, 1, v%d' % (vT3, vT0)); k.e('v_lshl_add_u32 v%d, v%d, 4, v%d' % (vT2, vT3, vT2))
    k.e('s_lshr_b32 s%d, s%d, 2' % (sT, sW)); k.e('s_lshl_b32 s%d, s%d, 3' % (sT, sT)); k.e('s_and_b32 s%d, s%d, 3' % (sT2, sW)); k.e('s_add_u32 s%d, s%d, s%d' % (sT, sT, sT2))
    k.e('v_add_u32 v%d, s%d, v%d' % (vT2, sT, vT2)); k.e('v_lshlrev_b32 v%d, 13, v%d' % (vT2, vT2))
    k.e('v_lshl_add_u32 v%d, v%d, 4, v%d' % (vT2, vT1, vT2))
    k.e('s_lshl_b32 s%d, s%d, 8' % (sT, sH)); k.e('v_add_u32 v%d, s%d, v%d' % (vWD, sT, vT2))
    k.e('s_waitcnt lgkmcnt(0)')
    sizes = [(SX, 64, 2621440), (SCKV, 66, 2097152), (SWQ, 68, 5242880), (SWUK, 70, 4194304), (SWUV, 72, 4194304), (SWO, 74, 5242880),
             (SW1, 78, 2211840), (SW2, 80, 2211840), (SOUT, 82, 2621440), (SDBG, 84, 256), (SWS, 86, 0x10000000)]
    order = [1, 3, 4, 0, 10, 2, 6, 9, 5, 7, 8]
    def mk(i):
        d, p, n = sizes[i]
        k.e('s_mov_b32 s%d, s%d' % (d, p)); k.e('s_and_b32 s%d, s%d, 0xffff' % (d + 1, p + 1))
        k.e('s_mov_b32 s%d, 0x%x' % (d + 2, n)); k.e('s_mov_b32 s%d, 0x20000' % (d + 3))
    for i in order[:3]: mk(i)
    return lambda: [mk(i) for i in order[3:]]

def kv_dma_items(k, s):
    b = s & 1
    it = []
    def setoff():
        k.e('s_mov_b32 s%d, %d' % (sA, s * 128)); k.e('s_mov_b32 s%d, 0x%x' % (sB, s * 64 * 8192)); k.e('s_mov_b32 s%d, 0x%x' % (sC, (s * 64 + 32) * 8192))
    first = [True]
    def mkc(jj):
        def f():
            if first[0]: setoff(); first[0] = False
            dma(k, vCD[jj], SCKV, 's%d' % sA, sW4096, KV_C[b] + jj * 1024)
        return f
    def mkw(mat, ks):
        def f():
            dma(k, vWD, [SWUK, SWUV][mat], 's%d' % [sB, sC][ks], sW1056, KV_W[b] + (mat * 2 + ks) * 8448)
        return f
    it += [mkc(0), mkw(0, 0), mkc(1), mkw(1, 0), mkc(2), mkw(0, 1), mkc(3), mkw(1, 1)]
    return it

def kv_read_items(k, t, tok):
    s, ks, rb = t >> 1, t & 1, t & 1
    lb = s & 1
    it = []
    for mat in range(2):
        for db in range(2):
            for hf in range(2):
                def f(mat=mat, db=db, hf=hf):
                    r = WF[rb] + (mat * 2 + db) * 4 + hf * 2
                    tok[('w', t, mat, db)] = k.ds('ds_read_b64_tr_b16 %s, v%d offset:%d' % (R(r, 2), vWR[lb], (mat * 2 + ks) * 8448 + hf * 256 + db * 32))
                it.append(f)
    for kb in range(8):
        def f(kb=kb):
            tok[('c', t, kb)] = k.ds('ds_read_b128 %s, v%d offset:%d' % (R(CF[rb] + kb * 4), vCR[lb][ks], kb * 2048))
        it.append(f)
    return it

def rowsum64(k, v, t):
    for r in (8, 4, 2, 1):
        k.e('s_nop 1')
        k.e('v_add_f32_dpp v%d, v%d, v%d row_ror:%d row_mask:0xf bank_mask:0xf' % (v, v, v, r))
    k.e('v_mov_b32 v%d, v%d' % (t, v)); k.e('s_nop 1')
    k.e('v_permlane16_swap_b32 v%d, v%d' % (v, t)); k.e('v_add_f32 v%d, v%d, v%d' % (v, v, t))
    k.e('v_mov_b32 v%d, v%d' % (t, v)); k.e('s_nop 1')
    k.e('v_permlane32_swap_b32 v%d, v%d' % (v, t)); k.e('v_add_f32 v%d, v%d, v%d' % (v, v, t))

def rbf(k, v):
    k.e('v_cvt_pk_bf16_f32 v%d, v%d, v%d' % (v, v, v)); k.e('v_lshlrev_b32 v%d, 16, v%d' % (v, v))

def phase_ln_kv(k, opt, rest_srds):
    tok = {}
    for f in kv_dma_items(k, 0): f()
    t_st0 = k.last_vm()
    rest_srds()
    stamp(k, opt, 0)
    X = 16
    k.e('s_lshl_b32 s%d, s2, 3' % sT); k.e('s_add_u32 s%d, s%d, s%d' % (sT, sT, sW)); k.e('s_mul_i32 s%d, s%d, 1280' % (sT, sT))
    k.e('v_lshlrev_b32 v%d, 2, v0' % vT2)
    for j in range(5):
        k.vm('buffer_load_dword v%d, v%d, %s, s%d offen offset:%d' % (X + j, vT2, S(SX), sT, j * 256))
    t_ln = k.last_vm()
    for f in kv_dma_items(k, 1): f()
    t_st1 = k.last_vm()
    lab = k.newlab('zf')
    k.e('s_cmp_lg_u32 s%d, 7' % sW); k.e('s_cbranch_scc1 %s' % lab)
    k.e('s_lshl_b32 s%d, s2, 8' % sT)
    k.e('buffer_store_dword v%d, v%d, %s, s%d offen sc1' % (vZ, vT2, S(SWS), sT))
    k.label(lab)
    k.e('v_lshrrev_b32 v%d, 1, v%d' % (vT3, vT1)); k.e('v_xor_b32 v%d, v%d, v%d' % (vT3, vT3, vT0)); k.e('v_lshlrev_b32 v%d, 4, v%d' % (vT3, vT3))
    k.e('v_lshl_add_u32 v%d, v%d, 7, v%d' % (vT3, vT1, vT3))
    k.e('s_lshr_b32 s%d, s%d, 2' % (sT, sW)); k.e('s_lshl_b32 s%d, s%d, 14' % (sT, sT))
    k.e('v_add_u32 v%d, s%d, v%d' % (vCR[0][0], sT, vT3)); k.e('v_xor_b32 v%d, 64, v%d' % (vCR[0][1], vCR[0][0]))
    k.e('v_add_u32 v%d, %d, v%d' % (vCR[1][0], KV_C[1], vCR[0][0])); k.e('v_add_u32 v%d, %d, v%d' % (vCR[1][1], KV_C[1], vCR[0][1]))
    k.e('v_lshrrev_b32 v%d, 2, v%d' % (vT3, vT1)); k.e('v_and_b32 v22, 1, v%d' % vT0); k.e('v_lshl_add_u32 v%d, v22, 2, v%d' % (vT3, vT3))
    k.e('v_lshrrev_b32 v22, 1, v%d' % vT0); k.e('v_lshlrev_b32 v22, 9, v22')
    k.e('v_and_b32 v23, 3, v%d' % vT1); k.e('v_lshl_add_u32 v22, v23, 3, v22')
    k.e('v_mul_u32_u24 v23, 1056, v%d' % vT3); k.e('v_add_u32 v23, v23, v22')
    k.e('v_add_u32 v%d, %d, v23' % (vWQR[0], QC)); k.e('v_add_u32 v%d, %d, v23' % (vWQR[1], QA))
    k.e('s_and_b32 s%d, s%d, 3' % (sT, sW)); k.e('s_lshl_b32 s%d, s%d, 6' % (sT, sT))
    k.e('v_add_u32 v23, s%d, v23' % sT)
    k.e('v_add_u32 v%d, %d, v23' % (vWR[0], KV_W[0])); k.e('v_add_u32 v%d, %d, v23' % (vWR[1], KV_W[1]))
    k.e('v_lshrrev_b32 v23, 1, v%d' % vT3); k.e('v_mul_u32_u24 v23, 1056, v23'); k.e('v_add_u32 v23, v23, v22')
    k.e('v_and_b32 v%d, 1, v%d' % (vT3, vT3)); k.e('v_lshl_add_u32 v23, v%d, 7, v23' % vT3)
    k.e('v_add_u32 v%d, %d, v23' % (vW1R[0], QC + 16896)); k.e('v_add_u32 v%d, %d, v23' % (vW1R[1], QA + 16896))
    k.e('v_bfe_u32 v22, v0, 3, 1'); k.e('v_bfe_u32 v23, v0, 4, 1'); k.e('v_lshl_add_u32 v22, v23, 2, v22')
    k.e('v_lshrrev_b32 v23, 5, v0'); k.e('v_lshl_add_u32 v22, v23, 4, v22')
    k.e('s_and_b32 s%d, s%d, 1' % (sT, sW)); k.e('s_lshl_b32 s%d, s%d, 1' % (sT, sT))
    k.e('s_bfe_u32 s%d, s%d, 0x10001' % (sT2, sW)); k.e('s_lshl_b32 s%d, s%d, 3' % (sT2, sT2)); k.e('s_add_u32 s%d, s%d, s%d' % (sT, sT, sT2))
    k.e('s_lshr_b32 s%d, s%d, 2' % (sT2, sW)); k.e('s_lshl_b32 s%d, s%d, 5' % (sT2, sT2)); k.e('s_add_u32 s%d, s%d, s%d' % (sT, sT, sT2))
    k.e('v_add_u32 v22, s%d, v22' % sT); k.e('v_mul_u32_u24 v22, 3456, v22')
    k.e('v_and_b32 v23, 7, v0'); k.e('v_lshl_add_u32 v22, v23, 4, v22')
    k.e('s_lshl_b32 s%d, s%d, 7' % (sT, sH)); k.e('v_add_u32 v%d, s%d, v22' % (vW1D, sT))
    k.e('s_mul_i32 s%d, s%d, %d' % (sXN, sRB, XN_BS)); k.e('s_add_u32 s%d, s%d, 0x%x' % (sXN, sXN, WS_XN))
    k.e('s_mul_i32 s%d, s%d, 0x%x' % (sKst, sH, 2 * KVS)); k.e('s_add_u32 s%d, s%d, 0x%x' % (sKst, sKst, WS_KV))
    k.e('s_lshl_b32 s%d, s%d, 16' % (sT, sP)); k.e('s_add_u32 s%d, s%d, s%d' % (sKst, sKst, sT))
    k.e('s_lshr_b32 s%d, s%d, 2' % (sT, sW)); k.e('s_lshl_b32 s%d, s%d, 15' % (sT, sT)); k.e('s_add_u32 s%d, s%d, s%d' % (sKst, sKst, sT))
    k.e('s_and_b32 s%d, s%d, 3' % (sT, sW)); k.e('s_lshl_b32 s%d, s%d, 11' % (sT2, sT)); k.e('s_add_u32 s%d, s%d, s%d' % (sVst, sKst, sT2))
    k.e('s_add_u32 s%d, s%d, 0x%x' % (sVst, sVst, KVS))
    k.e('s_lshl_b32 s%d, s%d, 10' % (sT, sT)); k.e('s_add_u32 s%d, s%d, s%d' % (sKst, sKst, sT))
    k.e('s_mul_i32 s%d, s%d, 0x%x' % (sHst, sRB, H_BS)); k.e('s_lshl_b32 s%d, s%d, 12' % (sT, sH)); k.e('s_add_u32 s%d, s%d, s%d' % (sHst, sHst, sT))
    k.e('s_add_u32 s%d, s%d, 0x%x' % (sHst, sHst, WS_H))
    k.e('s_mov_b32 s%d, 0x3e0293ee' % sSc); k.e('s_mov_b32 s%d, 0x3e0293ee' % (sSc + 1))
    F = 24
    k.wait(vm=t_ln)
    for j in range(5):
        k.e('v_lshlrev_b32 v%d, 16, v%d' % (F + 2 * j, X + j)); k.e('v_and_b32 v%d, 0xffff0000, v%d' % (F + 2 * j + 1, X + j))
    k.e('v_add_f32 v34, v%d, v%d' % (F, F + 1))
    for j in range(2, 10): k.e('v_add_f32 v34, v34, v%d' % (F + j))
    rowsum64(k, 34, 35)
    k.e('v_mul_f32 v34, 0x3acccccd, v34')
    k.e('v_sub_f32 v36, v%d, v34' % F); k.e('v_mul_f32 v37, v36, v36')
    for j in range(1, 10):
        k.e('v_sub_f32 v36, v%d, v34' % (F + j)); k.e('v_fmac_f32 v37, v36, v36')
    rowsum64(k, 37, 35)
    k.e('v_mul_f32 v37, 0x3acccccd, v37')
    rbf(k, 34); rbf(k, 37)
    k.e('v_add_f32 v37, 0x3727c5ac, v37'); rbf(k, 37)
    k.e('v_sqrt_f32 v37, v37'); k.e('s_nop 0'); rbf(k, 37)
    k.e('v_rcp_f32 v37, v37')
    for j in range(10): k.e('v_sub_f32 v%d, v%d, v34' % (F + j, F + j))
    for j in range(5): k.e('v_cvt_pk_bf16_f32 v%d, v%d, v%d' % (X + j, F + 2 * j, F + 2 * j + 1))
    for j in range(5):
        k.e('v_lshlrev_b32 v%d, 16, v%d' % (F + 2 * j, X + j)); k.e('v_and_b32 v%d, 0xffff0000, v%d' % (F + 2 * j + 1, X + j))
    for j in range(10): k.e('v_mul_f32 v%d, v%d, v37' % (F + j, F + j))
    for j in range(5): k.e('v_cvt_pk_bf16_f32 v%d, v%d, v%d' % (X + j, F + 2 * j, F + 2 * j + 1))
    k.e('s_mul_i32 s%d, s%d, %d' % (sT, sW, LN_STRIDE)); k.e('s_add_u32 s%d, s%d, %d' % (sT, sT, LN_BUF))
    k.e('v_add_u32 v%d, s%d, v%d' % (vT2, sT, vT2))
    for j in range(5): k.ds('ds_write_b32 v%d, v%d offset:%d' % (vT2, X + j, j * 256))
    k.wait(vm=t_st0, ds=k.last_ds())
    k.e('s_barrier')
    stamp(k, opt, 1)
    for f in kv_read_items(k, 0, tok): f()
    lab = k.newlab('xs')
    k.e('s_cmp_ge_u32 s%d, 5' % sW); k.e('s_cbranch_scc1 %s' % lab)
    k.e('v_and_b32 v%d, 7, v0' % vT2); k.e('v_lshrrev_b32 v%d, 3, v0' % vT3)
    k.e('v_mul_u32_u24 v64, %d, v%d' % (LN_STRIDE, vT2)); k.e('v_lshl_add_u32 v64, v%d, 4, v64' % vT3)
    k.e('s_lshl_b32 s%d, s%d, 8' % (sT, sW)); k.e('s_add_u32 s%d, s%d, %d' % (sT, sT, LN_BUF)); k.e('v_add_u32 v64, s%d, v64' % sT)
    k.e('ds_read_b128 v[68:71], v64'); k.e('ds_read_b128 v[72:75], v64 offset:128')
    k.e('v_lshrrev_b32 v65, 2, v%d' % vT3); k.e('v_lshlrev_b32 v65, 11, v65'); k.e('v_and_b32 v66, 3, v%d' % vT3)
    k.e('v_lshl_add_u32 v65, v66, 8, v65'); k.e('v_lshl_add_u32 v65, v%d, 4, v65' % vT2)
    k.e('s_lshr_b32 s%d, s2, 2' % sT); k.e('s_mul_i32 s%d, s%d, %d' % (sT, sT, XN_BS))
    k.e('s_bfe_u32 s%d, s2, 0x10001' % sT2); k.e('s_lshl_b32 s%d, s%d, 10' % (sT2, sT2)); k.e('s_add_u32 s%d, s%d, s%d' % (sT, sT, sT2))
    k.e('s_and_b32 s%d, s2, 1' % sT2); k.e('s_lshl_b32 s%d, s%d, 7' % (sT2, sT2)); k.e('s_add_u32 s%d, s%d, s%d' % (sT, sT, sT2))
    k.e('s_lshl_b32 s%d, s%d, 13' % (sT2, sW)); k.e('s_add_u32 s%d, s%d, s%d' % (sT, sT, sT2)); k.e('s_add_u32 s%d, s%d, 0x%x' % (sT, sT, WS_XN))
    k.e('s_add_u32 s%d, s%d, 4096' % (sT2, sT))
    k.e('s_waitcnt lgkmcnt(0)')
    k.e('buffer_store_dwordx4 v[68:71], v65, %s, s%d offen sc1' % (S(SWS), sT))
    k.e('buffer_store_dwordx4 v[72:75], v65, %s, s%d offen sc1' % (S(SWS), sT2))
    k.e('s_nop 0')
    k.label(lab)
    st_tok = {0: t_st0, 1: t_st1}
    def mf_step(t):
        b = t & 1; out = []
        for kb in range(8):
            for db in range(2):
                D = ACCK + (kb * 2 + db) * 4
                out.append((mfma(D, WF[b] + db * 4, CF[b] + kb * 4, '0' if t == 0 else D), [('w', t, 0, db), ('c', t, kb)]))
            for db in range(2):
                D = ACCV + (kb * 2 + db) * 4
                out.append((mfma(D, CF[b] + kb * 4, WF[b] + 8 + db * 4, '0' if t == 0 else D), [('w', t, 1, db), ('c', t, kb)]))
        return out
    qtok = {}
    for s in range(8):
        fill = {}
        spread(fill, kv_read_items(k, 2 * s + 1, tok), 0, 23)
        emit_interleaved(k, mf_step(2 * s), fill, tok)
        if s == 6:
            lab = k.newlab('g1')
            k.e('s_cmp_lg_u32 s%d, 0' % sW); k.e('s_cbranch_scc1 %s' % lab)
            poll(k, SDBG, '0', '0x100', vT0)
            k.label(lab)
        if s < 7:
            k.wait(vm=st_tok[s + 1], ds=k.last_ds())
            k.e('s_barrier')
        if s == 1:
            lab = k.newlab('g1s')
            k.e('s_cmp_lg_u32 s%d, 0' % sW); k.e('s_cbranch_scc1 %s' % lab)
            signal(k, SDBG, '0', vT0)
            k.label(lab)
        fill = {}
        if s < 7:
            spread(fill, kv_read_items(k, 2 * s + 2, tok), 0, 23)
        if s < 6:
            spread(fill, kv_dma_items(k, s + 2), 1, 28)
        if s == 6:
            spread(fill, q_dma_items(k, 0, True, qtok), 1, 20)
        if s == 7:
            spread(fill, q_xn_items(k, 0, qtok) + q_xn_items(k, 1, qtok), 0, 20)
        emit_interleaved(k, mf_step(2 * s + 1), fill, tok)
        if s < 6: st_tok[s + 2] = k.last_vm()
    return qtok

XN = 16
QW = [112, 116, 120, 124, 96, 100, 104, 108]
KPK, VPK = 64, 128
ACCQ, ACCH = 160, 224
QF, HPK = 16, 48

def q_dma_items(k, s, ffn, tok):
    slot = QSLOT[s % 3]
    def f0():
        k.e('s_mov_b32 s%d, 0x%x' % (sB, s * 64 * 8192))
        dma(k, vWD, SWQ, 's%d' % sB, sW1056, slot)
    def f1():
        k.e('s_mov_b32 s%d, 0x%x' % (sC, (s * 64 + 32) * 8192))
        tok[('dq', s)] = dma(k, vWD, SWQ, 's%d' % sC, sW1056, slot + 8448)
    def f2():
        k.e('s_mov_b32 s%d, 0x%x' % (sA, s * 64 * 3456))
        tok[('dq', s)] = dma(k, vW1D, SW1, 's%d' % sA, sW1056, slot + 16896)
    return [f0, f1, f2] if ffn else [f0, f1]

def q_xn_items(k, s, tok):
    it = []
    for j in range(4):
        def f(j=j):
            if j == 0: k.e('s_add_u32 s%d, s%d, %d' % (sT2, sXN, s * 4096))
            tok[('x', 2 * s + (j >> 1), j & 1)] = k.vm('buffer_load_dwordx4 %s, v%d, %s, s%d offen offset:%d sc1' % (R(XN + (s % 3) * 16 + j * 4), vL16, S(SWS), sT2, j * 1024))
        it.append(f)
    return it

def kv_pack(k):
    k.e('s_nop 7')
    for kb in range(8):
        for db in range(2):
            a = ACCK + (kb * 2 + db) * 4
            k.e('v_cvt_pk_bf16_f32 v%d, v%d, v%d' % (KPK + kb * 4 + db * 2, a, a + 1)); k.e('v_cvt_pk_bf16_f32 v%d, v%d, v%d' % (KPK + kb * 4 + db * 2 + 1, a + 2, a + 3))
    for j in range(4):
        for db in range(2):
            for hh in range(2):
                a = ACCV + ((2 * j + hh) * 2 + db) * 4
                d = VPK + (j * 2 + db) * 4 + hh * 2
                k.e('v_cvt_pk_bf16_f32 v%d, v%d, v%d' % (d, a, a + 1)); k.e('v_cvt_pk_bf16_f32 v%d, v%d, v%d' % (d + 1, a + 2, a + 3))

def kv_store_items(k, tok):
    it = []
    for i in range(8):
        def fk(i=i):
            k.e('s_add_u32 s%d, s%d, %d' % (sT, sKst, i * 4096))
            tok['kvst'] = k.vm('buffer_store_dwordx4 %s, v%d, %s, s%d offen sc1' % (R(KPK + i * 4), vL16, S(SWS), sT))
        def fv(i=i):
            k.e('s_add_u32 s%d, s%d, %d' % (sT, sVst, (i >> 1) * 8192))
            tok['kvst'] = k.vm('buffer_store_dwordx4 %s, v%d, %s, s%d offen offset:%d sc1' % (R(VPK + i * 4), vL16, S(SWS), sT, (i & 1) * 1024))
        it += [fk, fv]
    return it

def phase_q(k, opt, tok, ffn, hooks):
    nf = 12 if ffn else 8
    AH = 5
    frags = [(t, c) for t in range(20) for c in range(nf)]
    def read(n):
        t, c = frags[n]; s, ks = t >> 1, t & 1
        slot = QSLOT[s % 3]; bi = 1 if slot == QA else 0; rel = 0 if slot != QB else QB - QC
        r = QW[n % 8]
        if c < 8: a, off = vWQR[bi], rel + ks * 8448 + c * 32
        else: a, off = vW1R[bi], rel + ks * 4224 + (c - 8) * 32
        k.ds('ds_read_b64_tr_b16 %s, v%d offset:%d' % (R(r, 2), a, off))
        tok[('f', n)] = k.ds('ds_read_b64_tr_b16 %s, v%d offset:%d' % (R(r + 2, 2), a, off + 256))
    k.wait(vm=tok[('dq', 0)])
    k.e('s_barrier')
    for f in q_dma_items(k, 1, ffn, tok): f()
    for n in range(4): read(n)
    kv_pack(k)
    read(4)
    stores = kv_store_items(k, tok)
    per = 2 * nf
    for s in range(10):
        extra = {}
        ex = []
        if s + 2 < 10: ex += q_xn_items(k, s + 2, tok)
        ex += stores[opt.stper * s: opt.stper * (s + 1)]
        spread(extra, ex, 1, per - AH - 3)
        for i in range(per):
            n = s * per + i
            t, c = frags[n]
            k.wait(ds=tok[('f', n)])
            if c == 0: k.wait(vm=tok[('x', t, 1)])
            for qb in range(2):
                D = (ACCQ + (c * 2 + qb) * 4) if c < 8 else (ACCH + ((c - 8) * 2 + qb) * 4)
                k.e(mfma(D, QW[n % 8], XN + (s % 3) * 16 + (t & 1) * 8 + qb * 4, '0' if t == 0 else D))
                if qb == 0:
                    if i == per - AH and s < 9:
                        hooks('preB', s)
                        k.wait(vm=tok[('dq', s + 1)])
                        k.e('s_barrier')
                        hooks('postB', s)
                    if n + AH < len(frags): read(n + AH)
            for f in extra.get(i, []): f()
            if s + 2 < 10 and i >= per - AH:
                items = q_dma_items(k, s + 2, ffn, tok)
                j = i - (per - AH)
                if j < len(items): items[j]()
            hooks('slot', s, i)
    k.e('s_nop 7')
    if ffn:
        for qb in range(2):
            for b in range(2):
                for hh in range(2):
                    a = ACCH + ((2 * b + hh) * 2 + qb) * 4; d = HPK + (b * 2 + qb) * 4 + hh * 2
                    k.e('v_cvt_pk_bf16_f32 v%d, v%d, v%d' % (d, a, a + 1)); k.e('v_cvt_pk_bf16_f32 v%d, v%d, v%d' % (d + 1, a + 2, a + 3))
        for i in range(16): k.e('v_pk_max_i16 v%d, v%d, 0' % (HPK + i, HPK + i))
        for i in range(4):
            tok['hst'] = k.vm('buffer_store_dwordx4 %s, v%d, %s, s%d offen offset:%d sc1' % (R(HPK + i * 4), vL16, S(SWS), sHst, i * 1024))
    for i in range(32): k.e('v_pk_mul_f32 %s, %s, s[%d:%d]' % (R(ACCQ + 2 * i, 2), R(ACCQ + 2 * i, 2), sSc, sSc + 1))
    for qb in range(2):
        for b in range(4):
            for hh in range(2):
                a = ACCQ + ((2 * b + hh) * 2 + qb) * 4; d = QF + (qb * 4 + b) * 4 + hh * 2
                k.e('v_cvt_pk_bf16_f32 v%d, v%d, v%d' % (d, a, a + 1)); k.e('v_cvt_pk_bf16_f32 v%d, v%d, v%d' % (d + 1, a + 2, a + 3))

def build(opt):
    k = KB()
    rest = prologue(k, opt)
    qtok = phase_ln_kv(k, opt, rest)
    stamp(k, opt, 2)
    import attn
    def hooks(kind, s, i=None):
        if kind == 'postB' and s == opt.h2sig:
            k.e('s_lshl_b32 s%d, s%d, 7' % (sT, sH))
            signal(k, SWS, 's%d' % sT, vT0)
        if kind == 'preB' and s == 8:
            lab = k.newlab('h2')
            k.e('s_cmp_lg_u32 s%d, 4' % sW); k.e('s_cbranch_scc1 %s' % lab)
            k.e('s_lshl_b32 s%d, s%d, 7' % (sT2, sH))
            poll(k, SWS, 's%d' % sT2, '64', vT0)
            k.label(lab)
        if kind == 'postB' and s == 8:
            attn.ld_setup(k)
        if kind == 'slot' and s == 9 and i in (0, 2, 4, 6, 8, 10):
            lab = k.newlab('kvp')
            k.e('s_cmp_lt_u32 s%d, 4' % sW); k.e('s_cbranch_scc1 %s' % lab)
            for f in attn.ld_group(k, (i >> 1) & 1, i == 2): f()
            k.label(lab)
    st = (k.vm_issued, k.vm_done, k.ds_issued, k.ds_done)
    k.e('s_cmp_ge_u32 s%d, 27' % sH); k.e('s_cbranch_scc1 L_q_noffn')
    phase_q(k, opt, dict(qtok), True, hooks)
    k.e('s_branch L_q_done')
    k.label('L_q_noffn')
    k.vm_issued, k.vm_done, k.ds_issued, k.ds_done = st
    phase_q(k, opt, dict(qtok), False, hooks)
    k.label('L_q_done')
    stamp(k, opt, 3)
    if opt.dumpq:
        k.e('s_lshl_b32 s%d, s2, 3' % sT); k.e('s_add_u32 s%d, s%d, s%d' % (sT, sT, sW)); k.e('s_lshl_b32 s%d, s%d, 13' % (sT, sT))
        k.e('s_add_u32 s%d, s%d, 0x%x' % (sT, sT, WS_DBGQ)); k.e('s_add_u32 s%d, s%d, 4096' % (sT2, sT))
        for i in range(8):
            k.e('buffer_store_dwordx4 %s, v%d, %s, s%d offen offset:%d' % (R(QF + i * 4), vL16, S(SWS), sT if i < 4 else sT2, (i & 3) * 1024))
    if opt.stop != 'q':
        attn.phase_attn_p3(k, opt)
    k.e('s_waitcnt vmcnt(0)')
    k.label('L_exit')
    k.e('s_endpgm')
    errs = check_hazards(k.lines)
    for e in errs: print('HAZARD', e, file=sys.stderr)
    hdr = open(os.path.join(os.path.dirname(os.path.abspath(__file__)), 'header.txt')).read()
    t = hdr + '; @launch grid=(256,1,1) block=(512,1,1) lds=%d\n' % LDS_BYTES
    t += '.amdgcn_target "amdgcn-amd-amdhsa--gfx950"\n.text\n.globl %s_kernel\n.p2align 8\n.type %s_kernel,@function\n%s_kernel:\n' % (NAME, NAME, NAME)
    t += k.text()
    t += '''.section .rodata,"a"
.p2align 6
.amdhsa_kernel %s_kernel
  .amdhsa_next_free_vgpr 256
  .amdhsa_next_free_sgpr 102
  .amdhsa_accum_offset 256
  .amdhsa_group_segment_fixed_size 0
  .amdhsa_kernarg_size 96
  .amdhsa_user_sgpr_count 2
  .amdhsa_user_sgpr_kernarg_segment_ptr 1
  .amdhsa_system_sgpr_workgroup_id_x 1
.end_amdhsa_kernel
''' % NAME
    return t, len(errs)

if __name__ == '__main__':
    opt = Opt()
    out = sys.argv[1]
    for a in sys.argv[2:]:
        kk, _, v = a.partition('=')
        setattr(opt, kk, (int(v) if v.isdigit() else v) if v else True)
    t, ne = build(opt)
    open(out, 'w').write(t)
    print('wrote', out, len(t.splitlines()), 'lines', ne, 'hazards')
```

```python
from kb import *
import build as B
from build import *

sM, sRem, sLast, sKp, sVp, sLd, sSafe, sDr, sCtx, sFl = 67, 68, 69, 70, 71, 72, 73, 74, 75, 76
sK0, sV0 = 77, 78
sNF = 63
PF = [48, 56]; RING = 64; SB = [96, 112]; CB = 128; LACC = 144; ONES = 152; TE = 156; OA = 160
vRd, vD, vNinf = 13, 14, 224
OPK = 224
VOTE = 132128
AH = 6

INLOOP = [False]; OPT = [None]
def ld_setup(k):
    k.e('s_mul_i32 s%d, s%d, 0x%x' % (sK0, sH, 2 * KVS)); k.e('s_add_u32 s%d, s%d, 0x%x' % (sK0, sK0, WS_KV))
    k.e('s_and_b32 s%d, s%d, 3' % (sT, sW)); k.e('s_lshl_b32 s%d, s%d, 12' % (sT, sT))
    k.e('s_add_u32 s%d, s%d, s%d' % (sK0, sK0, sT))
    k.e('s_add_u32 s%d, s%d, 0x%x' % (sVp, sK0, KVS - 8192))
    k.e('s_add_u32 s%d, s%d, 8192' % (sKp, sK0))
    k.e('s_mov_b32 s%d, s%d' % (sLd, sT))
    k.e('s_cmp_lt_u32 s%d, 8192' % sT); k.e('s_cselect_b32 s%d, s%d, s%d' % (sV0, sK0, sVp))

def ld_group(k, which, first=False):
    it = []
    for j in range(4):
        def f(j=j):
            if j == 0:
                k.e('s_add_u32 m0, s%d, %d' % (sLd, which * 16384)); k.e('s_nop 0')
            so = sKp if which == 0 else (sV0 if first else sVp)
            if not (INLOOP[0] and 'atd' in OPT[0].abl):
                k.e('buffer_load_dwordx4 v%d, %s, s%d offen offset:%d %s lds' % (vL16, S(SWS), so, j * 1024, OPT[0].kvpol))
            if which == 1 and j == 3:
                k.e('s_add_u32 s%d, s%d, 16384' % (sKp, sKp)); k.e('s_add_u32 s%d, s%d, 16384' % (sVp, sVp))
                k.e('s_add_u32 s%d, s%d, 32768' % (sLd, sLd)); k.e('s_and_b32 s%d, s%d, 0x1ffff' % (sLd, sLd))
        it.append(f)
    return it

def ld_stage(k, first=False):
    for f in ld_group(k, 0) + ld_group(k, 1, first): f()

def xmax(k, v, t):
    k.e('v_mov_b32 v%d, v%d' % (t, v)); k.e('s_nop 1')
    k.e('v_permlane16_swap_b32 v%d, v%d' % (v, t)); k.e('v_max_f32 v%d, v%d, v%d' % (v, v, t))
    k.e('v_mov_b32 v%d, v%d' % (t, v)); k.e('s_nop 1')
    k.e('v_permlane32_swap_b32 v%d, v%d' % (v, t)); k.e('v_max_f32 v%d, v%d, v%d' % (v, v, t))

def rowmax(k, Sb, qb, d, t):
    r = [Sb + 8 * kb + 4 * qb + i for kb in range(2) for i in range(4)]
    k.e('v_max3_f32 v%d, v%d, v%d, v%d' % (d, r[0], r[1], r[2]))
    k.e('v_max3_f32 v%d, v%d, v%d, v%d' % (d, d, r[3], r[4]))
    k.e('v_max3_f32 v%d, v%d, v%d, v%d' % (d, d, r[5], r[6]))
    k.e('v_max_f32 v%d, v%d, v%d' % (d, d, r[7]))
    xmax(k, d, t)

def build_mask(k):
    for r in range(4):
        k.e('v_cmp_le_i32 vcc, %d, v%d' % (r, vD)); k.e('v_mov_b32 v%d, v%d' % (CB + 8 + r, vNinf)); k.e('s_nop 0')
        k.e('v_cndmask_b32 v%d, v%d, v%d, vcc' % (CB + r, vNinf, CB + r))
        k.e('v_cndmask_b32 v%d, v%d, v%d, vcc' % (CB + 12 + r, vNinf, CB + 12 + r))
    k.e('s_nop 1')

def safe_update(k, par):
    Sn = SB[par ^ 1]; P = PF[par]
    k.e('s_nop 7')
    for qb in range(2):
        d, t, f = TE, TE + 1, TE + 2
        rowmax(k, Sn, qb, d, t)
        k.e('v_max_f32 v%d, 0, v%d' % (d, d))
        k.e('v_exp_f32 v%d, -v%d' % (f, d))
        for kb in range(2):
            for i in range(4):
                k.e('v_sub_f32 v%d, v%d, v%d' % (Sn + 8 * kb + 4 * qb + i, Sn + 8 * kb + 4 * qb + i, d))
                k.e('v_sub_f32 v%d, v%d, v%d' % (CB + 8 * kb + 4 * qb + i, CB + 8 * kb + 4 * qb + i, d))
        for db in range(8):
            for i in range(4): k.e('v_mul_f32 v%d, v%d, v%d' % (OA + db * 8 + qb * 4 + i, OA + db * 8 + qb * 4 + i, f))
        for i in range(4):
            k.e('v_mul_f32 v%d, v%d, v%d' % (LACC + qb * 4 + i, LACC + qb * 4 + i, f))
            p = P + qb * 4 + i
            k.e('v_lshlrev_b32 v%d, 16, v%d' % (d + 3, p)); k.e('v_and_b32 v%d, 0xffff0000, v%d' % (t, p))
            k.e('v_mul_f32 v%d, v%d, v%d' % (d + 3, d + 3, f)); k.e('v_mul_f32 v%d, v%d, v%d' % (t, t, f))
            k.e('v_cvt_pk_bf16_f32 v%d, v%d, v%d' % (p, d + 3, t))
    k.e('s_nop 1')

BODY_OFF = [0 + 1024 * i for i in range(8)] + [16384 + 1024 * i for i in range(8)] + [8192 + 1024 * i for i in range(8)] + [24576 + 1024 * i for i in range(8)]
def rd(k, n, off):
    k.e('ds_read_b128 %s, v%d offset:%d' % (R(RING + 4 * (n % 8)), vRd, off))
def next_stage_addr(k):
    k.e('v_add_u32 v%d, 0x8000, v%d' % (vRd, vRd)); k.e('v_and_b32 v%d, 0x1ffff, v%d' % (vRd, vRd))
def sm_order(Sc):
    return [Sc + 8 * kb + 4 * qb + r for qb in range(2) for kb in range(2) for r in range(4)]
def lm(P, qb):
    return mfma(LACC + 4 * qb, ONES, P + 4 * qb, LACC + 4 * qb)

def bar(k, loader):
    if loader: k.e('s_waitcnt vmcnt(8)')
    k.e('s_barrier')

def step(k, par, loader, fast=None):
    Sc, Sn, Pc, Pp = SB[par], SB[par ^ 1], PF[par], PF[par ^ 1]
    order = sm_order(Sc)
    dm = ld_group(k, 0) + ld_group(k, 1)
    dslot = {10: dm[0:1], 11: dm[1:3], 12: dm[3:4], 13: dm[4:6], 14: dm[6:7], 15: dm[7:8]}
    for g in range(16):
        n = 16 * par + g; fr = RING + 4 * (n % 8)
        if g % 2 == 0: k.e('s_waitcnt lgkmcnt(%d)' % (AH - 2))
        ms = []
        for qb in range(2):
            if g < 8:
                kb, ks = g // 4, g % 4; D = Sn + 8 * kb + 4 * qb
                ms.append(mfma(D, fr, QF + (qb * 4 + ks) * 4, (CB + 8 * kb + 4 * qb) if ks == 0 else D))
            else:
                D = OA + (g - 8) * 8 + 4 * qb
                ms.append(mfma(D, fr, Pp + 4 * qb, D))
        k.e(ms[0])
        k.e('v_exp_f32 v%d, v%d' % (TE + g % 4, order[g]))
        k.e(ms[1])
        if par == 1 and g == 16 - AH:
            if fast is None: next_stage_addr(k)
            bar(k, loader)
        so = 0 if fast is None else (32768 * fast if n + AH < 32 else 32768 * (fast ^ 1))
        rd(k, n + AH, BODY_OFF[(n + AH) % 32] + so)
        if fast == 1 and n + AH == 31: k.e('v_xor_b32 v%d, 0x10000, v%d' % (vRd, vRd))
        if g % 2 == 0 and g >= 2:
            k.e('v_cvt_pk_bf16_f32 v%d, v%d, v%d' % (Pc + (g - 2) // 2, TE + (g - 2) % 4, TE + (g - 1) % 4))
        if g == 15: k.e('v_cvt_pk_bf16_f32 v%d, v%d, v%d' % (Pc + 7, TE + 2, TE + 3))
        if g == 11: k.e(lm(Pp, 0))
        if g == 15: k.e(lm(Pp, 1))
        if loader and par == 1:
            for f in dslot.get(g, []): f()

def tail(k, par, loader):
    Sc, Pc, Pp = SB[par], PF[par], PF[par ^ 1]
    order = sm_order(Sc)
    k.e('s_waitcnt lgkmcnt(0)')
    o1 = 16384 if par == 0 else 24576
    for i in range(8): rd(k, i, o1 + 1024 * i)
    for g in range(16):
        k.e('v_exp_f32 v%d, v%d' % (TE + g % 4, order[g]))
        if g % 2 == 0 and g >= 2:
            k.e('v_cvt_pk_bf16_f32 v%d, v%d, v%d' % (Pc + (g - 2) // 2, TE + (g - 2) % 4, TE + (g - 1) % 4))
    k.e(lm(Pp, 0))
    k.e('v_cvt_pk_bf16_f32 v%d, v%d, v%d' % (Pc + 7, TE + 2, TE + 3))
    k.e(lm(Pp, 1))
    if par == 1:
        k.e('s_waitcnt lgkmcnt(0)')
        next_stage_addr(k)
        bar(k, loader)
    o2 = 24576 if par == 0 else 16384
    dm = ld_group(k, 0) + ld_group(k, 1)
    for i in range(8):
        if par == 0: k.e('s_waitcnt lgkmcnt(7)')
        for qb in range(2):
            D = OA + i * 8 + 4 * qb; k.e(mfma(D, RING + 4 * i, Pp + 4 * qb, D))
        rd(k, i, o2 + 1024 * i)
        if loader and par == 1: dm[i]()
    k.e(lm(Pc, 0)); k.e(lm(Pc, 1))
    for i in range(8):
        k.e('s_waitcnt lgkmcnt(%d)' % (7 - i))
        for qb in range(2):
            D = OA + i * 8 + 4 * qb; k.e(mfma(D, RING + 4 * i, Pc + 4 * qb, D))

def vote(k):
    lab = k.newlab('vote')
    k.e('s_nop 7')
    k.e('v_add_f32 v%d, v%d, v%d' % (TE, LACC, LACC + 4))
    k.e('v_cmp_nge_f32 vcc, 0x4e800000, v%d' % TE)
    k.e('s_nop 4')
    k.e('s_cbranch_vccz %s' % lab)
    k.e('v_mov_b32 v%d, %d' % (TE, VOTE)); k.e('v_mov_b32 v%d, 1' % (TE + 1))
    k.e('ds_write_b32 v%d, v%d' % (TE, TE + 1)); k.e('s_waitcnt lgkmcnt(0)')
    k.label(lab)

def ctx_epilogue(k):
    k.e('v_rcp_f32 v%d, v%d' % (TE, LACC)); k.e('v_rcp_f32 v%d, v%d' % (TE + 2, LACC + 4)); k.e('s_nop 0')
    for b in range(4):
        for qb in range(2):
            for hh in range(2):
                a = OA + (2 * b + hh) * 8 + 4 * qb
                for e in range(2):
                    k.e('v_pk_mul_f32 %s, %s, %s op_sel_hi:[1,0]' % (R(a + 2 * e, 2), R(a + 2 * e, 2), R(TE + 2 * qb, 2)))
            for hh in range(2):
                a = OA + (2 * b + hh) * 8 + 4 * qb; d = OPK + (b * 2 + qb) * 4 + 2 * hh
                k.e('v_cvt_pk_bf16_f32 v%d, v%d, v%d' % (d, a, a + 1)); k.e('v_cvt_pk_bf16_f32 v%d, v%d, v%d' % (d + 1, a + 2, a + 3))
            i = b * 2 + qb
            k.e('buffer_store_dwordx4 %s, v%d, %s, s%d offen offset:%d sc1' % (R(OPK + i * 4), vL16, S(SWS), sCtx if i < 4 else sT2, (i & 3) * 1024))
            if i == 0: k.e('s_add_u32 s%d, s%d, 4096' % (sT2, sCtx))

SRP = 88
RU = 4; NRPK = -(-1456 // RU)
def repack(k, it):
    RB = 48; RO = 128
    sU = 93
    k.e('s_sub_u32 s%d, s2, %d' % (sU, 32 * OPT[0].rp0))
    k.e('s_min_u32 s%d, s%d, 0x1000' % (sU, sU))
    k.e('s_lshl_b32 s%d, s%d, 2' % (sU, sU)); k.e('s_and_b32 s%d, s%d, 3' % (sT, sW)); k.e('s_add_u32 s%d, s%d, s%d' % (sU, sU, sT))
    k.e('s_cmp_ge_u32 s%d, %d' % (sU, NRPK)); k.e('s_cbranch_scc1 L_norepack')
    k.e('s_cmp_lg_u32 s%d, 0' % sSafe); k.e('s_cbranch_scc1 L_norepack')
    k.e('s_mul_i32 s%d, s%d, %d' % (sU, sU, RU))
    for j in range(5):
        k.e('v_add_u32 v%d, %d, v0' % (TE, 64 * j))
        k.e('v_mul_u32_u24 v%d, 6554, v%d' % (TE + 1, TE)); k.e('v_lshrrev_b32 v%d, 16, v%d' % (TE + 1, TE + 1))
        k.e('v_mul_u32_u24 v%d, 1120, v%d' % (TE + 1, TE + 1)); k.e('v_lshl_add_u32 v%d, v%d, 4, v%d' % (RO + j, TE, TE + 1))
    st = dict(n=24, d=[7, 15], done=0)
    def itx():
        t = st['d'].pop(0)
        it(st['n'] - 1 - t); st['done'] = t + 1
        st['n'] += 8; st['d'].append(st['n'] - 1)
    k.e('s_mov_b32 s%d, 0x20000' % (SRP + 3))
    ldtok = []
    for e in range(RU):
        if e % OPT[0].rpl == 0: itx()
        k.e('s_add_u32 s%d, s%d, %d' % (sT, sU, e)); k.e('s_and_b32 s%d, s%d, 7' % (sT2, sT)); k.e('s_lshr_b32 s%d, s%d, 3' % (sT, sT))
        k.e('s_mul_i32 s%d, s%d, 160' % (sT2, sT2))
        k.e('s_cmp_lt_u32 s%d, 54' % sT)
        for i in range(3): k.e('s_cselect_b32 s%d, s%d, s%d' % (SRP + i, SW2 + i, SWO + i))
        k.e('s_cselect_b32 s%d, 0, 54' % sA); k.e('s_sub_u32 s%d, s%d, s%d' % (sT, sT, sA))
        k.e('s_mul_i32 s%d, s%d, %d' % (sT, sT, 32 * 1280)); k.e('s_add_u32 s%d, s%d, s%d' % (sT, sT, sT2))
        for j in range(5):
            k.e('buffer_load_dwordx4 %s, v%d, %s, s%d offen' % (R(RB + (e * 5 + j) * 4), RO + j, S(SRP), sT))
            ldtok.append(st['n']); st['n'] += 1
    c = 0
    for e in range(RU):
        for j in range(5):
            while ldtok[e * 5 + j] >= st['done'] or c >= OPT[0].rps:
                itx(); c = 0
            if j == 0:
                k.e('s_add_u32 s%d, s%d, %d' % (sB, sU, e)); k.e('s_and_b32 s%d, s%d, 7' % (sC, sB)); k.e('s_lshr_b32 s%d, s%d, 3' % (sB, sB))
                k.e('s_mul_i32 s%d, s%d, 0x%x' % (sC, sC, WP_CS)); k.e('s_mul_i32 s%d, s%d, 5120' % (sB, sB)); k.e('s_add_u32 s%d, s%d, s%d' % (sB, sB, sC))
                k.e('s_add_u32 s%d, s%d, 0x%x' % (sB, sB, WS_WP)); k.e('s_add_u32 s%d, s%d, 4096' % (sC, sB))
            k.e('buffer_store_dwordx4 %s, v%d, %s, s%d offen offset:%d sc1' % (R(RB + (e * 5 + j) * 4), vL16, S(SWS), sB if j < 4 else sC, (j & 3) * 1024))
            last = st['n']; st['n'] += 1; c += 1
    while last >= st['done']: itx()
    nit = (st['n'] - 24 - 10 * RU) // 8
    pmax = OPT[0].rp0 + (NRPK - 1) // 128
    assert 30 - 4 * pmax - 1 - nit >= 2, (nit, pmax)
    k.e('s_mov_b32 s%d, %d' % (sT, WS_FLAGS + F_H5 * 128))
    signal(k, SWS, 's%d' % sT, vT0)
    k.e('s_branch L_S_drain')
    k.label('L_norepack')

def phase_attn(k, opt, p3_pre, p3_h3_issue, p3_h3_check):
    INLOOP[0] = True
    k.e('s_mov_b32 s%d, 0' % sSafe)
    k.e('s_mov_b32 s%d, s%d' % (sLast, sRB))
    k.e('s_mul_i32 s%d, s%d, 0x%x' % (sCtx, sRB, CTX_BS)); k.e('s_lshl_b32 s%d, s%d, 13' % (sT, sH)); k.e('s_add_u32 s%d, s%d, s%d' % (sCtx, sCtx, sT))
    k.e('s_add_u32 s%d, s%d, 0x%x' % (sCtx, sCtx, WS_CTX))
    k.e('v_lshrrev_b32 v%d, 4, v0' % vD); k.e('v_lshlrev_b32 v%d, 2, v%d' % (vD, vD)); k.e('v_and_b32 v%d, 15, v0' % vT0); k.e('v_sub_u32 v%d, v%d, v%d' % (vD, vT0, vD))
    k.e('v_mov_b32 v%d, %d' % (vT0, VOTE)); k.e('ds_write_b32 v%d, v%d' % (vT0, vZ))
    p3_setup(k)
    k.label('L_att_start')
    k.e('v_mov_b32 v%d, 0xff800000' % vNinf)
    k.e('v_mov_b32 v%d, v%d' % (vRd, vL16))
    for i in range(16): k.e('v_mov_b32 v%d, 0' % (CB + i))
    for i in range(8): k.e('v_mov_b32 v%d, 0' % (LACC + i))
    for i in range(4): k.e('v_mov_b32 v%d, 0x3f803f80' % (ONES + i))
    for i in range(32): k.e('v_mov_b64 %s, 0' % R(OA + 2 * i, 2))
    k.e('s_lshl_b32 s%d, s%d, 1' % (sT, sP)); k.e('s_sub_u32 s%d, 32, s%d' % (sDr, sT))
    k.e('s_add_u32 s%d, s%d, 1' % (sT, sLast)); k.e('s_lshr_b32 s%d, s%d, 1' % (sT, sT)); k.e('s_sub_u32 s%d, s%d, s%d' % (sDr, sDr, sT))
    lab = k.newlab('m0')
    k.e('s_cmp_lg_u32 s%d, 0' % sLast); k.e('s_cbranch_scc1 %s' % lab)
    build_mask(k)
    k.label(lab)
    k.e('s_waitcnt vmcnt(16) lgkmcnt(0)')
    k.e('s_barrier')
    stamp(k, opt, 4)
    for i in range(8): rd(k, i, 16384 + 1024 * i)
    for i in range(8): k.e('v_mov_b32 v%d, 0' % (PF[1] + i))
    for g in range(8):
        k.e('s_waitcnt lgkmcnt(%d)' % (7 if g < 7 else 6))
        kb, ks = g // 4, g % 4
        for qb in range(2):
            D = SB[0] + 8 * kb + 4 * qb
            k.e(mfma(D, RING + 4 * g, QF + (qb * 4 + ks) * 4, (CB + 8 * kb + 4 * qb) if ks == 0 else D))
        if g < AH: rd(k, g, BODY_OFF[g])
    k.e('s_nop 7')
    for qb in range(2):
        rowmax(k, SB[0], qb, TE + qb, TE + 2)
        for kb in range(2):
            for i in range(4):
                k.e('v_sub_f32 v%d, v%d, v%d' % (SB[0] + 8 * kb + 4 * qb + i, SB[0] + 8 * kb + 4 * qb + i, TE + qb))
                k.e('v_sub_f32 v%d, 0, v%d' % (CB + 8 * kb + 4 * qb + i, TE + qb))
    lab = k.newlab('h3')
    k.e('s_cmp_ge_u32 s%d, 27' % sH); k.e('s_cbranch_scc1 %s' % lab)
    k.e('s_cmp_lg_u32 s%d, 0' % sSafe); k.e('s_cbranch_scc1 %s' % lab)
    k.e('s_lshl_b32 s%d, s%d, 7' % (sT, sRB)); k.e('s_add_u32 s%d, s%d, %d' % (sT, sT, WS_FLAGS + F_H3 * 128))
    k.e('s_waitcnt vmcnt(0)')
    signal(k, SWS, 's%d' % sT, vT0)
    k.label(lab)
    if opt.pf:
        lab = k.newlab('pf3')
        k.e('s_cmp_ge_u32 s%d, 4' % sW); k.e('s_cbranch_scc1 %s' % lab)
        k.e('s_lshl_b32 s%d, s2, 2' % sT); k.e('s_add_u32 s%d, s%d, s%d' % (sT, sT, sW))
        k.e('s_mul_i32 s%d, s%d, 5120' % (sT2, sT)); k.e('v_lshlrev_b32 v%d, 6, v0' % vT0)
        k.e('buffer_load_dword v8, v%d, %s, s%d offen' % (vT0, S(SWO), sT2))
        k.e('s_mov_b32 exec_hi, 0'); k.e('s_mov_b32 exec_lo, 0xffff')
        k.e('s_add_u32 s%d, s%d, 4096' % (sT2, sT2))
        k.e('buffer_load_dword v8, v%d, %s, s%d offen' % (vT0, S(SWO), sT2))
        k.e('s_mov_b64 exec, -1')
        k.e('s_mul_i32 s%d, s%d, 2160' % (sT2, sT))
        k.e('buffer_load_dword v8, v%d, %s, s%d offen' % (vT0, S(SW2), sT2))
        k.label(lab)
    k.e('s_sub_u32 s%d, s%d, 1' % (sRem, sLast)); k.e('s_mov_b32 s%d, 0' % sM); k.e('s_mov_b32 s%d, 0' % sNF)
    lab = k.newlab('ns')
    k.e('s_cmp_lg_u32 s%d, 0' % sSafe); k.e('s_cbranch_scc1 %s' % lab)
    k.e('s_cmp_lt_u32 s%d, 2' % sLast); k.e('s_cbranch_scc1 %s' % lab)
    k.e('s_mov_b32 s%d, 1' % sRem); k.e('s_sub_u32 s%d, s%d, 2' % (sM, sLast))
    k.e('s_lshr_b32 s%d, s%d, 2' % (sNF, sM)); k.e('s_and_b32 s%d, s%d, 3' % (sM, sM))
    k.label(lab)
    lab = k.newlab('m1')
    k.e('s_cmp_lg_u32 s%d, 1' % sLast); k.e('s_cbranch_scc1 %s' % lab)
    build_mask(k)
    k.label(lab)
    stamp(k, opt, 9)
    k.e('s_cmp_ge_u32 s%d, 4' % sW); k.e('s_cbranch_scc1 L_S_entry')
    for v, loader in (('L', False), ('S', True)):
        if loader:
            k.label('L_S_entry')
            k.e('s_cmp_eq_u32 s%d, 0' % sLast); k.e('s_cbranch_scc1 L_S_tail0')
        k.e('s_sub_u32 s%d, s%d, 1' % (sNF, sNF)); k.e('s_cbranch_scc1 L_%s_loop' % v)
        k.e('.p2align 6')
        k.label('L_%s_fast' % v)
        for b in range(2):
            for par in range(2): step(k, par, loader, b)
        k.e('s_sub_u32 s%d, s%d, 1' % (sNF, sNF)); k.e('s_cbranch_scc0 L_%s_fast' % v)
        k.label('L_%s_loop' % v)
        for par in range(2):
            step(k, par, loader)
            k.e('s_sub_u32 s%d, s%d, 1' % (sM, sM))
            if par == 0:
                k.e('s_cbranch_scc1 L_%s_h0' % v); k.label('L_%s_c0' % v)
            else:
                k.e('s_cbranch_scc0 L_%s_loop' % v)
        for par in (1, 0):
            k.label('L_%s_h%d' % (v, par))
            lab = k.newlab('nsafe')
            k.e('s_cmp_eq_u32 s%d, 0' % sSafe); k.e('s_cbranch_scc1 %s' % lab)
            safe_update(k, par)
            k.label(lab)
            k.e('s_cmp_eq_u32 s%d, 0' % sRem); k.e('s_cbranch_scc1 L_%s_tail%d' % (v, par ^ 1))
            lab = k.newlab('nmask')
            k.e('s_cmp_lg_u32 s%d, 1' % sRem); k.e('s_cbranch_scc1 %s' % lab)
            build_mask(k)
            k.label(lab)
            k.e('s_sub_u32 s%d, s%d, 1' % (sRem, sRem)); k.e('s_mov_b32 s%d, 0' % sM)
            k.e('s_branch %s' % ('L_%s_c0' % v if par == 0 else 'L_%s_loop' % v))
        for par in range(2):
            k.label('L_%s_tail%d' % (v, par))
            stamp(k, opt, 10)
            if not loader: p3_h3_issue()
            tail(k, par, loader)
            if par == 0: k.e('s_branch L_%s_done' % v)
        k.label('L_%s_done' % v)
        vote(k)
        stamp(k, opt, 11)
        if not loader:
            lp = k.newlab('dr')
            k.e('s_cmp_eq_u32 s%d, 0' % sDr); k.e('s_cbranch_scc1 L_att_end')
            k.label(lp)
            k.e('s_barrier'); k.e('s_sub_u32 s%d, s%d, 1' % (sDr, sDr)); k.e('s_cmp_lg_u32 s%d, 0' % sDr); k.e('s_cbranch_scc1 %s' % lp)
            k.e('s_branch L_att_end')
        else:
            def it(n):
                lab = k.newlab('nd')
                k.e('s_waitcnt vmcnt(%d)' % n); k.e('s_barrier')
                k.e('s_cmp_le_u32 s%d, 2' % sDr); k.e('s_cbranch_scc1 %s' % lab)
                ld_stage(k)
                k.label(lab)
                k.e('s_sub_u32 s%d, s%d, 1' % (sDr, sDr))
            it(8)
            ctx_epilogue(k)
            repack(k, it)
            for _ in range(2):
                k.e('s_cmp_eq_u32 s%d, 1' % sDr); k.e('s_cbranch_scc1 L_S_final')
                it(16)
            k.label('L_S_drain')
            k.e('s_cmp_eq_u32 s%d, 1' % sDr); k.e('s_cbranch_scc1 L_S_final')
            it(8)
            k.e('s_branch L_S_drain')
            k.label('L_S_final')
            p3_h3_issue()
            k.e('s_mov_b32 s%d, %d' % (sT2, WS_FLAGS + F_H5 * 128))
            poll(k, SWS, 's%d' % sT2, str(NRPK), vT0)
            p3_h3_check()
            k.e('s_barrier')
            p3_pre()
            k.e('s_branch L_att_end2')
    k.label('L_att_end')
    p3_h3_check()
    k.label('L_att_end2')
    k.e('v_mov_b32 v%d, %d' % (vT0, VOTE))
    k.e('s_barrier')
    k.e('ds_read_b32 v%d, v%d' % (vT0, vT0))
    stamp(k, opt, 5)
    k.e('s_waitcnt lgkmcnt(0)')
    k.e('v_readfirstlane_b32 s%d, v%d' % (sT, vT0))
    k.e('s_cmp_gt_u32 s%d, s%d' % (sT, sSafe)); k.e('s_cbranch_scc0 L_att_ok')
    k.e('s_mov_b32 s%d, 1' % sSafe)
    k.e('s_waitcnt vmcnt(0)'); k.e('s_barrier')
    k.e('s_cmp_lt_u32 s%d, 4' % sW); k.e('s_cbranch_scc1 L_att_start')
    ld_setup(k); ld_stage(k, True); ld_stage(k); ld_stage(k)
    k.e('s_branch L_att_start')
    k.label('L_att_ok')

sRBP, sKH, sAh, sAc, sW2o, sWOo, sW1024, sH4, sKeep = 79, 80, 81, 82, 83, 84, 85, 86, 87
vPD = [2, 3, 9]; vPR = 10; vA = [11, 12]; vXo = 6; vPl = 7
AR = 48
PW = 16
PACC = 160
NSL = 8; WD = 6; AD = 4; NST = 23
def pslot(st): return ((st + 7) % NSL) * 20480

def p3_setup(k):
    k.e('s_and_b32 s%d, s2, 1' % sKH)
    k.e('s_bfe_u32 s%d, s2, 0x20001' % sT); k.e('s_lshl_b32 s%d, s%d, 2' % (sT, sT)); k.e('s_bfe_u32 s%d, s2, 0x20003' % sT2); k.e('s_add_u32 s%d, s%d, s%d' % (sT, sT, sT2))
    k.e('s_lshl_b32 s%d, s%d, 2' % (sRBP, sT)); k.e('s_and_b32 s%d, s%d, 3' % (sT, sW)); k.e('s_add_u32 s%d, s%d, s%d' % (sRBP, sRBP, sT))
    k.e('s_lshr_b32 s%d, s%d, 1' % (sT, sT)); k.e('s_cmp_eq_u32 s%d, s%d' % (sT, sKH)); k.e('s_cselect_b32 s%d, 1, 0' % sKeep)
    k.e('s_lshr_b32 s%d, s%d, 2' % (sT, sW))
    k.e('s_lshl_b32 s%d, s%d, 12' % (sT2, sT))
    k.e('s_mul_i32 s%d, s%d, 0x%x' % (sAh, sRBP, H_BS)); k.e('s_add_u32 s%d, s%d, s%d' % (sAh, sAh, sT2)); k.e('s_add_u32 s%d, s%d, 0x%x' % (sAh, sAh, WS_H))
    k.e('s_mul_i32 s%d, s%d, 0x%x' % (sAc, sRBP, CTX_BS)); k.e('s_add_u32 s%d, s%d, s%d' % (sAc, sAc, sT2)); k.e('s_add_u32 s%d, s%d, 0x%x' % (sAc, sAc, WS_CTX))
    k.e('s_mul_i32 s%d, s%d, %d' % (sT2, sKH, 26 * 2048)); k.e('s_add_u32 s%d, s%d, s%d' % (sAh, sAh, sT2))
    k.e('s_lshl_b32 s%d, s%d, 17' % (sT2, sKH)); k.e('s_add_u32 s%d, s%d, s%d' % (sAc, sAc, sT2))
    k.e('s_mul_i32 s%d, s%d, 3' % (sW1024, sW)); k.e('s_lshl_b32 s%d, s%d, 1' % (sT2, sW)); k.e('s_add_u32 s%d, s%d, 4' % (sT2, sT2))
    k.e('s_min_u32 s%d, s%d, s%d' % (sW1024, sW1024, sT2)); k.e('s_lshl_b32 s%d, s%d, 10' % (sW1024, sW1024))
    k.e('s_lshr_b32 s%d, s2, 5' % sT2); k.e('s_mul_i32 s%d, s%d, 0x%x' % (sW2o, sT2, WP_CS)); k.e('s_add_u32 s%d, s%d, s%d' % (sW2o, sW2o, sW1024))
    k.e('s_add_u32 s%d, s%d, 0x%x' % (sW2o, sW2o, WS_WP))
    k.e('s_mul_i32 s%d, s%d, %d' % (sT2, sKH, 64 * 5120)); k.e('s_add_u32 s%d, s%d, s%d' % (sWOo, sW2o, sT2)); k.e('s_add_u32 s%d, s%d, %d' % (sWOo, sWOo, 54 * 5120))
    k.e('s_mul_i32 s%d, s%d, %d' % (sT2, sKH, 26 * 5120)); k.e('s_add_u32 s%d, s%d, s%d' % (sW2o, sW2o, sT2))
    k.e('s_lshl_b32 s%d, s%d, 1' % (sH4, sRBP)); k.e('s_add_u32 s%d, s%d, s%d' % (sH4, sH4, sKH)); k.e('s_lshl_b32 s%d, s%d, 7' % (sH4, sH4))
    k.e('s_add_u32 s%d, s%d, %d' % (sH4, sH4, WS_FLAGS + F_H4 * 128))
    k.e('s_lshl_b32 s%d, s%d, 10' % (sT2, sT))
    k.e('v_add_u32 v%d, s%d, v%d' % (vA[0], sT2, vL16)); k.e('v_xor_b32 v%d, 0x400, v%d' % (vA[1], vA[0]))
    k.e('v_lshrrev_b32 v%d, 2, v0' % vPR); k.e('v_mul_u32_u24 v%d, 160, v%d' % (vPR, vPR))
    k.e('v_and_b32 v%d, 3, v0' % vT0); k.e('v_lshl_add_u32 v%d, v%d, 3, v%d' % (vPR, vT0, vPR))
    k.e('s_mul_i32 s%d, s%d, 10240' % (sT2, sT)); k.e('s_add_u32 s%d, s%d, %d' % (sT2, sT2, pslot(0))); k.e('v_add_u32 v%d, s%d, v%d' % (vPR, sT2, vPR))
    k.e('s_lshl_b32 s%d, s%d, 1' % (sT2, sRBP)); k.e('s_add_u32 s%d, s%d, s%d' % (sT2, sT2, sT)); k.e('s_lshl_b32 s%d, s%d, 4' % (sT2, sT2))
    k.e('v_and_b32 v%d, 15, v0' % vT0); k.e('v_add_u32 v%d, s%d, v%d' % (vT0, sT2, vT0)); k.e('v_mul_u32_u24 v%d, 1280, v%d' % (vXo, vT0))
    k.e('v_lshrrev_b32 v%d, 4, v0' % vT0); k.e('v_lshl_add_u32 v%d, v%d, 3, v%d' % (vXo, vT0, vXo))
    k.e('s_lshr_b32 s%d, s2, 5' % sT); k.e('s_mul_i32 s%d, s%d, 160' % (sT, sT)); k.e('v_add_u32 v%d, s%d, v%d' % (vXo, sT, vXo))

def p3_w_items(k, st, tok):
    base, rel = (sW2o, st) if st < 7 else (sWOo, st - 7)
    slot = pslot(st)
    if HACK & 1: rel = rel % 2
    def f0():
        k.e('s_add_u32 s%d, s%d, 0x%x' % (sA, base, rel * 20480))
        k.e('s_add_u32 m0, s%d, %d' % (sW1024, slot)); k.e('s_nop 0')
        tok[('pw0', st)] = k.vm('buffer_load_dwordx4 v%d, %s, s%d offen sc1 lds' % (vL16, S(SWS), sA))
    def f1():
        tok[('pw', st)] = k.vm('buffer_load_dwordx4 v%d, %s, s%d offen offset:1024 sc1 lds' % (vL16, S(SWS), sA))
    def f2():
        lab = k.newlab('w3')
        k.e('s_cmp_ge_u32 s%d, 4' % sW); k.e('s_cbranch_scc1 %s' % lab)
        k.e('buffer_load_dwordx4 v%d, %s, s%d offen offset:2048 sc1 lds' % (vL16, S(SWS), sA))
        k.label(lab)
    return [f0, f2, f1]

def p3_a_items(k, st, tok, counted=True):
    base, rel = (sAh, st) if st < 7 else (sAc, st - 7)
    if HACK & 2: rel = rel % 2
    it = []
    for j in range(4):
        def f(j=j):
            if j == 0: k.e('s_add_u32 s%d, s%d, %d' % (sB, base, rel * 8192))
            t = 'buffer_load_dwordx4 %s, v%d, %s, s%d offen offset:%d sc1' % (R(AR + (st % 5) * 16 + j * 4), vA[j & 1], S(SWS), sB, (j >> 1) * 2048)
            if counted: tok[('pa', st, j >> 1)] = k.vm(t)
            else: k.e(t)
        it.append(f)
    return it

def poll_issue(k, soff):
    k.e('buffer_load_dword v%d, v%d, %s, %s offen sc1' % (vPl, vZ, S(SWS), soff))
def poll_check(k, soff, target):
    lab = k.newlab('pok')
    k.e('v_readfirstlane_b32 s%d, v%d' % (sT, vPl))
    k.e('s_cmp_ge_u32 s%d, %d' % (sT, target)); k.e('s_cbranch_scc1 %s' % lab)
    poll(k, SWS, soff, str(target), vPl)
    k.label(lab)

HACK = 0
def phase_attn_p3(k, opt):
    global HACK
    HACK = opt.hack
    tok = {}
    def h3_issue():
        k.e('s_lshl_b32 s%d, s%d, 7' % (sFl, sRBP)); k.e('s_add_u32 s%d, s%d, %d' % (sFl, sFl, WS_FLAGS + F_H3 * 128))
        poll_issue(k, 's%d' % sFl)
    def h3_check():
        k.e('s_waitcnt vmcnt(0)')
        poll_check(k, 's%d' % sFl, 27)
    def pre():
        k.e('s_and_b32 s%d, s%d, 3' % (sT, sW)); k.e('s_mul_i32 s%d, s%d, 5120' % (sT, sT))
        k.e('s_sub_u32 s%d, s%d, s%d' % (sA, sW2o, sW1024)); k.e('s_add_u32 s%d, s%d, s%d' % (sA, sA, sT))
        k.e('s_add_u32 m0, s%d, %d' % (sT, pslot(0))); k.e('s_add_u32 s%d, s%d, 4096' % (sT2, sA))
        for j in range(4): k.e('buffer_load_dwordx4 v%d, %s, s%d offen offset:%d sc1 lds' % (vL16, S(SWS), sA, j * 1024))
        k.e('s_add_u32 m0, s%d, %d' % (sT, pslot(0) + 4096)); k.e('s_nop 0')
        k.e('buffer_load_dwordx4 v%d, %s, s%d offen sc1 lds' % (vL16, S(SWS), sT2))
        for st in range(AD):
            for f in p3_a_items(k, st, tok, False): f()
    if opt.only == 'p3':
        p3_setup(k)
        k.e('s_barrier')
        stamp(k, opt, 5)
        pre()
        k.e('s_branch L_pub2')
    else:
        phase_attn(k, opt, pre, h3_issue, h3_check)
    k.e('s_lshl_b32 s%d, s%d, 1' % (sFl, sRB)); k.e('s_lshr_b32 s%d, s%d, 4' % (sT, sH)); k.e('s_add_u32 s%d, s%d, s%d' % (sFl, sFl, sT))
    k.e('s_lshl_b32 s%d, s%d, 7' % (sFl, sFl)); k.e('s_add_u32 s%d, s%d, %d' % (sFl, sFl, WS_FLAGS + F_H4 * 128))
    k.e('s_cmp_ge_u32 s%d, 4' % sW); k.e('s_cbranch_scc1 L_pub')
    for f in p3_a_items(k, 0, tok, False): f()
    ctx_epilogue(k)
    for st in range(1, AD):
        for f in p3_a_items(k, st, tok, False): f()
    k.label('L_pub')
    k.label('L_pub2')
    k.vm_issued = k.vm_done = k.ds_issued = k.ds_done = 0
    for st in range(1, WD):
        for f in p3_w_items(k, st, tok): f()
    for st in range(AD): tok[('pa', st, 0)] = tok[('pa', st, 1)] = tok[('pw0', 1)]
    for i in range(20): k.e('v_mov_b64 %s, 0' % R(PACC + 2 * i, 2))
    AHP = 5
    frags = [(st, e, cb) for st in range(NST) for e in range(2) for cb in range(5)]
    cur = [0]
    def read(n):
        st, e, cb = frags[n]
        if e == 0 and cb == 0 and st > 0:
            d = pslot(st) - pslot(st - 1)
            k.e('v_add_u32 v%d, 0x%x, v%d' % (vPR, d & 0xffffffff, vPR))
        r = PW + 4 * (n % 8); off = e * 5120 + cb * 32
        if 'p3r' in opt.abl:
            tok[('pf', n)] = -1
            return
        k.ds('ds_read_b64_tr_b16 %s, v%d offset:%d' % (R(r, 2), vPR, off))
        tok[('pf', n)] = k.ds('ds_read_b64_tr_b16 %s, v%d offset:%d' % (R(r + 2, 2), vPR, off + 2560))
    k.wait(vm=tok[('pw0', 1)])
    k.e('s_barrier')
    if opt.only != 'p3': signal(k, SWS, 's%d' % sFl, vT0); k.vm_issued += 1
    stamp(k, opt, 6)
    for n in range(AHP): read(n)
    asched = {0: [4], 1: [5], 2: [6], 3: [], 4: [], 5: [7, 8, 9]}
    for st in range(6, NST): asched[st] = [st + AD] if st + AD < NST else []
    XR = 128
    for st in range(NST):
        extra = {}
        ex = []
        for a in asched[st]:
            if 'p3a' in opt.abl: tok[('pa', a, 0)] = tok[('pa', a, 1)] = tok[('pa', 0, 1)]
            else: ex += p3_a_items(k, a, tok)
        if st == NST - 3:
            for cb in range(5):
                ex.append(lambda cb=cb: tok.__setitem__('x', k.vm('buffer_load_dwordx2 %s, v%d, %s, 0 offen offset:%d' % (R(XR + 2 * cb, 2), vXo, S(SX), cb * 32))))
        spread(extra, ex, 0, 4)
        skip = None
        for i in range(10):
            n = st * 10 + i
            _, e, cb = frags[n]
            k.wait(ds=tok[('pf', n)])
            if cb == 0: k.wait(vm=tok[('pa', st, e)])
            for q in range(2):
                D = PACC + (cb * 2 + q) * 4
                A = AR + (st % 5) * 16 + e * 8 + q * 4
                if st == 0:
                    lab = k.newlab('sk')
                    if q == 0:
                        k.e('s_cmp_gt_u32 s%d, s%d' % (sKH, sW1024 + 0) if False else 's_lshr_b32 s%d, s%d, 2' % (sT, sW))
                        k.e('s_cmp_gt_u32 s%d, s%d' % (sKH, sT)); k.e('s_cbranch_scc1 %s' % lab)
                        k.e(mfma(D, PW + 4 * (n % 8), A, D)); k.e(mfma(D + 4, PW + 4 * (n % 8), A + 4, D + 4))
                        k.label(lab)
                elif 'p3m' not in opt.abl:
                    k.e(mfma(D, PW + 4 * (n % 8), A, D))
                if q == 0:
                    if i == 10 - AHP and st < NST - 1:
                        if st == 4:
                            k.wait(vm=tok['h4'])
                            if 'p3h' not in opt.abl: poll_check(k, 's%d' % sH4, 16)
                        k.wait(vm=tok[('pw', st + 1)])
                        if 'p3b' not in opt.abl: k.e('s_barrier')
                        if st == 3:
                            poll_issue(k, 's%d' % sH4); k.vm_issued += 1; tok['h4'] = k.last_vm()
                    if n + AHP < len(frags): read(n + AHP)
            for f in extra.get(i, []): f()
            if st + WD < NST and i >= 10 - AHP:
                items = p3_w_items(k, st + WD, tok)
                j = i - (10 - AHP)
                if 'p3d' in opt.abl: tok[('pw', st + WD)] = tok[('pw', 1)]
                elif j < len(items): items[j]()
    if opt.only == 'p3':
        k.e('s_barrier'); stamp(k, opt, 7); return
    stamp(k, opt, 7)
    k.e('s_mul_i32 s%d, s%d, 5120' % (sT, sW)); k.e('v_add_u32 v%d, s%d, v%d' % (vT0, sT, vL16))
    k.e('s_xor_b32 s%d, s%d, 4' % (sT2, sW)); k.e('s_mul_i32 s%d, s%d, 5120' % (sT2, sT2)); k.e('v_add_u32 v%d, s%d, v%d' % (vPl, sT2, vL16))
    k.e('s_nop 3')
    k.e('s_barrier')
    for cb in range(5): k.e('ds_write_b128 v%d, %s offset:%d' % (vT0, R(PACC + (cb * 2 + 1) * 4), cb * 1024))
    k.e('s_and_b32 s%d, s%d, 1' % (sT, sW)); k.e('s_lshl_b32 s%d, s%d, 1' % (sT, sT)); k.e('s_lshr_b32 s%d, s%d, 2' % (sT2, sW)); k.e('s_add_u32 s%d, s%d, s%d' % (sT, sT, sT2))
    k.e('s_xor_b32 s%d, s2, s%d' % (sT2, sKeep))
    k.e('s_lshl_b32 s%d, s%d, 7' % (sFl, sT2)); k.e('s_lshl_b32 s%d, s%d, 2' % (sA, sT)); k.e('s_add_u32 s%d, s%d, s%d' % (sFl, sFl, sA))
    k.e('s_add_u32 s%d, s%d, %d' % (sFl, sFl, WS_FLAGS + F_X5 * 128))
    k.e('s_mul_i32 s%d, s%d, 0x%x' % (sA, sT2, EX_BS)); k.e('s_mul_i32 s%d, s%d, 5120' % (sT, sT)); k.e('s_add_u32 s%d, s%d, s%d' % (sA, sA, sT))
    k.e('s_add_u32 s%d, s%d, 0x%x' % (sA, sA, WS_EX)); k.e('s_add_u32 s%d, s%d, 4096' % (sB, sA))
    k.e('s_waitcnt lgkmcnt(0)')
    k.e('s_barrier')
    RX = 16
    for cb in range(5): k.e('ds_read_b128 %s, v%d offset:%d' % (R(RX + cb * 4), vPl, cb * 1024))
    for cb in range(5):
        k.e('s_waitcnt lgkmcnt(%d)' % (4 - cb))
        for e in range(2):
            a = PACC + cb * 8 + 2 * e
            k.e('v_pk_add_f32 %s, %s, %s' % (R(a, 2), R(a, 2), R(RX + cb * 4 + 2 * e, 2)))
    k.e('s_cmp_lg_u32 s%d, 0' % sKeep); k.e('s_cbranch_scc1 L_keep')
    for cb in range(5):
        k.e('buffer_store_dwordx4 %s, v%d, %s, s%d offen offset:%d sc1' % (R(PACC + cb * 8), vL16, S(SWS), sA if cb < 4 else sB, (cb & 3) * 1024))
    k.e('v_mov_b32 v%d, 1' % vT0)
    k.e('s_waitcnt vmcnt(0)')
    k.e('s_mov_b64 exec, 1')
    k.e('buffer_store_dword v%d, v%d, %s, s%d offen sc1' % (vT0, vZ, S(SWS), sFl))
    k.e('s_branch L_fin')
    k.label('L_keep')
    for cb in range(5):
        for e in range(2):
            x = XR + 2 * cb + e; a = PACC + cb * 8 + 2 * e
            if cb == 0 and e == 0: k.e('s_waitcnt vmcnt(0)')
            k.e('v_lshlrev_b32 v%d, 16, v%d' % (vT0, x)); k.e('v_and_b32 v%d, 0xffff0000, v%d' % (x, x))
            k.e('v_add_f32 v%d, v%d, v%d' % (a, a, vT0)); k.e('v_add_f32 v%d, v%d, v%d' % (a + 1, a + 1, x))
    poll(k, SWS, 's%d' % sFl, '1', vPl)
    for cb in range(5):
        k.e('buffer_load_dwordx4 %s, v%d, %s, s%d offen offset:%d sc1' % (R(RX + cb * 4), vL16, S(SWS), sA if cb < 4 else sB, (cb & 3) * 1024))
    for cb in range(5):
        k.e('s_waitcnt vmcnt(%d)' % 4)
        a = PACC + cb * 8
        for e in range(2):
            k.e('v_pk_add_f32 %s, %s, %s' % (R(a + 2 * e, 2), R(a + 2 * e, 2), R(RX + cb * 4 + 2 * e, 2)))
        k.e('v_cvt_pk_bf16_f32 v%d, v%d, v%d' % (a + 4, a, a + 1)); k.e('v_cvt_pk_bf16_f32 v%d, v%d, v%d' % (a + 5, a + 2, a + 3))
        k.e('buffer_store_dwordx2 %s, v%d, %s, 0 offen offset:%d' % (R(a + 4, 2), vXo, S(SOUT), cb * 32))
    k.label('L_fin')
    stamp(k, opt, 8)
```

```python
import sys, os
sys.path.insert(0, os.path.dirname(os.path.abspath(__file__)))
from kb import *

NAME = 'parallel_sum__compressed_kv_cla__dense_activation_relu__prompt'
WS_FLAGS = 0
WS_XN = 0x10000;   XN_BS = 40960
WS_H = 0x290000;   H_BS = 0x1B000
WS_KV = 0x950000;  KVS = 0x83000
WS_CTX = 0x2A10000; CTX_BS = 0x43000
WS_EX = 0x3AD0000; EX_BS = 0x5000
WS_WP = 0x4000000; WP_CS = 183 * 5120 + 3072
WS_DBGQ = 0x4800000
WS_STAMP = 0x5800000
F_H2, F_H3, F_H4, F_X5, F_H5 = 0, 32, 96, 224, 480
SX, SCKV, SWQ, SWUK, SWUV, SWO, SW1, SW2, SOUT, SDBG, SWS = 4, 8, 12, 16, 20, 24, 28, 32, 36, 40, 44
sW, sH, sP, sRB = 48, 49, 50, 51
sW4096, sW1056 = 52, 53
sA, sB, sC, sT, sT2 = 54, 55, 56, 57, 58
sXN, sKst, sVst, sHst = 59, 60, 61, 62
sSc = 64
sSpin = 66
KV_C = [0, 66560]; KV_W = [32768, 99328]
QA, QB, QC = 138496, 113152, 87808
QSLOT = [QA, QC, QB]
LN_BUF = QA; LN_STRIDE = 1296
LDS_BYTES = 163840
vL16, vWD, vW1D, vZ = 1, 2, 3, 4
vT0, vT1, vT2, vT3 = 5, 6, 7, 8
vWQR = [9, 10]
vW1R = [11, 12]
vCD = [112, 113, 114, 115]
vCR = [[116, 117], [118, 119]]
vWR = [120, 121]
ACCK, ACCV = 128, 192
CF = [16, 64]; WF = [48, 96]

class Opt:
    stamps = False
    dumpq = False
    stop = None
    pf = 8
    rp0 = 1
    rpl = 2
    rps = 5
    prio = 'q7'
    prio2 = None
    qst = 0
    kvst = 0
    pfd = 2
    pf0 = 2
    pfp = 2
    dstamps = False
    pfi = 64
    kvpol = 'sc1'
    only = None
    pfc = 0
    abl = ''
    kvw = 28
    stw = 0
    hack = 0
    pfg = 64
    pfq = 1
    h2poll = 10
    stsched = 3322222
    early = 0
    stper = 2
    h2sig = 7

def emit_interleaved(k, mf, fill, tok):
    for i, (txt, needs) in enumerate(mf):
        need = [tok[x] for x in needs if x in tok]
        if need: k.wait(ds=max(need))
        k.e(txt)
        for f in fill.get(i, []): f()

def spread(fill, items, first, last):
    n = len(items)
    for j, it in enumerate(items):
        s = first + (j * (last - first + 1)) // max(n, 1)
        fill.setdefault(s, []).append(it)

def stamp(k, opt, idx):
    if opt.dstamps:
        m = {0: 1, 1: 2, 2: 3, 3: 4, 9: 5, 5: 6, 7: 7, 8: 8}
        if idx not in m: return
        lab = k.newlab('st')
        k.e('s_cmp_lg_u32 s%d, %d' % (sW, opt.stw)); k.e('s_cbranch_scc1 %s' % lab)
        k.e('s_cmp_lg_u32 s2, 77'); k.e('s_cbranch_scc1 %s' % lab)
        k.e('s_memrealtime s[100:101]'); k.e('s_memtime s[94:95]'); k.e('s_waitcnt lgkmcnt(0)')
        k.e('v_mov_b32 v15, s100')
        k.e('buffer_store_dword v15, v%d, %s, 0 offen offset:%d' % (vZ, S(SDBG), m[idx] * 4))
        if m[idx] == 1:
            k.e('v_mov_b32 v15, s96')
            k.e('buffer_store_dword v15, v%d, %s, 0 offen offset:%d' % (vZ, S(SDBG), 36))
        if m[idx] >= 3:
            k.e('v_mov_b32 v15, s94')
            k.e('buffer_store_dword v15, v%d, %s, 0 offen offset:%d' % (vZ, S(SDBG), (m[idx] + 7) * 4))
        k.label(lab)
        return
    if not opt.stamps: return
    lab = k.newlab('st')
    k.e('s_cmp_lg_u32 s%d, %d' % (sW, opt.stw)); k.e('s_cbranch_scc1 %s' % lab)
    k.e('s_memrealtime s[100:101]'); k.e('s_memtime s[94:95]'); k.e('s_waitcnt lgkmcnt(0)')
    k.e('s_lshl_b32 s92, s2, 7'); k.e('s_add_u32 s92, s92, 0x%x' % (WS_STAMP + idx * 4))
    k.e('v_mov_b32 v15, s100')
    k.e('buffer_store_dword v15, v%d, %s, s92 offen' % (vZ, S(SWS)))
    k.e('v_mov_b32 v15, s94')
    k.e('buffer_store_dword v15, v%d, %s, s92 offen offset:64' % (vZ, S(SWS)))
    if idx == 0:
        k.e('v_mov_b32 v15, s96')
        k.e('buffer_store_dword v15, v%d, %s, s92 offen offset:48' % (vZ, S(SWS)))
    k.label(lab)

def poll(k, srd, soff, target, vtmp):
    lp = k.newlab('poll'); dn = k.newlab('polld')
    k.e('s_mov_b32 s%d, 0x10000' % sSpin)
    k.label(lp)
    k.e('buffer_load_dword v%d, v%d, %s, %s offen sc1' % (vtmp, vZ, S(srd), soff))
    k.e('s_waitcnt vmcnt(0)')
    k.e('v_readfirstlane_b32 s%d, v%d' % (sT, vtmp))
    k.e('s_cmp_ge_u32 s%d, %s' % (sT, target))
    k.e('s_cbranch_scc1 %s' % dn)
    k.e('s_sleep 2')
    k.e('s_sub_u32 s%d, s%d, 1' % (sSpin, sSpin))
    k.e('s_cmp_lg_u32 s%d, 0' % sSpin)
    k.e('s_cbranch_scc1 %s' % lp)
    k.label(dn)

def signal(k, srd, soff, vtmp):
    k.e('v_mov_b32 v%d, 1' % vtmp)
    k.e('s_mov_b64 exec, 1')
    k.e('buffer_atomic_add v%d, v%d, %s, %s offen' % (vtmp, vZ, S(srd), soff))
    k.e('s_mov_b64 exec, -1')

def setprio_young(k, p):
    lab = k.newlab('pr')
    k.e('s_cmp_lt_u32 s%d, 4' % sW); k.e('s_cbranch_scc1 %s' % lab)
    k.e('s_setprio %d' % p)
    k.label(lab)

def signal_w0(k, srd, sreg, vtmp):
    k.e('s_cmp_eq_u32 s%d, 0' % sW); k.e('s_cselect_b32 s%d, s%d, 0x10000000' % (sreg, sreg))
    signal(k, srd, 's%d' % sreg, vtmp)
    k.vm_issued += 1

def dma(k, voff, srd, soff, m0base, m0imm):
    k.e('s_add_u32 m0, s%d, %d' % (m0base, m0imm))
    k.e('s_nop 0')
    return k.vm('buffer_load_dwordx4 v%d, %s, %s offen lds' % (voff, S(srd), soff))

vPf = 123; vPfA = 122
def pf_kv(k, opt):
    G = opt.pfg
    lab = k.newlab('pf')
    k.e('v_lshrrev_b32 v%d, 2, v0' % vPfA); k.e('v_and_b32 v%d, 7, v%d' % (vPfA, vPfA))
    k.e('s_mul_i32 s%d, s%d, 48' % (sT, sP)); k.e('s_lshl_b32 s%d, s%d, 3' % (sT2, sW)); k.e('s_add_u32 s%d, s%d, s%d' % (sT, sT, sT2)); k.e('s_add_u32 s%d, s%d, 128' % (sT, sT))
    k.e('v_add_u32 v%d, s%d, v%d' % (vPfA, sT, vPfA)); k.e('v_lshlrev_b32 v%d, 13, v%d' % (vPfA, vPfA))
    k.e('v_and_b32 v%d, 3, v0' % vPf); k.e('v_lshl_add_u32 v%d, v%d, 6, v%d' % (vPfA, vPf, vPfA))
    k.e('s_lshl_b32 s%d, s%d, 8' % (sT, sH))
    k.e('s_cmp_ge_u32 s%d, 6' % sW); k.e('s_cbranch_scc1 %s' % lab)
    k.e('s_mov_b32 exec_hi, 0')
    k.e('buffer_load_dword v%d, v%d, %s, s%d offen' % (vPf, vPfA, S(SWUK), sT))
    k.e('s_mov_b64 exec, -1'); k.e('s_mov_b32 exec_lo, 0')
    k.e('buffer_load_dword v%d, v%d, %s, s%d offen' % (vPf, vPfA, S(SWUV), sT))
    k.e('s_mov_b64 exec, -1')
    lab2 = k.newlab('pf')
    k.e('s_branch %s' % lab2)
    k.label(lab)
    k.e('s_lshl_b32 s%d, s%d, 8' % (sT, sP)); k.e('s_lshl_b32 s%d, s%d, 3' % (sT2, sH)); k.e('s_add_u32 s%d, s%d, s%d' % (sT, sT, sT2))
    k.e('s_and_b32 s%d, s%d, 1' % (sT2, sW)); k.e('s_lshl_b32 s%d, s%d, 2' % (sT2, sT2)); k.e('s_add_u32 s%d, s%d, s%d' % (sT, sT, sT2)); k.e('s_lshl_b32 s%d, s%d, 10' % (sT, sT))
    k.e('v_lshlrev_b32 v%d, 6, v0' % vPfA)
    k.e('buffer_load_dword v%d, v%d, %s, s%d offen' % (vPf, vPfA, S(SCKV), sT))
    k.label(lab2)
    if opt.pfc:
        k.e('s_lshl_b32 s%d, s%d, 8' % (sT, sP)); k.e('s_and_b32 s%d, s%d, 3' % (sT2, sH)); k.e('s_lshl_b32 s%d, s%d, 6' % (sT2, sT2)); k.e('s_add_u32 s%d, s%d, s%d' % (sT, sT, sT2))
        k.e('s_lshl_b32 s%d, s%d, 3' % (sT2, sW)); k.e('s_add_u32 s%d, s%d, s%d' % (sT, sT, sT2)); k.e('s_lshl_b32 s%d, s%d, 10' % (sT, sT))
        k.e('v_lshlrev_b32 v%d, 7, v0' % vPfA)
        k.e('buffer_load_dword v%d, v%d, %s, s%d offen' % (vPf, vPfA, S(SCKV), sT))
        if opt.pfc == 2: k.e('buffer_load_dword v%d, v%d, %s, s%d offen offset:64' % (vPf, vPfA, S(SCKV), sT))

def pf_lin(k, wave, srd, sexpr):
    lab = k.newlab('pl')
    k.e('s_cmp_lg_u32 s%d, %d' % (sW, wave)); k.e('s_cbranch_scc1 %s' % lab)
    sexpr()
    k.e('v_lshlrev_b32 v%d, 7, v0' % vPfA)
    k.e('buffer_load_dword v%d, v%d, %s, s%d offen' % (vPf, vPfA, S(srd), sT))
    k.label(lab)
def pf_a(k, opt):
    pf_lin(k, 0, SCKV, lambda: k.e('s_lshl_b32 s%d, s2, 13' % sT))
    lab = k.newlab('pa'); lab2 = k.newlab('pa')
    f = lambda: (k.e('s_lshr_b32 s%d, s2, 1' % sT), k.e('s_add_u32 s%d, s%d, 128' % (sT, sT)), k.e('s_lshl_b32 s%d, s%d, 13' % (sT, sT)))
    k.e('s_bitcmp1_b32 s2, 0'); k.e('s_cbranch_scc1 %s' % lab)
    pf_lin(k, 1, SWUK, f)
    k.e('s_branch %s' % lab2); k.label(lab)
    pf_lin(k, 1, SWUV, f)
    k.label(lab2)
def pf_b(k, opt):
    f = lambda: (k.e('s_add_u32 s%d, s2, 256' % sT), k.e('s_lshl_b32 s%d, s%d, 13' % (sT, sT)))
    pf_lin(k, 2, SWUK, f); pf_lin(k, 3, SWUV, f)

sPc = 93
def pf_paced_setup(k):
    k.e('s_bitcmp1_b32 s2, 0')
    for i in range(3): k.e('s_cselect_b32 s%d, s%d, s%d' % (88 + i, SWUV + i, SWUK + i))
    k.e('s_mov_b32 s91, 0x20000')
    k.e('s_lshr_b32 s%d, s2, 1' % sT); k.e('s_lshl_b32 s%d, s%d, 12' % (sT, sT)); k.e('s_lshl_b32 s%d, s%d, 9' % (sT2, sW)); k.e('s_add_u32 s%d, s%d, s%d' % (sT, sT, sT2))
    k.e('v_and_b32 v%d, 3, v0' % vPfA); k.e('v_lshlrev_b32 v%d, 7, v%d' % (vPfA, vPfA)); k.e('v_add_u32 v%d, s%d, v%d' % (vPfA, sT, vPfA))
    k.e('s_lshl_b32 s%d, s2, 3' % sPc); k.e('s_add_u32 s%d, s%d, s%d' % (sPc, sPc, sW)); k.e('s_lshl_b32 s%d, s%d, 10' % (sPc, sPc))
def pf_paced(k, st):
    def f0():
        k.e('s_mov_b32 s%d, 0x%x' % (sT, st * 64 * 8192))
        k.vm('buffer_load_dword v%d, v%d, s[88:91], s%d offen' % (vPf, vPfA, sT))
    def f1():
        k.vm('buffer_load_dword v%d, v%d, %s, s%d offen offset:%d' % (vPf, vZ, S(SCKV), sPc, st * 128))
    return [f0, f1]

vPq, vPw = 124, 125
def pfq_setup(k):
    k.e('s_mul_i32 s%d, s%d, 80' % (sT, sP)); k.e('s_mul_i32 s%d, s%d, 10' % (sT2, sW)); k.e('s_add_u32 s%d, s%d, s%d' % (sT, sT, sT2))
    k.e('v_and_b32 v%d, 1, v0' % vPw); k.e('v_bfe_u32 v%d, v0, 1, 1' % vPq)
    k.e('v_add_u32 v%d, s%d, v%d' % (vPq, sT, vPq)); k.e('v_lshlrev_b32 v%d, 13, v%d' % (vPq, vPq)); k.e('v_lshl_add_u32 v%d, v%d, 7, v%d' % (vPq, vPw, vPq))
    k.e('v_add_u32 v%d, s%d, v%d' % (vPw, sT, vPw)); k.e('v_mul_u32_u24 v%d, 3456, v%d' % (vPw, vPw))
    k.e('s_lshl_b32 s%d, s%d, 7' % (sT, sH)); k.e('v_add_u32 v%d, s%d, v%d' % (vPw, sT, vPw))
    k.e('s_lshl_b32 s%d, s%d, 8' % (sT, sH)); k.e('v_add_u32 v%d, s%d, v%d' % (vPq, sT, vPq))
def pfq_paced(k, r):
    def f0():
        k.e('s_mov_b32 s%d, %d' % (sT, r * 16384))
        k.vm('buffer_load_dword v%d, v%d, %s, s%d offen' % (vPf, vPq, S(SWQ), sT))
    def f1():
        k.e('s_mov_b32 s%d, %d' % (sT, r * 6912))
        k.vm('buffer_load_dword v%d, v%d, %s, s%d offen' % (vPf, vPw, S(SW1), sT))
    return [f0, f1]

def pf_q(k, opt):
    lab = k.newlab('pf'); lab2 = k.newlab('pf')
    vPfA = 124
    k.e('s_mul_i32 s%d, s%d, 80' % (sT, sP))
    k.e('s_cmp_ge_u32 s%d, 5' % sW); k.e('s_cbranch_scc1 %s' % lab)
    k.e('s_lshl_b32 s%d, s%d, 4' % (sT2, sW)); k.e('s_add_u32 s%d, s%d, s%d' % (sT, sT, sT2))
    k.e('v_lshrrev_b32 v%d, 2, v0' % vPfA); k.e('v_add_u32 v%d, s%d, v%d' % (vPfA, sT, vPfA)); k.e('v_lshlrev_b32 v%d, 13, v%d' % (vPfA, vPfA))
    k.e('v_and_b32 v%d, 3, v0' % (vPfA - 1 if False else vT1)); k.e('v_lshl_add_u32 v%d, v%d, 6, v%d' % (vPfA, vT1, vPfA))
    k.e('s_lshl_b32 s%d, s%d, 8' % (sT, sH))
    k.e('buffer_load_dword v%d, v%d, %s, s%d offen' % (vPf, vPfA, S(SWQ), sT))
    k.e('s_branch %s' % lab2)
    k.label(lab)
    k.e('s_sub_u32 s%d, s%d, 5' % (sT2, sW)); k.e('s_lshl_b32 s%d, s%d, 5' % (sT2, sT2)); k.e('s_add_u32 s%d, s%d, s%d' % (sT, sT, sT2))
    k.e('v_lshrrev_b32 v%d, 1, v0' % vPfA); k.e('v_add_u32 v%d, s%d, v%d' % (vPfA, sT, vPfA)); k.e('v_mul_u32_u24 v%d, 3456, v%d' % (vPfA, vPfA))
    k.e('v_and_b32 v%d, 1, v0' % vT1); k.e('v_lshl_add_u32 v%d, v%d, 6, v%d' % (vPfA, vT1, vPfA))
    k.e('s_lshl_b32 s%d, s%d, 7' % (sT, sH))
    k.e('buffer_load_dword v%d, v%d, %s, s%d offen' % (vPf, vPfA, S(SW1), sT))
    k.label(lab2)
    k.vm_issued += 1

def prologue(k, opt):
    if opt.stamps or opt.dstamps: k.e('s_memrealtime s[96:97]')
    k.e('s_cmp_ge_u32 s2, 256'); k.e('s_cbranch_scc1 L_exit')
    k.e('s_load_dwordx16 s[64:79], s[0:1], 0')
    k.e('s_load_dwordx8 s[80:87], s[0:1], 64')
    k.e('v_lshrrev_b32 v%d, 6, v0' % vT0)
    k.e('v_and_b32 v0, 63, v0')
    k.e('v_readfirstlane_b32 s%d, v%d' % (sW, vT0))
    k.e('v_lshlrev_b32 v%d, 4, v0' % vL16)
    k.e('v_mov_b32 v%d, 0' % vZ)
    k.e('s_and_b32 s%d, s2, 7' % sT); k.e('s_lshr_b32 s%d, s2, 3' % sT2)
    k.e('s_lshl_b32 s%d, s%d, 2' % (sH, sT)); k.e('s_and_b32 s%d, s%d, 3' % (sT, sT2)); k.e('s_add_u32 s%d, s%d, s%d' % (sH, sH, sT))
    k.e('s_lshr_b32 s%d, s%d, 2' % (sP, sT2))
    k.e('s_sub_u32 s%d, 15, s%d' % (sT, sP))
    k.e('s_cmp_lt_u32 s%d, 4' % sW); k.e('s_cselect_b32 s%d, s%d, s%d' % (sT, sT, sP))
    k.e('s_lshl_b32 s%d, s%d, 2' % (sRB, sT)); k.e('s_and_b32 s%d, s%d, 3' % (sT, sW)); k.e('s_add_u32 s%d, s%d, s%d' % (sRB, sRB, sT))
    k.e('s_lshl_b32 s%d, s%d, 12' % (sW4096, sW)); k.e('s_mul_i32 s%d, s%d, 1056' % (sW1056, sW))
    k.e('v_lshrrev_b32 v%d, 4, v0' % vT0); k.e('v_and_b32 v%d, 15, v0' % vT1)
    k.e('v_lshrrev_b32 v%d, 3, v0' % vT2); k.e('v_and_b32 v%d, 7, v0' % vT3)
    k.e('s_lshl_b32 s%d, s%d, 8' % (sT, sP)); k.e('s_lshl_b32 s%d, s%d, 5' % (sT2, sW)); k.e('s_add_u32 s%d, s%d, s%d' % (sT, sT, sT2))
    k.e('v_add_u32 v%d, s%d, v%d' % (vT2, sT, vT2)); k.e('v_lshlrev_b32 v%d, 10, v%d' % (vT2, vT2))
    k.e('v_xor_b32 v%d, v%d, v%d' % (vT3, vT3, vT0)); k.e('v_lshlrev_b32 v%d, 4, v%d' % (vT3, vT3))
    k.e('v_add_u32 v%d, v%d, v%d' % (vCD[0], vT2, vT3))
    k.e('v_xor_b32 v%d, 64, v%d' % (vCD[1], vCD[0])); k.e('v_add_u32 v%d, 0x2000, v%d' % (vCD[1], vCD[1]))
    k.e('v_add_u32 v%d, 0x4000, v%d' % (vCD[2], vCD[0])); k.e('v_add_u32 v%d, 0x4000, v%d' % (vCD[3], vCD[1]))
    k.e('v_and_b32 v%d, 1, v%d' % (vT2, vT0)); k.e('v_lshlrev_b32 v%d, 2, v%d' % (vT2, vT2))
    k.e('v_lshrrev_b32 v%d, 1, v%d' % (vT3, vT0)); k.e('v_lshl_add_u32 v%d, v%d, 4, v%d' % (vT2, vT3, vT2))
    k.e('s_lshr_b32 s%d, s%d, 2' % (sT, sW)); k.e('s_lshl_b32 s%d, s%d, 3' % (sT, sT)); k.e('s_and_b32 s%d, s%d, 3' % (sT2, sW)); k.e('s_add_u32 s%d, s%d, s%d' % (sT, sT, sT2))
    k.e('v_add_u32 v%d, s%d, v%d' % (vT2, sT, vT2)); k.e('v_lshlrev_b32 v%d, 13, v%d' % (vT2, vT2))
    k.e('v_lshl_add_u32 v%d, v%d, 4, v%d' % (vT2, vT1, vT2))
    k.e('s_lshl_b32 s%d, s%d, 8' % (sT, sH)); k.e('v_add_u32 v%d, s%d, v%d' % (vWD, sT, vT2))
    k.e('s_waitcnt lgkmcnt(0)')
    sizes = [(SX, 64, 2621440), (SCKV, 66, 2097152), (SWQ, 68, 5242880), (SWUK, 70, 4194304), (SWUV, 72, 4194304), (SWO, 74, 5242880),
             (SW1, 78, 2211840), (SW2, 80, 2211840), (SOUT, 82, 2621440), (SDBG, 84, 256), (SWS, 86, 0x10000000)]
    order = [0, 1, 3, 4, 10, 2, 6, 9, 5, 7, 8]
    def mk(i):
        d, p, n = sizes[i]
        k.e('s_mov_b32 s%d, s%d' % (d, p)); k.e('s_and_b32 s%d, s%d, 0xffff' % (d + 1, p + 1))
        k.e('s_mov_b32 s%d, 0x%x' % (d + 2, n)); k.e('s_mov_b32 s%d, 0x20000' % (d + 3))
    mk(order[0])
    k.e('s_lshl_b32 s%d, s2, 3' % sT); k.e('s_add_u32 s%d, s%d, s%d' % (sT, sT, sW)); k.e('s_mul_i32 s%d, s%d, 1280' % (sT, sT))
    k.e('v_lshlrev_b32 v%d, 2, v0' % vT2)
    if opt.only is None:
        for j in range(5):
            k.vm('buffer_load_dword v%d, v%d, %s, s%d offen offset:%d' % (16 + j, vT2, S(SX), sT, j * 256))
    for i in order[1:4]: mk(i)
    return lambda: [mk(i) for i in order[4:]]

def kv_dma_items(k, s):
    b = s & 1
    it = []
    def setoff():
        k.e('s_mov_b32 s%d, %d' % (sA, s * 128)); k.e('s_mov_b32 s%d, 0x%x' % (sB, s * 64 * 8192)); k.e('s_mov_b32 s%d, 0x%x' % (sC, (s * 64 + 32) * 8192))
    first = [True]
    def mkc(jj):
        def f():
            if first[0]: setoff(); first[0] = False
            dma(k, vCD[jj], SCKV, 's%d' % sA, sW4096, KV_C[b] + jj * 1024)
        return f
    def mkw(mat, ks):
        def f():
            dma(k, vWD, [SWUK, SWUV][mat], 's%d' % [sB, sC][ks], sW1056, KV_W[b] + (mat * 2 + ks) * 8448)
        return f
    it += [mkc(0), mkw(0, 0), mkc(1), mkw(1, 0), mkc(2), mkw(0, 1), mkc(3), mkw(1, 1)]
    return it

def kv_read_items(k, t, tok):
    s, ks, rb = t >> 1, t & 1, t & 1
    lb = s & 1
    it = []
    for mat in range(2):
        for db in range(2):
            for hf in range(2):
                def f(mat=mat, db=db, hf=hf):
                    r = WF[rb] + (mat * 2 + db) * 4 + hf * 2
                    tok[('w', t, mat, db)] = k.ds('ds_read_b64_tr_b16 %s, v%d offset:%d' % (R(r, 2), vWR[lb], (mat * 2 + ks) * 8448 + hf * 256 + db * 32))
                it.append(f)
    for kb in range(8):
        def f(kb=kb):
            tok[('c', t, kb)] = k.ds('ds_read_b128 %s, v%d offset:%d' % (R(CF[rb] + kb * 4), vCR[lb][ks], kb * 2048))
        it.append(f)
    return it

def rowsum64(k, v, t):
    for r in (8, 4, 2, 1):
        k.e('s_nop 1')
        k.e('v_add_f32_dpp v%d, v%d, v%d row_ror:%d row_mask:0xf bank_mask:0xf' % (v, v, v, r))
    k.e('v_mov_b32 v%d, v%d' % (t, v)); k.e('s_nop 1')
    k.e('v_permlane16_swap_b32 v%d, v%d' % (v, t)); k.e('v_add_f32 v%d, v%d, v%d' % (v, v, t))
    k.e('v_mov_b32 v%d, v%d' % (t, v)); k.e('s_nop 1')
    k.e('v_permlane32_swap_b32 v%d, v%d' % (v, t)); k.e('v_add_f32 v%d, v%d, v%d' % (v, v, t))

def rbf(k, v):
    k.e('v_cvt_pk_bf16_f32 v%d, v%d, v%d' % (v, v, v)); k.e('v_lshlrev_b32 v%d, 16, v%d' % (v, v))

def phase_ln_kv(k, opt, rest_srds):
    tok = {}
    t_ln = k.last_vm()
    for f in kv_dma_items(k, 0): f()
    t_st0 = k.last_vm()
    rest_srds()
    if opt.prio == 'all': setprio_young(k, 1)
    stamp(k, opt, 0)
    X = 16
    for f in kv_dma_items(k, 1): f()
    t_st1 = k.last_vm()
    if opt.pf == 1: pf_kv(k, opt)
    if opt.pf in (5, 6): pf_a(k, opt)
    if opt.pf == 6: pf_b(k, opt)
    if opt.pf == 4:
        lab = k.newlab('pfe')
        k.e('s_cmp_gt_u32 s%d, %d' % (sP, opt.pfp)); k.e('s_cbranch_scc1 %s' % lab)
        pf_kv(k, opt)
        k.label(lab)
    if opt.pfi:
        lab = k.newlab('pfi')
        k.e('s_cmp_lg_u32 s%d, 6' % sW); k.e('s_cbranch_scc1 %s' % lab)
        k.e('s_getpc_b64 s[98:99]')
        k.label('L_pc')
        k.e('s_lshr_b32 s%d, s2, 3' % sT); k.e('s_and_b32 s%d, s%d, 15' % (sT, sT)); k.e('s_mul_i32 s%d, s%d, %d' % (sT, sT, opt.pfi * 64))
        k.e('v_mul_u32_u24 v%d, %d, v0' % (vPfA, opt.pfi)); k.e('v_add_u32 v%d, s%d, v%d' % (vPfA, sT, vPfA)); k.e('v_and_b32 v%d, 0xfffffffc, v%d' % (vPfA, vPfA))
        k.e('v_min_u32 v%d, L_exit-L_pc, v%d' % (vPfA, vPfA))
        k.e('global_load_dword v%d, v%d, s[98:99]' % (vPf, vPfA))
        k.label(lab)
    lab = k.newlab('zf')
    k.e('s_cmp_lg_u32 s%d, 7' % sW); k.e('s_cbranch_scc1 %s' % lab)
    k.e('s_lshl_b32 s%d, s2, 8' % sT)
    k.e('buffer_store_dword v%d, v%d, %s, s%d offen sc1' % (vZ, vT2, S(SWS), sT))
    k.label(lab)
    k.e('v_lshrrev_b32 v%d, 1, v%d' % (vT3, vT1)); k.e('v_xor_b32 v%d, v%d, v%d' % (vT3, vT3, vT0)); k.e('v_lshlrev_b32 v%d, 4, v%d' % (vT3, vT3))
    k.e('v_lshl_add_u32 v%d, v%d, 7, v%d' % (vT3, vT1, vT3))
    k.e('s_lshr_b32 s%d, s%d, 2' % (sT, sW)); k.e('s_lshl_b32 s%d, s%d, 14' % (sT, sT))
    k.e('v_add_u32 v%d, s%d, v%d' % (vCR[0][0], sT, vT3)); k.e('v_xor_b32 v%d, 64, v%d' % (vCR[0][1], vCR[0][0]))
    k.e('v_add_u32 v%d, %d, v%d' % (vCR[1][0], KV_C[1], vCR[0][0])); k.e('v_add_u32 v%d, %d, v%d' % (vCR[1][1], KV_C[1], vCR[0][1]))
    k.e('v_lshrrev_b32 v%d, 2, v%d' % (vT3, vT1)); k.e('v_and_b32 v22, 1, v%d' % vT0); k.e('v_lshl_add_u32 v%d, v22, 2, v%d' % (vT3, vT3))
    k.e('v_lshrrev_b32 v22, 1, v%d' % vT0); k.e('v_lshlrev_b32 v22, 9, v22')
    k.e('v_and_b32 v23, 3, v%d' % vT1); k.e('v_lshl_add_u32 v22, v23, 3, v22')
    k.e('v_mul_u32_u24 v23, 1056, v%d' % vT3); k.e('v_add_u32 v23, v23, v22')
    k.e('v_add_u32 v%d, %d, v23' % (vWQR[0], QC)); k.e('v_add_u32 v%d, %d, v23' % (vWQR[1], QA))
    k.e('s_and_b32 s%d, s%d, 3' % (sT, sW)); k.e('s_lshl_b32 s%d, s%d, 6' % (sT, sT))
    k.e('v_add_u32 v23, s%d, v23' % sT)
    k.e('v_add_u32 v%d, %d, v23' % (vWR[0], KV_W[0])); k.e('v_add_u32 v%d, %d, v23' % (vWR[1], KV_W[1]))
    k.e('v_lshrrev_b32 v23, 1, v%d' % vT3); k.e('v_mul_u32_u24 v23, 1056, v23'); k.e('v_add_u32 v23, v23, v22')
    k.e('v_and_b32 v%d, 1, v%d' % (vT3, vT3)); k.e('v_lshl_add_u32 v23, v%d, 7, v23' % vT3)
    k.e('v_add_u32 v%d, %d, v23' % (vW1R[0], QC + 16896)); k.e('v_add_u32 v%d, %d, v23' % (vW1R[1], QA + 16896))
    k.e('v_bfe_u32 v22, v0, 3, 1'); k.e('v_bfe_u32 v23, v0, 4, 1'); k.e('v_lshl_add_u32 v22, v23, 2, v22')
    k.e('v_lshrrev_b32 v23, 5, v0'); k.e('v_lshl_add_u32 v22, v23, 4, v22')
    k.e('s_and_b32 s%d, s%d, 1' % (sT, sW)); k.e('s_lshl_b32 s%d, s%d, 1' % (sT, sT))
    k.e('s_bfe_u32 s%d, s%d, 0x10001' % (sT2, sW)); k.e('s_lshl_b32 s%d, s%d, 3' % (sT2, sT2)); k.e('s_add_u32 s%d, s%d, s%d' % (sT, sT, sT2))
    k.e('s_lshr_b32 s%d, s%d, 2' % (sT2, sW)); k.e('s_lshl_b32 s%d, s%d, 5' % (sT2, sT2)); k.e('s_add_u32 s%d, s%d, s%d' % (sT, sT, sT2))
    k.e('v_add_u32 v22, s%d, v22' % sT); k.e('v_mul_u32_u24 v22, 3456, v22')
    k.e('v_and_b32 v23, 7, v0'); k.e('v_lshl_add_u32 v22, v23, 4, v22')
    k.e('s_lshl_b32 s%d, s%d, 7' % (sT, sH)); k.e('v_add_u32 v%d, s%d, v22' % (vW1D, sT))
    k.e('s_mul_i32 s%d, s%d, %d' % (sXN, sRB, XN_BS)); k.e('s_add_u32 s%d, s%d, 0x%x' % (sXN, sXN, WS_XN))
    k.e('s_mul_i32 s%d, s%d, 0x%x' % (sKst, sH, 2 * KVS)); k.e('s_add_u32 s%d, s%d, 0x%x' % (sKst, sKst, WS_KV))
    k.e('s_lshl_b32 s%d, s%d, 16' % (sT, sP)); k.e('s_add_u32 s%d, s%d, s%d' % (sKst, sKst, sT))
    k.e('s_lshr_b32 s%d, s%d, 2' % (sT, sW)); k.e('s_lshl_b32 s%d, s%d, 15' % (sT, sT)); k.e('s_add_u32 s%d, s%d, s%d' % (sKst, sKst, sT))
    k.e('s_and_b32 s%d, s%d, 3' % (sT, sW)); k.e('s_lshl_b32 s%d, s%d, 11' % (sT2, sT)); k.e('s_add_u32 s%d, s%d, s%d' % (sVst, sKst, sT2))
    k.e('s_add_u32 s%d, s%d, 0x%x' % (sVst, sVst, KVS))
    k.e('s_lshl_b32 s%d, s%d, 10' % (sT, sT)); k.e('s_add_u32 s%d, s%d, s%d' % (sKst, sKst, sT))
    k.e('s_mul_i32 s%d, s%d, 0x%x' % (sHst, sRB, H_BS)); k.e('s_lshl_b32 s%d, s%d, 12' % (sT, sH)); k.e('s_add_u32 s%d, s%d, s%d' % (sHst, sHst, sT))
    k.e('s_add_u32 s%d, s%d, 0x%x' % (sHst, sHst, WS_H))
    k.e('s_mov_b32 s%d, 0x3e0293ee' % sSc); k.e('s_mov_b32 s%d, 0x3e0293ee' % (sSc + 1))
    F = 24
    k.wait(vm=t_ln)
    if opt.pf == 3: pf_kv(k, opt)
    for j in range(5):
        k.e('v_lshlrev_b32 v%d, 16, v%d' % (F + 2 * j, X + j)); k.e('v_and_b32 v%d, 0xffff0000, v%d' % (F + 2 * j + 1, X + j))
    k.e('v_add_f32 v34, v%d, v%d' % (F, F + 1))
    for j in range(2, 10): k.e('v_add_f32 v34, v34, v%d' % (F + j))
    rowsum64(k, 34, 35)
    k.e('v_mul_f32 v34, 0x3acccccd, v34')
    k.e('v_sub_f32 v36, v%d, v34' % F); k.e('v_mul_f32 v37, v36, v36')
    for j in range(1, 10):
        k.e('v_sub_f32 v36, v%d, v34' % (F + j)); k.e('v_fmac_f32 v37, v36, v36')
    rowsum64(k, 37, 35)
    k.e('v_mul_f32 v37, 0x3acccccd, v37')
    rbf(k, 34); rbf(k, 37)
    k.e('v_add_f32 v37, 0x3727c5ac, v37'); rbf(k, 37)
    k.e('v_sqrt_f32 v37, v37'); k.e('s_nop 0'); rbf(k, 37)
    k.e('v_rcp_f32 v37, v37')
    for j in range(10): k.e('v_sub_f32 v%d, v%d, v34' % (F + j, F + j))
    for j in range(5): k.e('v_cvt_pk_bf16_f32 v%d, v%d, v%d' % (X + j, F + 2 * j, F + 2 * j + 1))
    for j in range(5):
        k.e('v_lshlrev_b32 v%d, 16, v%d' % (F + 2 * j, X + j)); k.e('v_and_b32 v%d, 0xffff0000, v%d' % (F + 2 * j + 1, X + j))
    for j in range(10): k.e('v_mul_f32 v%d, v%d, v37' % (F + j, F + j))
    for j in range(5): k.e('v_cvt_pk_bf16_f32 v%d, v%d, v%d' % (X + j, F + 2 * j, F + 2 * j + 1))
    k.e('s_mul_i32 s%d, s%d, %d' % (sT, sW, LN_STRIDE)); k.e('s_add_u32 s%d, s%d, %d' % (sT, sT, LN_BUF))
    k.e('v_add_u32 v%d, s%d, v%d' % (vT2, sT, vT2))
    for j in range(5): k.ds('ds_write_b32 v%d, v%d offset:%d' % (vT2, X + j, j * 256))
    k.wait(vm=t_st0, ds=k.last_ds())
    k.e('s_barrier')
    stamp(k, opt, 1)
    for f in kv_read_items(k, 0, tok): f()
    if opt.pf == 2: pf_kv(k, opt)
    if opt.pf == 5: pf_b(k, opt)
    if opt.pf == 8:
        pf_paced_setup(k)
        pfq_setup(k)
        for st in range(opt.pf0, 2 + opt.pfd):
            for f in pf_paced(k, st): f()
    if opt.pf == 7: pf_a(k, opt); pf_b(k, opt)
    if opt.pf == 4:
        lab = k.newlab('pfl')
        k.e('s_cmp_le_u32 s%d, %d' % (sP, opt.pfp)); k.e('s_cbranch_scc1 %s' % lab)
        pf_kv(k, opt)
        k.label(lab)
    lab = k.newlab('xs')
    k.e('s_cmp_ge_u32 s%d, 5' % sW); k.e('s_cbranch_scc1 %s' % lab)
    k.e('v_and_b32 v%d, 7, v0' % vT2); k.e('v_lshrrev_b32 v%d, 3, v0' % vT3)
    k.e('v_mul_u32_u24 v64, %d, v%d' % (LN_STRIDE, vT2)); k.e('v_lshl_add_u32 v64, v%d, 4, v64' % vT3)
    k.e('s_lshl_b32 s%d, s%d, 8' % (sT, sW)); k.e('s_add_u32 s%d, s%d, %d' % (sT, sT, LN_BUF)); k.e('v_add_u32 v64, s%d, v64' % sT)
    k.e('ds_read_b128 v[68:71], v64'); k.e('ds_read_b128 v[72:75], v64 offset:128')
    k.e('v_lshrrev_b32 v65, 2, v%d' % vT3); k.e('v_lshlrev_b32 v65, 11, v65'); k.e('v_and_b32 v66, 3, v%d' % vT3)
    k.e('v_lshl_add_u32 v65, v66, 8, v65'); k.e('v_lshl_add_u32 v65, v%d, 4, v65' % vT2)
    k.e('s_lshr_b32 s%d, s2, 2' % sT); k.e('s_mul_i32 s%d, s%d, %d' % (sT, sT, XN_BS))
    k.e('s_bfe_u32 s%d, s2, 0x10001' % sT2); k.e('s_lshl_b32 s%d, s%d, 10' % (sT2, sT2)); k.e('s_add_u32 s%d, s%d, s%d' % (sT, sT, sT2))
    k.e('s_and_b32 s%d, s2, 1' % sT2); k.e('s_lshl_b32 s%d, s%d, 7' % (sT2, sT2)); k.e('s_add_u32 s%d, s%d, s%d' % (sT, sT, sT2))
    k.e('s_lshl_b32 s%d, s%d, 13' % (sT2, sW)); k.e('s_add_u32 s%d, s%d, s%d' % (sT, sT, sT2)); k.e('s_add_u32 s%d, s%d, 0x%x' % (sT, sT, WS_XN))
    k.e('s_add_u32 s%d, s%d, 4096' % (sT2, sT))
    k.e('s_waitcnt lgkmcnt(0)')
    k.e('buffer_store_dwordx4 v[68:71], v65, %s, s%d offen sc1' % (S(SWS), sT))
    k.e('buffer_store_dwordx4 v[72:75], v65, %s, s%d offen sc1' % (S(SWS), sT2))
    k.e('s_nop 0')
    k.label(lab)
    st_tok = {0: t_st0, 1: t_st1}
    def mf_step(t):
        b = t & 1; out = []
        for kb in range(8):
            for db in range(2):
                D = ACCK + (kb * 2 + db) * 4
                out.append((mfma(D, WF[b] + db * 4, CF[b] + kb * 4, '0' if t == 0 else D), [('w', t, 0, db), ('c', t, kb)]))
            for db in range(2):
                D = ACCV + (kb * 2 + db) * 4
                out.append((mfma(D, CF[b] + kb * 4, WF[b] + 8 + db * 4, '0' if t == 0 else D), [('w', t, 1, db), ('c', t, kb)]))
        return out
    qtok = {}
    late = {}
    for s in range(8):
        fill = {}
        spread(fill, kv_read_items(k, 2 * s + 1, tok), 0, 23)
        for sl, its in late.items(): fill.setdefault(sl, []).extend(its)
        late = {}
        emit_interleaved(k, mf_step(2 * s), fill, tok)
        if 1 <= s < 7 and opt.kvw >= 32: st_tok[s + 1] = k.last_vm()
        if s == opt.pfq + 1 and opt.pf and opt.pf != 8: pf_q(k, opt)
        if s == 6:
            lab = k.newlab('g1')
            k.e('s_cmp_ge_u32 s%d, 2' % sW); k.e('s_cbranch_scc1 %s' % lab)
            k.e('s_lshl_b32 s%d, s%d, 7' % (sT2, sW))
            poll(k, SDBG, 's%d' % sT2, '0x80', vT0)
            k.label(lab)
        if s < 7:
            k.wait(vm=st_tok[s + 1], ds=k.last_ds())
            if 'kvb' not in opt.abl or s in (1, 6): k.e('s_barrier')
            if opt.kvst: stamp(k, opt, 4 + s)
        fill = {}
        if s < 7:
            spread(fill, kv_read_items(k, 2 * s + 2, tok), 0, 23)
        if s < 6 and 'kvd' not in opt.abl:
            both = {}
            spread(both, kv_dma_items(k, s + 2), 1, opt.kvw)
            for sl, its in both.items():
                if sl < 32: fill.setdefault(sl, []).extend(its)
                else: late[sl - 32] = its
            if opt.kvw < 32:
                fill.setdefault(opt.kvw, []).append(lambda s=s: st_tok.__setitem__(s + 2, k.last_vm()))
                if opt.pf == 8 and s + 2 + opt.pfd < 8:
                    its = pf_paced(k, s + 2 + opt.pfd)
                    fill.setdefault(29, []).append(its[0]); fill.setdefault(30, []).append(its[1])
                if opt.pf == 8 and opt.pfq <= s < opt.pfq + 5:
                    its = pfq_paced(k, s - opt.pfq)
                    fill.setdefault(30, []).append(its[0]); fill.setdefault(31, []).append(its[1])
        if s == 1:
            def g1sig():
                k.e('s_and_b32 s%d, s2, 1' % sT); k.e('s_lshl_b32 s%d, s%d, 7' % (sT, sT))
                signal_w0(k, SDBG, sT, vT0)
            fill.setdefault(31, []).append(g1sig)
        if s == 6:
            spread(fill, q_dma_items(k, 0, True, qtok), 1, 20)
        if s == 7:
            spread(fill, q_xn_items(k, 0, qtok) + q_xn_items(k, 1, qtok), 0, 20)
        emit_interleaved(k, mf_step(2 * s + 1), fill, tok)
    return qtok

XN = 16
QW = [112, 116, 120, 124, 96, 100, 104, 108]
KPK, VPK = 64, 128
ACCQ, ACCH = 160, 224
QF, HPK = 16, 48

def q_dma_items(k, s, ffn, tok):
    slot = QSLOT[s % 3]
    def f0():
        k.e('s_mov_b32 s%d, 0x%x' % (sB, s * 64 * 8192))
        dma(k, vWD, SWQ, 's%d' % sB, sW1056, slot)
    def f1():
        k.e('s_mov_b32 s%d, 0x%x' % (sC, (s * 64 + 32) * 8192))
        tok[('dq', s)] = dma(k, vWD, SWQ, 's%d' % sC, sW1056, slot + 8448)
    def f2():
        k.e('s_mov_b32 s%d, 0x%x' % (sA, s * 64 * 3456))
        tok[('dq', s)] = dma(k, vW1D, SW1, 's%d' % sA, sW1056, slot + 16896)
    return [f0, f1, f2] if ffn else [f0, f1]

def q_xn_items(k, s, tok):
    it = []
    for j in range(4):
        def f(j=j):
            if j == 0: k.e('s_add_u32 s%d, s%d, %d' % (sT2, sXN, s * 4096))
            tok[('x', 2 * s + (j >> 1), j & 1)] = k.vm('buffer_load_dwordx4 %s, v%d, %s, s%d offen offset:%d sc1' % (R(XN + (s % 3) * 16 + j * 4), vL16, S(SWS), sT2, j * 1024))
        it.append(f)
    return it

def kv_pack(k):
    k.e('s_nop 7')
    for kb in range(8):
        for db in range(2):
            a = ACCK + (kb * 2 + db) * 4
            k.e('v_cvt_pk_bf16_f32 v%d, v%d, v%d' % (KPK + kb * 4 + db * 2, a, a + 1)); k.e('v_cvt_pk_bf16_f32 v%d, v%d, v%d' % (KPK + kb * 4 + db * 2 + 1, a + 2, a + 3))
    for j in range(4):
        for db in range(2):
            for hh in range(2):
                a = ACCV + ((2 * j + hh) * 2 + db) * 4
                d = VPK + (j * 2 + db) * 4 + hh * 2
                k.e('v_cvt_pk_bf16_f32 v%d, v%d, v%d' % (d, a, a + 1)); k.e('v_cvt_pk_bf16_f32 v%d, v%d, v%d' % (d + 1, a + 2, a + 3))

def kv_store_items(k, tok):
    it = []
    for i in range(8):
        def fk(i=i):
            k.e('s_add_u32 s%d, s%d, %d' % (sT, sKst, i * 4096))
            tok['kvst'] = k.vm('buffer_store_dwordx4 %s, v%d, %s, s%d offen sc1' % (R(KPK + i * 4), vL16, S(SWS), sT))
        def fv(i=i):
            k.e('s_add_u32 s%d, s%d, %d' % (sT, sVst, (i >> 1) * 8192))
            tok['kvst'] = k.vm('buffer_store_dwordx4 %s, v%d, %s, s%d offen offset:%d sc1' % (R(VPK + i * 4), vL16, S(SWS), sT, (i & 1) * 1024))
        it += [fk, fv]
    return it

def phase_q(k, opt, tok, ffn, hooks):
    nf = 12 if ffn else 8
    AH = 5
    frags = [(t, c) for t in range(20) for c in range(nf)]
    def read(n):
        t, c = frags[n]; s, ks = t >> 1, t & 1
        slot = QSLOT[s % 3]; bi = 1 if slot == QA else 0; rel = 0 if slot != QB else QB - QC
        r = QW[n % 8]
        if c < 8: a, off = vWQR[bi], rel + ks * 8448 + c * 32
        else: a, off = vW1R[bi], rel + ks * 4224 + (c - 8) * 32
        k.ds('ds_read_b64_tr_b16 %s, v%d offset:%d' % (R(r, 2), a, off))
        tok[('f', n)] = k.ds('ds_read_b64_tr_b16 %s, v%d offset:%d' % (R(r + 2, 2), a, off + 256))
    k.wait(vm=tok[('dq', 0)])
    k.e('s_barrier')
    if opt.qst: stamp(k, opt, 14)
    for f in q_dma_items(k, 1, ffn, tok): f()
    for n in range(4): read(n)
    kv_pack(k)
    read(4)
    stores = kv_store_items(k, tok)
    per = 2 * nf
    for s in range(10):
        extra = {}
        ex = []
        if s + 2 < 10:
            if 'qx' in opt.abl:
                for t_ in (2 * s + 4, 2 * s + 5): tok[('x', t_, 1)] = tok[('x', 0, 1)]
            else: ex += q_xn_items(k, s + 2, tok)
        sched = [int(c) for c in str(opt.stsched)] + [0] * 10
        assert sum(sched) in (0, 16) and all(x == 0 for x in sched[opt.h2sig:])
        ex += stores[sum(sched[:s]): sum(sched[:s + 1])]
        spread(extra, ex, 1, per - AH - 3)
        for i in range(per):
            n = s * per + i
            t, c = frags[n]
            k.wait(ds=tok[('f', n)])
            if c == 0: k.wait(vm=tok[('x', t, 1)])
            for qb in range(2):
                D = (ACCQ + (c * 2 + qb) * 4) if c < 8 else (ACCH + ((c - 8) * 2 + qb) * 4)
                k.e(mfma(D, QW[n % 8], XN + (s % 3) * 16 + (t & 1) * 8 + qb * 4, '0' if t == 0 else D))
                if qb == 0:
                    if i == per - AH and s < 9:
                        hooks('preB', s)
                        k.wait(vm=tok[('dq', s + 1)])
                        if 'qb' not in opt.abl or s == 8: k.e('s_barrier')
                        hooks('postB', s)
                        if opt.qst: stamp(k, opt, 4 + s if s < 8 else 13)
                    if n + AH < len(frags): read(n + AH)
            for f in extra.get(i, []): f()
            if s + 2 < 10 and i >= per - AH:
                items = q_dma_items(k, s + 2, ffn, tok)
                j = i - (per - AH)
                if 'qd' in opt.abl: tok[('dq', s + 2)] = tok[('dq', 1)]
                elif j < len(items): items[j]()
            hooks('slot', s, i)
    if opt.qst: stamp(k, opt, 15)
    hooks('end', 9)
    k.e('s_nop 7')
    if ffn:
        for qb in range(2):
            for b in range(2):
                for hh in range(2):
                    a = ACCH + ((2 * b + hh) * 2 + qb) * 4; d = HPK + (b * 2 + qb) * 4 + hh * 2
                    k.e('v_cvt_pk_bf16_f32 v%d, v%d, v%d' % (d, a, a + 1)); k.e('v_cvt_pk_bf16_f32 v%d, v%d, v%d' % (d + 1, a + 2, a + 3))
        for i in range(16): k.e('v_pk_max_i16 v%d, v%d, 0' % (HPK + i, HPK + i))
        for i in range(4):
            tok['hst'] = k.vm('buffer_store_dwordx4 %s, v%d, %s, s%d offen offset:%d sc1' % (R(HPK + i * 4), vL16, S(SWS), sHst, i * 1024))
    for i in range(32): k.e('v_pk_mul_f32 %s, %s, s[%d:%d]' % (R(ACCQ + 2 * i, 2), R(ACCQ + 2 * i, 2), sSc, sSc + 1))
    for qb in range(2):
        for b in range(4):
            for hh in range(2):
                a = ACCQ + ((2 * b + hh) * 2 + qb) * 4; d = QF + (qb * 4 + b) * 4 + hh * 2
                k.e('v_cvt_pk_bf16_f32 v%d, v%d, v%d' % (d, a, a + 1)); k.e('v_cvt_pk_bf16_f32 v%d, v%d, v%d' % (d + 1, a + 2, a + 3))

def build(opt):
    k = KB()
    rest = prologue(k, opt)
    import attn
    attn.OPT[0] = opt
    if opt.only == 'p3':
        rest(); stamp(k, opt, 0)
        attn.phase_attn_p3(k, opt)
        return finish(k, opt)
    qtok = phase_ln_kv(k, opt, rest)
    stamp(k, opt, 2)
    import attn
    hk = {}
    def hooks(kind, s, i=None):
        if kind == 'postB' and opt.prio == 'q%d' % s: setprio_young(k, 1)
        if kind == 'slot' and s == opt.h2sig + 1 and i == 0:
            k.e('s_lshl_b32 s%d, s%d, 7' % (sT, sH))
            signal_w0(k, SWS, sT, vT0)
        if opt.early:
            if kind == 'preB' and s == 8:
                lab = k.newlab('h2')
                k.e('s_cmp_lg_u32 s%d, 4' % sW); k.e('s_cbranch_scc1 %s' % lab)
                k.e('s_lshl_b32 s%d, s%d, 7' % (sT2, sH))
                poll(k, SWS, 's%d' % sT2, '8', vT0)
                k.label(lab)
            if kind == 'postB' and s == 8:
                attn.ld_setup(k)
            if kind == 'slot' and s == 9 and i in (0, 2, 4, 6, 8, 10):
                lab = k.newlab('kvp')
                k.e('s_cmp_lt_u32 s%d, 4' % sW); k.e('s_cbranch_scc1 %s' % lab)
                for f in attn.ld_group(k, (i >> 1) & 1, i == 2): f()
                k.label(lab)
        elif kind == 'slot' and s == 9 and i == opt.h2poll:
            k.e('s_lshl_b32 s%d, s%d, 7' % (sT2, sH))
            hk['h2'] = k.vm('buffer_load_dword v%d, v%d, %s, s%d offen sc1' % (vT3, vZ, S(SWS), sT2))
            attn.ld_setup(k)
        elif kind == 'end':
            lab = k.newlab('h2'); lab2 = k.newlab('h2ok')
            k.e('s_cmp_lt_u32 s%d, 4' % sW); k.e('s_cbranch_scc1 %s' % lab)
            k.e('s_waitcnt vmcnt(0)')
            k.e('v_readfirstlane_b32 s%d, v%d' % (sT, vT3))
            k.e('s_cmp_ge_u32 s%d, 8' % sT); k.e('s_cbranch_scc1 %s' % lab2)
            poll(k, SWS, 's%d' % sT2, '8', vT0)
            k.label(lab2)
            attn.ld_stage(k, True); attn.ld_stage(k)
            k.label(lab)
        elif kind == 'end2':
            lab = k.newlab('h2')
            k.e('s_cmp_lt_u32 s%d, 4' % sW); k.e('s_cbranch_scc1 %s' % lab)
            attn.ld_stage(k)
            k.label(lab)
    st = (k.vm_issued, k.vm_done, k.ds_issued, k.ds_done)
    k.e('s_cmp_ge_u32 s%d, 27' % sH); k.e('s_cbranch_scc1 L_q_noffn')
    phase_q(k, opt, dict(qtok), True, hooks)
    k.e('s_branch L_q_done')
    k.label('L_q_noffn')
    k.vm_issued, k.vm_done, k.ds_issued, k.ds_done = st
    phase_q(k, opt, dict(qtok), False, hooks)
    k.label('L_q_done')
    hooks('end2', 9)
    if opt.prio2 is not None: k.e('s_setprio %d' % opt.prio2)
    stamp(k, opt, 3)
    if opt.dumpq:
        k.e('s_lshl_b32 s%d, s2, 3' % sT); k.e('s_add_u32 s%d, s%d, s%d' % (sT, sT, sW)); k.e('s_lshl_b32 s%d, s%d, 13' % (sT, sT))
        k.e('s_add_u32 s%d, s%d, 0x%x' % (sT, sT, WS_DBGQ)); k.e('s_add_u32 s%d, s%d, 4096' % (sT2, sT))
        for i in range(8):
            k.e('buffer_store_dwordx4 %s, v%d, %s, s%d offen offset:%d' % (R(QF + i * 4), vL16, S(SWS), sT if i < 4 else sT2, (i & 3) * 1024))
    if opt.stop != 'q':
        attn.phase_attn_p3(k, opt)
    return finish(k, opt)

def finish(k, opt):
    k.e('s_waitcnt vmcnt(0)')
    k.label('L_exit')
    k.e('s_endpgm')
    errs = check_hazards(k.lines)
    for e in errs: print('HAZARD', e, file=sys.stderr)
    hdr = open(os.path.join(os.path.dirname(os.path.abspath(__file__)), 'header.txt')).read()
    t = hdr + '; @launch grid=(256,1,1) block=(512,1,1) lds=%d\n' % LDS_BYTES
    t += '.amdgcn_target "amdgcn-amd-amdhsa--gfx950"\n.text\n.globl %s_kernel\n.p2align 8\n.type %s_kernel,@function\n%s_kernel:\n' % (NAME, NAME, NAME)
    t += k.text()
    t += '''.section .rodata,"a"
.p2align 6
.amdhsa_kernel %s_kernel
  .amdhsa_next_free_vgpr 256
  .amdhsa_next_free_sgpr 102
  .amdhsa_accum_offset 256
  .amdhsa_group_segment_fixed_size 0
  .amdhsa_kernarg_size 96
  .amdhsa_user_sgpr_count 2
  .amdhsa_user_sgpr_kernarg_segment_ptr 1
  .amdhsa_system_sgpr_workgroup_id_x 1
.end_amdhsa_kernel
''' % NAME
    return t, len(errs)

if __name__ == '__main__':
    opt = Opt()
    out = sys.argv[1]
    for a in sys.argv[2:]:
        kk, _, v = a.partition('=')
        setattr(opt, kk, (int(v) if v.isdigit() else v) if v else True)
    t, ne = build(opt)
    open(out, 'w').write(t)
    print('wrote', out, len(t.splitlines()), 'lines', ne, 'hazards')
```

```python
from kb import *
import build as B
from build import *

sM, sRem, sLast, sKp, sVp, sLd, sSafe, sDr, sCtx, sFl = 67, 68, 69, 70, 71, 72, 73, 74, 75, 76
sK0, sV0 = 77, 78
sNF = 63
sCx2 = 62
sN4 = 61
PF = [48, 56]; RING = 64; SB = [96, 112]; CB = 128; LACC = 144; ONES = 152; TE = 156; OA = 160
vRd, vD, vNinf = 13, 11, 9
OPK = 224
VOTE = 132128
AH = 6

INLOOP = [False]; OPT = [None]
def ld_setup(k):
    k.e('s_mul_i32 s%d, s%d, 0x%x' % (sK0, sH, 2 * KVS)); k.e('s_add_u32 s%d, s%d, 0x%x' % (sK0, sK0, WS_KV))
    k.e('s_and_b32 s%d, s%d, 3' % (sT, sW)); k.e('s_lshl_b32 s%d, s%d, 12' % (sT, sT))
    k.e('s_add_u32 s%d, s%d, s%d' % (sK0, sK0, sT))
    k.e('s_add_u32 s%d, s%d, 0x%x' % (sVp, sK0, KVS - 8192))
    k.e('s_add_u32 s%d, s%d, 8192' % (sKp, sK0))
    k.e('s_mov_b32 s%d, s%d' % (sLd, sT))
    k.e('s_cmp_lt_u32 s%d, 8192' % sT); k.e('s_cselect_b32 s%d, s%d, s%d' % (sV0, sK0, sVp))

def ld_group(k, which, first=False):
    it = []
    for j in range(4):
        def f(j=j):
            if j == 0:
                k.e('s_add_u32 m0, s%d, %d' % (sLd, which * 16384)); k.e('s_nop 0')
            so = sKp if which == 0 else (sV0 if first else sVp)
            if not (INLOOP[0] and 'atd' in OPT[0].abl):
                k.e('buffer_load_dwordx4 v%d, %s, s%d offen offset:%d %s lds' % (vL16, S(SWS), so, j * 1024, OPT[0].kvpol))
            if which == 1 and j == 3:
                k.e('s_add_u32 s%d, s%d, 16384' % (sKp, sKp)); k.e('s_add_u32 s%d, s%d, 16384' % (sVp, sVp))
                k.e('s_add_u32 s%d, s%d, 32768' % (sLd, sLd)); k.e('s_and_b32 s%d, s%d, 0x1ffff' % (sLd, sLd))
        it.append(f)
    return it

def ld_stage(k, first=False):
    for f in ld_group(k, 0) + ld_group(k, 1, first): f()

def xmax(k, v, t):
    k.e('v_mov_b32 v%d, v%d' % (t, v)); k.e('s_nop 1')
    k.e('v_permlane16_swap_b32 v%d, v%d' % (v, t)); k.e('v_max_f32 v%d, v%d, v%d' % (v, v, t))
    k.e('v_mov_b32 v%d, v%d' % (t, v)); k.e('s_nop 1')
    k.e('v_permlane32_swap_b32 v%d, v%d' % (v, t)); k.e('v_max_f32 v%d, v%d, v%d' % (v, v, t))

def rowmax(k, Sb, qb, d, t):
    r = [Sb + 8 * kb + 4 * qb + i for kb in range(2) for i in range(4)]
    k.e('v_max3_f32 v%d, v%d, v%d, v%d' % (d, r[0], r[1], r[2]))
    k.e('v_max3_f32 v%d, v%d, v%d, v%d' % (d, d, r[3], r[4]))
    k.e('v_max3_f32 v%d, v%d, v%d, v%d' % (d, d, r[5], r[6]))
    k.e('v_max_f32 v%d, v%d, v%d' % (d, d, r[7]))
    xmax(k, d, t)

def build_mask(k):
    for r in range(4):
        k.e('v_cmp_le_i32 vcc, %d, v%d' % (r, vD)); k.e('v_mov_b32 v%d, v%d' % (CB + 8 + r, vNinf)); k.e('s_nop 0')
        k.e('v_cndmask_b32 v%d, v%d, v%d, vcc' % (CB + r, vNinf, CB + r))
        k.e('v_cndmask_b32 v%d, v%d, v%d, vcc' % (CB + 12 + r, vNinf, CB + 12 + r))
    k.e('s_nop 1')

def safe_update(k, par):
    Sn = SB[par ^ 1]; P = PF[par]
    k.e('s_nop 7')
    for qb in range(2):
        d, t, f = TE, TE + 1, TE + 2
        rowmax(k, Sn, qb, d, t)
        k.e('v_max_f32 v%d, 0, v%d' % (d, d))
        k.e('v_exp_f32 v%d, -v%d' % (f, d))
        for kb in range(2):
            for i in range(4):
                k.e('v_sub_f32 v%d, v%d, v%d' % (Sn + 8 * kb + 4 * qb + i, Sn + 8 * kb + 4 * qb + i, d))
                k.e('v_sub_f32 v%d, v%d, v%d' % (CB + 8 * kb + 4 * qb + i, CB + 8 * kb + 4 * qb + i, d))
        for db in range(8):
            for i in range(4): k.e('v_mul_f32 v%d, v%d, v%d' % (OA + db * 8 + qb * 4 + i, OA + db * 8 + qb * 4 + i, f))
        for i in range(4):
            k.e('v_mul_f32 v%d, v%d, v%d' % (LACC + qb * 4 + i, LACC + qb * 4 + i, f))
            p = P + qb * 4 + i
            k.e('v_lshlrev_b32 v%d, 16, v%d' % (d + 3, p)); k.e('v_and_b32 v%d, 0xffff0000, v%d' % (t, p))
            k.e('v_mul_f32 v%d, v%d, v%d' % (d + 3, d + 3, f)); k.e('v_mul_f32 v%d, v%d, v%d' % (t, t, f))
            k.e('v_cvt_pk_bf16_f32 v%d, v%d, v%d' % (p, d + 3, t))
    k.e('s_nop 1')

BODY_OFF = [0 + 1024 * i for i in range(8)] + [16384 + 1024 * i for i in range(8)] + [8192 + 1024 * i for i in range(8)] + [24576 + 1024 * i for i in range(8)]
def rd(k, n, off):
    k.e('ds_read_b128 %s, v%d offset:%d' % (R(RING + 4 * (n % 8)), vRd, off))
def next_stage_addr(k):
    k.e('v_add_u32 v%d, 0x8000, v%d' % (vRd, vRd)); k.e('v_and_b32 v%d, 0x1ffff, v%d' % (vRd, vRd))
def sm_order(Sc):
    return [Sc + 8 * kb + 4 * qb + r for qb in range(2) for kb in range(2) for r in range(4)]
def lm(P, qb):
    return mfma(LACC + 4 * qb, ONES, P + 4 * qb, LACC + 4 * qb)

def bar(k, loader):
    if loader: k.e('s_waitcnt vmcnt(8)')
    k.e('s_barrier')

def step(k, par, loader, fast=None):
    Sc, Sn, Pc, Pp = SB[par], SB[par ^ 1], PF[par], PF[par ^ 1]
    order = sm_order(Sc)
    dm = ld_group(k, 0) + ld_group(k, 1)
    dslot = {10: dm[0:1], 11: dm[1:3], 12: dm[3:4], 13: dm[4:6], 14: dm[6:7], 15: dm[7:8]}
    for g in range(16):
        n = 16 * par + g; fr = RING + 4 * (n % 8)
        if g % 2 == 0: k.e('s_waitcnt lgkmcnt(%d)' % (AH - 2))
        ms = []
        for qb in range(2):
            if g < 8:
                kb, ks = g // 4, g % 4; D = Sn + 8 * kb + 4 * qb
                ms.append(mfma(D, fr, QF + (qb * 4 + ks) * 4, (CB + 8 * kb + 4 * qb) if ks == 0 else D))
            else:
                D = OA + (g - 8) * 8 + 4 * qb
                ms.append(mfma(D, fr, Pp + 4 * qb, D))
        k.e(ms[0])
        k.e('v_exp_f32 v%d, v%d' % (TE + g % 4, order[g]))
        k.e(ms[1])
        if par == 1 and g == 16 - AH:
            if fast is None: next_stage_addr(k)
            bar(k, loader)
        so = 0 if fast is None else (32768 * fast if n + AH < 32 else 32768 * (fast ^ 1))
        rd(k, n + AH, BODY_OFF[(n + AH) % 32] + so)
        if fast == 1 and n + AH == 31: k.e('v_xor_b32 v%d, 0x10000, v%d' % (vRd, vRd))
        if g % 2 == 0 and g >= 2:
            k.e('v_cvt_pk_bf16_f32 v%d, v%d, v%d' % (Pc + (g - 2) // 2, TE + (g - 2) % 4, TE + (g - 1) % 4))
        if g == 15: k.e('v_cvt_pk_bf16_f32 v%d, v%d, v%d' % (Pc + 7, TE + 2, TE + 3))
        if g == 11: k.e(lm(Pp, 0))
        if g == 15: k.e(lm(Pp, 1))
        if loader and par == 1:
            for f in dslot.get(g, []): f()

def tail(k, par, loader):
    Sc, Pc, Pp = SB[par], PF[par], PF[par ^ 1]
    order = sm_order(Sc)
    k.e('s_waitcnt lgkmcnt(0)')
    o1 = 16384 if par == 0 else 24576
    for i in range(8): rd(k, i, o1 + 1024 * i)
    for g in range(16):
        k.e('v_exp_f32 v%d, v%d' % (TE + g % 4, order[g]))
        if g % 2 == 0 and g >= 2:
            k.e('v_cvt_pk_bf16_f32 v%d, v%d, v%d' % (Pc + (g - 2) // 2, TE + (g - 2) % 4, TE + (g - 1) % 4))
    k.e(lm(Pp, 0))
    k.e('v_cvt_pk_bf16_f32 v%d, v%d, v%d' % (Pc + 7, TE + 2, TE + 3))
    k.e(lm(Pp, 1))
    if par == 1:
        k.e('s_waitcnt lgkmcnt(0)')
        next_stage_addr(k)
        bar(k, loader)
    o2 = 24576 if par == 0 else 16384
    dm = ld_group(k, 0) + ld_group(k, 1)
    for i in range(8):
        if par == 0: k.e('s_waitcnt lgkmcnt(7)')
        for qb in range(2):
            D = OA + i * 8 + 4 * qb; k.e(mfma(D, RING + 4 * i, Pp + 4 * qb, D))
        rd(k, i, o2 + 1024 * i)
        if loader and par == 1: dm[i]()
    k.e(lm(Pc, 0)); k.e(lm(Pc, 1))
    for i in range(8):
        k.e('s_waitcnt lgkmcnt(%d)' % (7 - i))
        for qb in range(2):
            D = OA + i * 8 + 4 * qb; k.e(mfma(D, RING + 4 * i, Pc + 4 * qb, D))

def vote(k):
    lab = k.newlab('vote')
    k.e('s_nop 7')
    k.e('v_add_f32 v%d, v%d, v%d' % (TE, LACC, LACC + 4))
    k.e('v_cmp_nge_f32 vcc, 0x4e800000, v%d' % TE)
    k.e('s_nop 4')
    k.e('s_cbranch_vccz %s' % lab)
    k.e('v_mov_b32 v%d, %d' % (TE, VOTE)); k.e('v_mov_b32 v%d, 1' % (TE + 1))
    k.e('ds_write_b32 v%d, v%d' % (TE, TE + 1)); k.e('s_waitcnt lgkmcnt(0)')
    k.label(lab)

def ctx_epilogue(k, defer=False):
    k.e('v_rcp_f32 v%d, v%d' % (TE, LACC)); k.e('v_rcp_f32 v%d, v%d' % (TE + 2, LACC + 4))
    k.e('s_add_u32 s%d, s%d, 4096' % (sCx2, sCtx))
    out = []
    for b in range(4):
        for qb in range(2):
            for hh in range(2):
                a = OA + (2 * b + hh) * 8 + 4 * qb
                for e in range(2):
                    k.e('v_pk_mul_f32 %s, %s, %s op_sel_hi:[1,0]' % (R(a + 2 * e, 2), R(a + 2 * e, 2), R(TE + 2 * qb, 2)))
            for hh in range(2):
                a = OA + (2 * b + hh) * 8 + 4 * qb; d = OPK + (b * 2 + qb) * 4 + 2 * hh
                k.e('v_cvt_pk_bf16_f32 v%d, v%d, v%d' % (d, a, a + 1)); k.e('v_cvt_pk_bf16_f32 v%d, v%d, v%d' % (d + 1, a + 2, a + 3))
            i = b * 2 + qb
            t = 'buffer_store_dwordx4 %s, v%d, %s, s%d offen offset:%d sc1' % (R(OPK + i * 4), vL16, S(SWS), sCtx if i < 4 else sCx2, (i & 3) * 1024)
            if defer: out.append(lambda t=t: k.vm(t))
            else: k.e(t)
    return out

SRP = 88
RU = 4; NRPK = -(-1456 // RU)
def repack(k, it):
    RB = 48; RO = 128
    sU = 93
    k.e('s_sub_u32 s%d, s2, %d' % (sU, 32 * OPT[0].rp0))
    k.e('s_min_u32 s%d, s%d, 0x1000' % (sU, sU))
    k.e('s_lshl_b32 s%d, s%d, 2' % (sU, sU)); k.e('s_and_b32 s%d, s%d, 3' % (sT, sW)); k.e('s_add_u32 s%d, s%d, s%d' % (sU, sU, sT))
    k.e('s_cmp_ge_u32 s%d, %d' % (sU, NRPK)); k.e('s_cbranch_scc1 L_norepack')
    k.e('s_cmp_lg_u32 s%d, 0' % sSafe); k.e('s_cbranch_scc1 L_norepack')
    k.e('s_mul_i32 s%d, s%d, %d' % (sU, sU, RU))
    for j in range(5):
        k.e('v_add_u32 v%d, %d, v0' % (TE, 64 * j))
        k.e('v_mul_u32_u24 v%d, 6554, v%d' % (TE + 1, TE)); k.e('v_lshrrev_b32 v%d, 16, v%d' % (TE + 1, TE + 1))
        k.e('v_mul_u32_u24 v%d, 1120, v%d' % (TE + 1, TE + 1)); k.e('v_lshl_add_u32 v%d, v%d, 4, v%d' % (RO + j, TE, TE + 1))
    st = dict(n=24, d=[7, 15], done=0)
    def itx():
        t = st['d'].pop(0)
        it(st['n'] - 1 - t); st['done'] = t + 1
        st['n'] += 8; st['d'].append(st['n'] - 1)
    k.e('s_mov_b32 s%d, 0x20000' % (SRP + 3))
    ldtok = []
    for e in range(RU):
        if e % OPT[0].rpl == 0: itx()
        k.e('s_add_u32 s%d, s%d, %d' % (sT, sU, e)); k.e('s_and_b32 s%d, s%d, 7' % (sT2, sT)); k.e('s_lshr_b32 s%d, s%d, 3' % (sT, sT))
        k.e('s_mul_i32 s%d, s%d, 160' % (sT2, sT2))
        k.e('s_cmp_lt_u32 s%d, 54' % sT)
        for i in range(3): k.e('s_cselect_b32 s%d, s%d, s%d' % (SRP + i, SW2 + i, SWO + i))
        k.e('s_cselect_b32 s%d, 0, 54' % sA); k.e('s_sub_u32 s%d, s%d, s%d' % (sT, sT, sA))
        k.e('s_mul_i32 s%d, s%d, %d' % (sT, sT, 32 * 1280)); k.e('s_add_u32 s%d, s%d, s%d' % (sT, sT, sT2))
        for j in range(5):
            k.e('buffer_load_dwordx4 %s, v%d, %s, s%d offen' % (R(RB + (e * 5 + j) * 4), RO + j, S(SRP), sT))
            ldtok.append(st['n']); st['n'] += 1
    c = 0
    for e in range(RU):
        for j in range(5):
            while ldtok[e * 5 + j] >= st['done'] or c >= OPT[0].rps:
                itx(); c = 0
            if j == 0:
                k.e('s_add_u32 s%d, s%d, %d' % (sB, sU, e)); k.e('s_and_b32 s%d, s%d, 7' % (sC, sB)); k.e('s_lshr_b32 s%d, s%d, 3' % (sB, sB))
                k.e('s_mul_i32 s%d, s%d, 0x%x' % (sC, sC, WP_CS)); k.e('s_mul_i32 s%d, s%d, 5120' % (sB, sB)); k.e('s_add_u32 s%d, s%d, s%d' % (sB, sB, sC))
                k.e('s_add_u32 s%d, s%d, 0x%x' % (sB, sB, WS_WP)); k.e('s_add_u32 s%d, s%d, 4096' % (sC, sB))
            k.e('buffer_store_dwordx4 %s, v%d, %s, s%d offen offset:%d sc1' % (R(RB + (e * 5 + j) * 4), vL16, S(SWS), sB if j < 4 else sC, (j & 3) * 1024))
            last = st['n']; st['n'] += 1; c += 1
    while last >= st['done']: itx()
    nit = (st['n'] - 24 - 10 * RU) // 8
    pmax = OPT[0].rp0 + (NRPK - 1) // 128
    assert 30 - 4 * pmax - 1 - nit >= 2, (nit, pmax)
    k.e('s_mov_b32 s%d, %d' % (sT, WS_FLAGS + F_H5 * 128))
    signal(k, SWS, 's%d' % sT, vT0)
    k.e('s_branch L_S_drain')
    k.label('L_norepack')

def early_setup(k):
    k.e('s_mov_b32 s%d, 0' % sSafe)
    k.e('s_mov_b32 s%d, s%d' % (sLast, sRB))
    k.e('s_mul_i32 s%d, s%d, 0x%x' % (sCtx, sRB, CTX_BS)); k.e('s_lshl_b32 s%d, s%d, 13' % (sT, sH)); k.e('s_add_u32 s%d, s%d, s%d' % (sCtx, sCtx, sT))
    k.e('s_add_u32 s%d, s%d, 0x%x' % (sCtx, sCtx, WS_CTX))
    ld_setup(k)
    p3_setup(k)

def att_init_items(k):
    it = [lambda: k.e('v_mov_b32 v%d, 0xff800000' % vNinf), lambda: k.e('v_mov_b32 v%d, v%d' % (vRd, vL16)),
          lambda: (k.e('v_and_b32 v%d, 48, v0' % vD), k.e('v_lshrrev_b32 v%d, 2, v%d' % (vD, vD))),
          lambda: (k.e('v_and_b32 v%d, 15, v0' % TE), k.e('v_sub_u32 v%d, v%d, v%d' % (vD, TE, vD)))]
    for i in range(0, 24, 2): it.append(lambda i=i: k.e('v_mov_b64 %s, 0' % R(CB + i, 2)))
    for i in range(4): it.append(lambda i=i: k.e('v_mov_b32 v%d, 0x3f803f80' % (ONES + i)))
    return it

def phase_attn(k, opt, p3_pre, p3_h3_issue, p3_h3_check, p3_preL):
    INLOOP[0] = True
    k.e('v_mov_b32 v%d, %d' % (vT0, VOTE)); k.e('ds_write_b32 v%d, v%d' % (vT0, vZ))
    k.label('L_att_start')
    for i in range(32): k.e('v_mov_b64 %s, 0' % R(OA + 2 * i, 2))
    k.e('s_lshl_b32 s%d, s%d, 1' % (sT, sP)); k.e('s_sub_u32 s%d, 32, s%d' % (sDr, sT))
    k.e('s_add_u32 s%d, s%d, 1' % (sT, sLast)); k.e('s_lshr_b32 s%d, s%d, 1' % (sT, sT)); k.e('s_sub_u32 s%d, s%d, s%d' % (sDr, sDr, sT))
    lab = k.newlab('m0')
    k.e('s_cmp_lg_u32 s%d, 0' % sLast); k.e('s_cbranch_scc1 %s' % lab)
    build_mask(k)
    k.label(lab)
    k.e('s_waitcnt vmcnt(16) lgkmcnt(0)')
    k.e('s_barrier')
    stamp(k, opt, 4)
    for i in range(8): rd(k, i, 16384 + 1024 * i)
    for i in range(8): k.e('v_mov_b32 v%d, 0' % (PF[1] + i))
    for g in range(8):
        k.e('s_waitcnt lgkmcnt(%d)' % (7 if g < 7 else 6))
        kb, ks = g // 4, g % 4
        for qb in range(2):
            D = SB[0] + 8 * kb + 4 * qb
            k.e(mfma(D, RING + 4 * g, QF + (qb * 4 + ks) * 4, (CB + 8 * kb + 4 * qb) if ks == 0 else D))
        if g < AH: rd(k, g, BODY_OFF[g])
    k.e('s_nop 7')
    for qb in range(2):
        rowmax(k, SB[0], qb, TE + qb, TE + 2)
        for kb in range(2):
            for i in range(4):
                k.e('v_sub_f32 v%d, v%d, v%d' % (SB[0] + 8 * kb + 4 * qb + i, SB[0] + 8 * kb + 4 * qb + i, TE + qb))
                k.e('v_sub_f32 v%d, 0, v%d' % (CB + 8 * kb + 4 * qb + i, TE + qb))
    lab = k.newlab('h3')
    k.e('s_cmp_lg_u32 s%d, 0' % sNoF); k.e('s_cbranch_scc1 %s' % lab)
    k.e('s_cmp_lg_u32 s%d, 0' % sSafe); k.e('s_cbranch_scc1 %s' % lab)
    k.e('s_lshl_b32 s%d, s%d, 7' % (sT, sRB)); k.e('s_add_u32 s%d, s%d, %d' % (sT, sT, WS_FLAGS + F_H3 * 128))
    k.e('s_waitcnt vmcnt(0)')
    signal(k, SWS, 's%d' % sT, vT0)
    k.label(lab)
    if opt.pf:
        lab = k.newlab('pf3')
        k.e('s_cmp_ge_u32 s%d, 4' % sW); k.e('s_cbranch_scc1 %s' % lab)
        k.e('s_lshl_b32 s%d, s2, 2' % sT); k.e('s_add_u32 s%d, s%d, s%d' % (sT, sT, sW))
        k.e('s_mul_i32 s%d, s%d, 5120' % (sT2, sT)); k.e('v_lshlrev_b32 v%d, 6, v0' % vT0)
        k.e('buffer_load_dword v8, v%d, %s, s%d offen' % (vT0, S(SWO), sT2))
        k.e('s_mov_b32 exec_hi, 0'); k.e('s_mov_b32 exec_lo, 0xffff')
        k.e('s_add_u32 s%d, s%d, 4096' % (sT2, sT2))
        k.e('buffer_load_dword v8, v%d, %s, s%d offen' % (vT0, S(SWO), sT2))
        k.e('s_mov_b64 exec, -1')
        k.e('s_mul_i32 s%d, s%d, 2160' % (sT2, sT))
        k.e('buffer_load_dword v8, v%d, %s, s%d offen' % (vT0, S(SW2), sT2))
        k.label(lab)
    k.e('s_sub_u32 s%d, s%d, 1' % (sRem, sLast)); k.e('s_mov_b32 s%d, 0' % sM); k.e('s_mov_b32 s%d, 0' % sNF)
    lab = k.newlab('ns')
    k.e('s_cmp_lg_u32 s%d, 0' % sSafe); k.e('s_cbranch_scc1 %s' % lab)
    k.e('s_cmp_lt_u32 s%d, 2' % sLast); k.e('s_cbranch_scc1 %s' % lab)
    k.e('s_mov_b32 s%d, 1' % sRem); k.e('s_sub_u32 s%d, s%d, 2' % (sM, sLast))
    k.e('s_lshr_b32 s%d, s%d, 2' % (sNF, sM)); k.e('s_and_b32 s%d, s%d, 3' % (sM, sM))
    k.label(lab)
    lab = k.newlab('m1')
    k.e('s_cmp_lg_u32 s%d, 1' % sLast); k.e('s_cbranch_scc1 %s' % lab)
    build_mask(k)
    k.label(lab)
    stamp(k, opt, 9)
    k.e('s_cmp_ge_u32 s%d, 4' % sW); k.e('s_cbranch_scc1 L_S_entry')
    for v, loader in (('L', False), ('S', True)):
        if loader:
            k.label('L_S_entry')
            k.e('s_cmp_eq_u32 s%d, 0' % sLast); k.e('s_cbranch_scc1 L_S_tail0')
        if not loader and opt.fast4:
            k.e('s_lshr_b32 s%d, s%d, 1' % (sT, sNF)); k.e('s_and_b32 s%d, s%d, 1' % (sNF, sNF))
            k.e('s_sub_u32 s%d, s%d, 1' % (sN4, sT)); k.e('s_cbranch_scc1 L_L_f2')
            k.e('.p2align 6')
            k.label('L_L_fast4')
            for b in range(4):
                for par in range(2): step(k, par, loader, b & 1)
            k.e('s_sub_u32 s%d, s%d, 1' % (sN4, sN4)); k.e('s_cbranch_scc0 L_L_fast4')
            k.label('L_L_f2')
        k.e('s_sub_u32 s%d, s%d, 1' % (sNF, sNF)); k.e('s_cbranch_scc1 L_%s_loop' % v)
        k.e('.p2align 6')
        k.label('L_%s_fast' % v)
        for b in range(2):
            for par in range(2): step(k, par, loader, b)
        k.e('s_sub_u32 s%d, s%d, 1' % (sNF, sNF)); k.e('s_cbranch_scc0 L_%s_fast' % v)
        k.label('L_%s_loop' % v)
        for par in range(2):
            step(k, par, loader)
            k.e('s_sub_u32 s%d, s%d, 1' % (sM, sM))
            if par == 0:
                k.e('s_cbranch_scc1 L_%s_h0' % v); k.label('L_%s_c0' % v)
            else:
                k.e('s_cbranch_scc0 L_%s_loop' % v)
        for par in (1, 0):
            k.label('L_%s_h%d' % (v, par))
            lab = k.newlab('nsafe')
            k.e('s_cmp_eq_u32 s%d, 0' % sSafe); k.e('s_cbranch_scc1 %s' % lab)
            safe_update(k, par)
            k.label(lab)
            k.e('s_cmp_eq_u32 s%d, 0' % sRem); k.e('s_cbranch_scc1 L_%s_tail%d' % (v, par ^ 1))
            lab = k.newlab('nmask')
            k.e('s_cmp_lg_u32 s%d, 1' % sRem); k.e('s_cbranch_scc1 %s' % lab)
            build_mask(k)
            k.label(lab)
            k.e('s_sub_u32 s%d, s%d, 1' % (sRem, sRem)); k.e('s_mov_b32 s%d, 0' % sM)
            k.e('s_branch %s' % ('L_%s_c0' % v if par == 0 else 'L_%s_loop' % v))
        for par in range(2):
            k.label('L_%s_tail%d' % (v, par))
            stamp(k, opt, 10)
            if not loader: p3_h3_issue()
            tail(k, par, loader)
            if par == 0: k.e('s_branch L_%s_done' % v)
        k.label('L_%s_done' % v)
        vote(k)
        stamp(k, opt, 11)
        if not loader:
            lp = k.newlab('dr')
            k.e('s_cmp_eq_u32 s%d, 0' % sDr); k.e('s_cbranch_scc1 L_att_end')
            k.label(lp)
            k.e('s_barrier'); k.e('s_sub_u32 s%d, s%d, 1' % (sDr, sDr)); k.e('s_cmp_lg_u32 s%d, 0' % sDr); k.e('s_cbranch_scc1 %s' % lp)
            k.e('s_branch L_att_end')
        else:
            def it(n):
                lab = k.newlab('nd')
                k.e('s_waitcnt vmcnt(%d)' % n); k.e('s_barrier')
                k.e('s_cmp_le_u32 s%d, 2' % sDr); k.e('s_cbranch_scc1 %s' % lab)
                ld_stage(k)
                k.label(lab)
                k.e('s_sub_u32 s%d, s%d, 1' % (sDr, sDr))
            it(8)
            ctx_epilogue(k)
            repack(k, it)
            def polls():
                p3_h3_issue()
                k.e('s_mov_b32 s%d, %d' % (sT2, WS_FLAGS + F_H5 * 128))
                poll(k, SWS, 's%d' % sT2, str(NRPK), vT0)
                p3_h3_check()
            lastn = 2 if opt.early2 else 1
            if opt.early2: k.e('s_cmp_eq_u32 s%d, 1' % sDr); k.e('s_cbranch_scc1 L_S_late')
            for _ in range(2):
                k.e('s_cmp_eq_u32 s%d, %d' % (sDr, lastn)); k.e('s_cbranch_scc1 L_S_final')
                it(16)
            k.label('L_S_drain')
            k.e('s_cmp_eq_u32 s%d, %d' % (sDr, lastn)); k.e('s_cbranch_scc1 L_S_final')
            it(8)
            k.e('s_branch L_S_drain')
            if opt.early2:
                k.label('L_S_late')
                polls(); k.e('s_barrier'); p3_pre(None)
                k.e('s_branch L_att_end2')
            k.label('L_S_final')
            polls()
            k.e('s_barrier')
            p3_pre(opt.early2 if opt.early2 else None)
            k.e('s_branch L_att_end2')
    k.label('L_att_end')
    p3_h3_check()
    p3_preL()
    k.label('L_att_end2')
    k.e('v_mov_b32 v%d, %d' % (vT0, VOTE))
    k.e('s_barrier')
    k.e('ds_read_b32 v%d, v%d' % (vT0, vT0))
    stamp(k, opt, 5)
    k.e('s_waitcnt lgkmcnt(0)')
    k.e('v_readfirstlane_b32 s%d, v%d' % (sT, vT0))
    k.e('s_cmp_eq_u32 s%d, 0' % sT); k.e('s_cbranch_scc1 L_att_ok')
    k.e('s_cmp_lg_u32 s%d, 0' % sSafe); k.e('s_cbranch_scc1 L_att_ok')
    k.e('s_mov_b32 s%d, 1' % sSafe)
    k.e('s_waitcnt vmcnt(0)'); k.e('s_barrier')
    for f in att_init_items(k): f()
    k.e('s_cmp_lt_u32 s%d, 4' % sW); k.e('s_cbranch_scc1 L_att_start')
    ld_setup(k); ld_stage(k, True); ld_stage(k); ld_stage(k)
    k.e('s_branch L_att_start')
    k.label('L_att_ok')

sRBP, sKH, sAh, sAc, sW2o, sWOo, sWp, sH4 = 79, 80, 81, 82, 83, 84, 85, 86
vPR = 7; vA = [vL16, 15]; vXo = 6; vPl = 10
AR = 48
PW = 16
PACC = 160
XR = 200
NST = 23; NF = 7
def set_half(opt, kh):
    global NST, NF
    NF = opt.nfe if kh == 0 else 14 - opt.nfe
    NST = NF + 16
def pslot(st): return ((st + 7) % 8) * 20480

def p3_setup(k):
    k.e('s_and_b32 s%d, s2, 1' % sKH)
    k.e('s_bfe_u32 s%d, s2, 0x20001' % sT); k.e('s_lshl_b32 s%d, s%d, 2' % (sT, sT)); k.e('s_bfe_u32 s%d, s2, 0x20003' % sT2); k.e('s_add_u32 s%d, s%d, s%d' % (sT, sT, sT2))
    k.e('s_lshl_b32 s%d, s%d, 2' % (sRBP, sT)); k.e('s_and_b32 s%d, s%d, 3' % (sA, sW)); k.e('s_add_u32 s%d, s%d, s%d' % (sRBP, sRBP, sA))
    k.e('s_lshr_b32 s%d, s%d, 2' % (sT, sW))
    k.e('s_lshl_b32 s%d, s%d, 12' % (sT2, sT))
    k.e('s_mul_i32 s%d, s%d, 0x%x' % (sAh, sRBP, H_BS)); k.e('s_add_u32 s%d, s%d, s%d' % (sAh, sAh, sT2)); k.e('s_add_u32 s%d, s%d, 0x%x' % (sAh, sAh, WS_H))
    k.e('s_mul_i32 s%d, s%d, 0x%x' % (sAc, sRBP, CTX_BS)); k.e('s_add_u32 s%d, s%d, s%d' % (sAc, sAc, sT2)); k.e('s_add_u32 s%d, s%d, 0x%x' % (sAc, sAc, WS_CTX))
    k.e('s_mul_i32 s%d, s%d, %d' % (sT2, sKH, (4 * OPT[0].nfe - 2) * 2048)); k.e('s_add_u32 s%d, s%d, s%d' % (sAh, sAh, sT2))
    k.e('s_lshl_b32 s%d, s%d, 17' % (sT2, sKH)); k.e('s_add_u32 s%d, s%d, s%d' % (sAc, sAc, sT2))
    k.e('s_lshl_b32 s%d, s%d, 1' % (sT2, sW)); k.e('s_mul_i32 s%d, s%d, 3' % (sWp, sW)); k.e('s_sub_u32 s%d, s%d, 4' % (sWp, sWp))
    k.e('s_max_i32 s%d, s%d, s%d' % (sWp, sWp, sT2)); k.e('s_lshl_b32 s%d, s%d, 10' % (sWp, sWp))
    k.e('s_lshr_b32 s%d, s2, 5' % sB); k.e('s_mul_i32 s%d, s%d, 0x%x' % (sW2o, sB, WP_CS)); k.e('s_add_u32 s%d, s%d, 0x%x' % (sW2o, sW2o, WS_WP))
    k.e('s_mul_i32 s%d, s%d, %d' % (sT2, sKH, 64 * 5120)); k.e('s_add_u32 s%d, s%d, s%d' % (sWOo, sW2o, sT2)); k.e('s_add_u32 s%d, s%d, %d' % (sWOo, sWOo, 54 * 5120))
    k.e('s_mul_i32 s%d, s%d, %d' % (sT2, sKH, (4 * OPT[0].nfe - 2) * 5120)); k.e('s_add_u32 s%d, s%d, s%d' % (sW2o, sW2o, sT2))
    k.e('s_lshl_b32 s%d, s%d, 1' % (sH4, sRBP)); k.e('s_add_u32 s%d, s%d, s%d' % (sH4, sH4, sKH)); k.e('s_lshl_b32 s%d, s%d, 7' % (sH4, sH4))
    k.e('s_add_u32 s%d, s%d, %d' % (sH4, sH4, WS_FLAGS + F_H4 * 128))
    k.e('v_add_u32 v%d, 4096, v%d' % (vA[1], vL16))
    k.e('v_lshrrev_b32 v%d, 2, v0' % vPR); k.e('v_mul_u32_u24 v%d, 160, v%d' % (vPR, vPR))
    k.e('v_and_b32 v%d, 3, v0' % vU); k.e('v_lshl_add_u32 v%d, v%d, 3, v%d' % (vPR, vU, vPR))
    k.e('s_mul_i32 s%d, s%d, 10240' % (sT2, sT)); k.e('s_add_u32 s%d, s%d, %d' % (sT2, sT2, pslot(0))); k.e('v_add_u32 v%d, s%d, v%d' % (vPR, sT2, vPR))
    k.e('s_lshl_b32 s%d, s%d, 1' % (sT2, sRBP)); k.e('s_add_u32 s%d, s%d, s%d' % (sT2, sT2, sT)); k.e('s_lshl_b32 s%d, s%d, 4' % (sT2, sT2))
    k.e('v_and_b32 v%d, 15, v0' % vU); k.e('v_add_u32 v%d, s%d, v%d' % (vU, sT2, vU)); k.e('v_mul_u32_u24 v%d, 1280, v%d' % (vXo, vU))
    k.e('v_lshrrev_b32 v%d, 4, v0' % vU); k.e('v_lshl_add_u32 v%d, v%d, 3, v%d' % (vXo, vU, vXo))
    k.e('s_mul_i32 s%d, s%d, 160' % (sT, sB)); k.e('v_add_u32 v%d, s%d, v%d' % (vXo, sT, vXo))

def p3_w_items(k, st, role, tok):
    base, rel = (sW2o, st) if st < NF else (sWOo, st - NF)
    it = []
    for j in range(2 + role):
        def f(j=j):
            if j == 0:
                k.e('s_add_u32 s%d, s%d, s%d' % (sA, base, sWp))
                if rel: k.e('s_add_u32 s%d, s%d, 0x%x' % (sA, sA, rel * 20480))
                k.e('s_add_u32 m0, s%d, %d' % (sWp, pslot(st))); k.e('s_nop 0')
            tok[('pw', st)] = k.vm('buffer_load_dwordx4 v%d, %s, s%d offen offset:%d sc1 lds' % (vL16, S(SWS), sA, j * 1024))
        it.append(f)
    return it

def p3_a_items(k, st, na, tok):
    base, rel = (sAh, st) if st < NF else (sAc, st - NF)
    it = []
    for j in range(4):
        def f(j=j):
            if j == 0: k.e('s_add_u32 s%d, s%d, %d' % (sB, base, rel * 8192))
            tok[('pa', st, j >> 1)] = k.vm('buffer_load_dwordx4 %s, v%d, %s, s%d offen offset:%d sc1' % (R(AR + (st % na) * 16 + j * 4), vL16, S(SWS), sB, j * 1024))
        it.append(f)
    return it

def poll_issue(k, soff):
    k.e('buffer_load_dword v%d, v%d, %s, %s offen sc1' % (vPl, vZ, S(SWS), soff))
def poll_check(k, soff, target, meanwhile=None):
    lab = k.newlab('pok')
    k.e('v_readfirstlane_b32 s%d, v%d' % (sT, vPl))
    k.e('s_cmp_ge_u32 s%d, %d' % (sT, target)); k.e('s_cbranch_scc1 %s' % lab)
    if meanwhile: meanwhile()
    poll(k, SWS, soff, str(target), vPl)
    k.label(lab)
def keeper_scc(k):
    k.e('s_bfe_u32 s%d, s%d, 0x10001' % (sC, sW)); k.e('s_cmp_eq_u32 s%d, s%d' % (sC, sKH))

def p3_body(k, opt, role, tok, kh):
    ksl = role
    WD = opt.wd
    NA = 7 if role else 5
    AD = NA - 1
    A0 = PA0 if role else 0
    late = {}
    if role == 0:
        stores = tok['stores']
        if opt.h4s < 0:
            assert opt.cst0 == 8
            tst = k.last_vm()
            for f in p3_w_items(k, 1, role, tok): f()
            k.wait(vm=tst)
            signal(k, SWS, 's%d' % sFl, vT0); k.vm_issued += 1
            for f in p3_a_items(k, 1, NA, tok): f()
        else:
            for f in p3_w_items(k, 1, role, tok) + p3_a_items(k, 1, NA, tok): f()
        late[0] = stores[opt.cst0:] + [lambda: tok.__setitem__('st', k.last_vm())] + p3_w_items(k, 2, role, tok) + p3_a_items(k, 2, NA, tok)
        late[1] = p3_w_items(k, 3, role, tok) + p3_a_items(k, 3, NA, tok)
        for st in range(4, WD): late[st - 2] = p3_w_items(k, st, role, tok)
        k.wait(vm=tok[('pa', 0, 0)])
        anext = 4
    else:
        signal(k, SWS, 's%d' % sFl, vT0); k.vm_issued += 1
        for st in range(1, WD):
            for f in p3_w_items(k, st, role, tok): f()
            if st >= A0 and st < min(4, NF):
                for f in p3_a_items(k, st, NA, tok): f()
        A0 = max(A0, min(4, NF))
        k.wait(vm=tok['x'])
        for i in range(20):
            k.e('v_lshlrev_b32 v%d, 16, v%d' % (PACC + 2 * i, XR + i)); k.e('v_and_b32 v%d, 0xffff0000, v%d' % (PACC + 2 * i + 1, XR + i))
        anext = A0
    k.ds_issued = k.ds_done = 0
    AHP = 5
    frags = [(st, e, cb) for st in range(NST) for e in range(2) for cb in range(5)]
    def read(n, half=None):
        st, e, cb = frags[n]
        if e == 0 and cb == 0 and st > 0 and half != 1:
            k.e('v_add_u32 v%d, 0x%x, v%d' % (vPR, (pslot(st) - pslot(st - 1)) & 0xffffffff, vPR))
        r = PW + 4 * (n % 8); off = e * 5120 + cb * 32
        if half != 1: k.ds('ds_read_b64_tr_b16 %s, v%d offset:%d' % (R(r, 2), vPR, off))
        if half != 0: tok[('pf', n)] = k.ds('ds_read_b64_tr_b16 %s, v%d offset:%d' % (R(r + 2, 2), vPR, off + 2560))
    k.e('s_barrier')
    stamp(k, opt, 6)
    for n in range(AHP): read(n)
    HC = max(NF - opt.h4d, 1)
    assert opt.h4s < HC
    for st in range(NST):
        extra = {}
        ex = list(late.get(st, []))
        lim = min(st + 4, NST - 1)
        while anext <= lim and (anext < NF or st > HC) and anext - NA < st:
            ex += p3_a_items(k, anext, NA, tok); anext += 1
        spread(extra, ex, 0, 4)
        wit = p3_w_items(k, st + WD, role, tok) if st + WD < NST else []
        for i in range(10):
            n = st * 10 + i
            _, e, cb = frags[n]
            k.wait(ds=tok[('pf', n)])
            if cb == 0: k.wait(vm=tok[('pa', st, e)])
            ms = [mfma(PACC + (cb * 2 + q) * 4, PW + 4 * (n % 8), AR + (st % NA) * 16 + e * 8 + q * 4, PACC + (cb * 2 + q) * 4) for q in range(2)]
            if st == 0 and ksl == 0 and kh == 1: ms = [None, None]
            if ms[0]: k.e(ms[0])
            if i == 10 - AHP and st < NST - 1:
                if st == HC:
                    k.wait(vm=tok['h4'])
                    def warm():
                        k.e('s_bfe_u32 s%d, s2, 0x20003' % sT); k.e('s_lshl_b32 s%d, s%d, 3' % (sT, sT)); k.e('s_add_u32 s%d, s%d, s%d' % (sT, sT, sW))
                        k.e('s_mul_i32 s%d, s%d, 10240' % (sT, sT)); k.e('s_add_u32 s%d, s%d, s%d' % (sT, sT, sWOo))
                        k.e('v_lshlrev_b32 v%d, 7, v0' % vT0)
                        k.e('buffer_load_dword v%d, v%d, %s, s%d offen sc1' % (vPl, vT0, S(SWS), sT))
                        k.e('v_and_b32 v%d, 0x7ff, v%d' % (vT0, vT0)); k.e('s_add_u32 s%d, s%d, 8192' % (sT, sT))
                        k.e('buffer_load_dword v%d, v%d, %s, s%d offen sc1' % (vPl, vT0, S(SWS), sT))
                    poll_check(k, 's%d' % sH4, 16, warm if opt.warm else None)
                k.wait(vm=tok[('pw', st + 1)])
                k.e('s_barrier')
                if opt.p3st and st in P3ST: stamp(k, opt, P3ST[st])
                if role == 0 and st == opt.h4s:
                    k.wait(vm=tok['st'])
                    signal(k, SWS, 's%d' % sFl, vT0); k.vm_issued += 1
                if st == HC - 1:
                    poll_issue(k, 's%d' % sH4); k.vm_issued += 1; tok['h4'] = k.last_vm()
            if n + AHP < len(frags): read(n + AHP, 0 if opt.split else None)
            if ms[1]: k.e(ms[1])
            if opt.split and n + AHP < len(frags): read(n + AHP, 1)
            for f in extra.get(i, []): f()
            if i >= 10 - AHP and wit: wit.pop(0)()
        assert not wit
    stamp(k, opt, 7)
    if opt.diagsleep3: k.e('s_sleep %d' % opt.diagsleep3)
    KA = [PACC + (c * 2 + ksl) * 4 for c in range(5)]; SA = [PACC + (c * 2 + 1 - ksl) * 4 for c in range(5)]
    k.e('s_mul_i32 s%d, s%d, 5120' % (sT, sW)); k.e('v_add_u32 v%d, s%d, v%d' % (vT0, sT, vL16))
    k.e('s_xor_b32 s%d, s%d, 4' % (sT2, sW)); k.e('s_mul_i32 s%d, s%d, 5120' % (sT2, sT2)); k.e('v_add_u32 v%d, s%d, v%d' % (vPl, sT2, vL16))
    k.e('s_nop 3')
    k.e('s_barrier')
    for c in range(5): k.e('ds_write_b128 v%d, %s offset:%d' % (vT0, R(SA[c]), c * 1024))
    keeper_scc(k); k.e('s_cselect_b32 s%d, 1, 0' % sC); k.e('s_xor_b32 s%d, s2, s%d' % (sT2, sC))
    k.e('s_mul_i32 s%d, s%d, 0x%x' % (sA, sT2, EX_BS)); k.e('s_add_u32 s%d, s%d, s%d' % (sA, sA, sT)); k.e('s_add_u32 s%d, s%d, 0x%x' % (sA, sA, WS_EX))
    k.e('s_lshl_b32 s%d, s%d, 7' % (sFl, sT2)); k.e('s_lshl_b32 s%d, s%d, 2' % (sT2, sW)); k.e('s_add_u32 s%d, s%d, s%d' % (sFl, sFl, sT2))
    k.e('s_add_u32 s%d, s%d, %d' % (sFl, sFl, WS_FLAGS + F_X5 * 128))
    k.e('s_waitcnt lgkmcnt(0)')
    k.e('s_barrier')
    RX = 16
    for c in range(5): k.e('ds_read_b128 %s, v%d offset:%d' % (R(RX + c * 4), vPl, c * 1024))
    keep = k.newlab('keep')
    k.e('s_cmp_lg_u32 s%d, 0' % sC); k.e('s_cbranch_scc1 %s' % keep)
    def add_sib(c):
        k.e('s_waitcnt lgkmcnt(%d)' % (4 - c))
        for e in range(2): k.e('v_pk_add_f32 %s, %s, %s' % (R(KA[c] + 2 * e, 2), R(KA[c] + 2 * e, 2), R(RX + c * 4 + 2 * e, 2)))
    for c in range(5):
        add_sib(c)
        k.e('buffer_store_dwordx4 %s, v%d, %s, s%d offen offset:%d sc1' % (R(KA[c]), vA[c >> 2], S(SWS), sA, (c & 3) * 1024))
    k.e('v_mov_b32 v%d, 1' % vT0)
    k.e('s_waitcnt vmcnt(0)')
    k.e('s_mov_b64 exec, 1')
    k.e('buffer_store_dword v%d, v%d, %s, s%d offen sc1' % (vT0, vZ, S(SWS), sFl))
    k.e('s_branch L_fin')
    k.label(keep)
    for c in range(5): add_sib(c)
    poll(k, SWS, 's%d' % sFl, '1', vPl)
    for c in range(5):
        k.e('buffer_load_dwordx4 %s, v%d, %s, s%d offen offset:%d sc1' % (R(RX + c * 4), vA[c >> 2], S(SWS), sA, (c & 3) * 1024))
    for c in range(5):
        a = KA[c]
        k.e('s_waitcnt vmcnt(4)')
        for e in range(2): k.e('v_pk_add_f32 %s, %s, %s' % (R(a + 2 * e, 2), R(a + 2 * e, 2), R(RX + c * 4 + 2 * e, 2)))
        k.e('v_cvt_pk_bf16_f32 v%d, v%d, v%d' % (a, a, a + 1)); k.e('v_cvt_pk_bf16_f32 v%d, v%d, v%d' % (a + 1, a + 2, a + 3))
        k.e('buffer_store_dwordx2 %s, v%d, %s, 0 offen offset:%d' % (R(a, 2), vXo, S(SOUT), c * 32))
    k.e('s_branch L_fin')

P3ST = {0: 1, 2: 2, 4: 3, 6: 4, 9: 9, 13: 10, 17: 11, 21: 13}
def phase_attn_p3(k, opt):
    tokS = {}; tokL = {}; trk = {}
    global PA0
    PA0 = min(opt.pa0, opt.nfe, 14 - opt.nfe)
    assert opt.early2 < PA0 and PA0 >= 4
    def h3_issue():
        k.e('s_lshl_b32 s%d, s%d, 7' % (sFl, sRBP)); k.e('s_add_u32 s%d, s%d, %d' % (sFl, sFl, WS_FLAGS + F_H3 * 128))
        poll_issue(k, 's%d' % sFl)
    def h3_check():
        k.e('s_waitcnt vmcnt(0)')
        poll_check(k, 's%d' % sFl, 27)
    def pre(barrier_at):
        k.vm_issued = k.vm_done = 0
        k.e('s_and_b32 s%d, s%d, 3' % (sT, sW)); k.e('s_mul_i32 s%d, s%d, 5120' % (sT, sT))
        k.e('s_add_u32 s%d, s%d, s%d' % (sA, sW2o, sT)); k.e('s_add_u32 m0, s%d, %d' % (sT, pslot(0))); k.e('s_nop 0')
        for j in range(5):
            if j == 4: k.e('s_add_u32 m0, s%d, %d' % (sT, pslot(0) + 4096)); k.e('s_nop 0')
            k.vm('buffer_load_dwordx4 v%d, %s, s%d offen offset:%d sc1 lds' % (vA[j >> 2], S(SWS), sA, (j & 3) * 1024))
        for f in p3_a_items(k, 0, 7, tokS): f()
        keeper_scc(k); k.e('s_cselect_b32 s%d, 0, 0x10000000' % sC)
        k.e('v_subrev_u32 v%d, %d, v%d' % (vT0, 16 * 1280, vXo))
        for c in range(5):
            for qb in range(2):
                tokS['x'] = k.vm('buffer_load_dwordx2 %s, v%d, %s, s%d offen offset:%d' % (R(XR + (c * 2 + qb) * 2, 2), vXo if qb else vT0, S(SX), sC, c * 32))
        for st in range(1, PA0):
            if st == barrier_at: k.e('s_barrier')
            for f in p3_a_items(k, st, 7, tokS): f()
        trk['S'] = (k.vm_issued, k.vm_done)
    def preL():
        k.vm_issued = k.vm_done = 0
        for f in p3_a_items(k, 0, 5, tokL): f()
        tokL['stores'] = ctx_epilogue(k, defer=True)
        for f in tokL['stores'][:opt.cst0]: f()
        for i in range(20): k.e('v_mov_b64 %s, 0' % R(PACC + 2 * i, 2))
        trk['L'] = (k.vm_issued, k.vm_done)
    phase_attn(k, opt, pre, h3_issue, h3_check, preL)
    k.e('s_lshl_b32 s%d, s%d, 1' % (sFl, sRB)); k.e('s_lshr_b32 s%d, s%d, 4' % (sT, sH)); k.e('s_add_u32 s%d, s%d, s%d' % (sFl, sFl, sT))
    k.e('s_lshl_b32 s%d, s%d, 7' % (sFl, sFl)); k.e('s_add_u32 s%d, s%d, %d' % (sFl, sFl, WS_FLAGS + F_H4 * 128))
    k.label('L_pub2')
    k.e('s_cmp_ge_u32 s%d, 4' % sW); k.e('s_cbranch_scc1 L_p3_S')
    for role, tk, nm in ((0, tokL, 'L'), (1, tokS, 'S')):
        if role: k.label('L_p3_S')
        k.e('s_cmp_lg_u32 s%d, 0' % sKH); k.e('s_cbranch_scc1 L_p3_%s1' % nm)
        for kh in range(2):
            if kh: k.label('L_p3_%s1' % nm)
            set_half(opt, kh)
            k.vm_issued, k.vm_done = trk[nm]
            p3_body(k, opt, role, dict(tk), kh)
    k.label('L_fin')
    stamp(k, opt, 8)
```

```python
import sys, os
sys.path.insert(0, os.path.dirname(os.path.abspath(__file__)))
from kb import *

NAME = 'parallel_sum__compressed_kv_cla__dense_activation_relu__prompt'
WS_FLAGS = 0
WS_XN = 0x20000;   XN_BS = 40960
WS_H = WS_XN + 64 * XN_BS;   H_BS = 0x1B000
WS_KV = WS_H + 64 * H_BS;  KVS = 0x83000
WS_CTX = WS_KV + 64 * KVS; CTX_BS = 0x43000
WS_EX = WS_CTX + 64 * CTX_BS; EX_BS = 0x14C00
WS_WP = WS_EX + 256 * EX_BS; WP_CS = 183 * 5120 + 3072
WS_DBGQ = 0x6000000
WS_STAMP = 0x7000000
assert WS_WP + 8 * WP_CS <= WS_DBGQ
F_H2, F_H3, F_H4, F_X5, F_H5 = 0, 32, 96, 352, 608
SX, SCKV, SWQ, SWUK, SWUV, SWO, SW1, SW2, SOUT, SDBG, SWS = 4, 8, 12, 16, 20, 24, 28, 32, 36, 40, 44
sW, sH, sP, sRB = 48, 49, 50, 51
sW4096, sW1056 = 52, 53
sA, sB, sC, sT, sT2 = 54, 55, 56, 57, 58
sXN, sKst, sVst, sHst = 59, 60, 61, 62
sSc = 64
sSpin = 66
sRot = 63
sF, sNoF = 3, 92
KV_C = [0, 66560]; KV_W = [32768, 99328]
QA, QB, QC = 138496, 113152, 87808
QSLOT = [QA, QC, QB]
LN_BUF = QA; LN_STRIDE = 1296
LDS_BYTES = 163840
vL16, vWD, vW1D, vZ = 1, 2, 3, 4
vT0, vT3 = 5, 8
vG, vI, vU, vV = 16, 17, 18, 19
XR_LN = [8, 13, 14, 126, 127]
vWQR = [9, 10]
vW1R = [11, 12]
vCD = [112, 113, 114, 115]
vCR = [[116, 117], [118, 119]]
vWR = [120, 121]
ACCK, ACCV = 128, 192
CF = [16, 64]; WF = [48, 96]

class Opt:
    stamps = False
    dumpq = False
    stop = None
    pf = 8
    diagsleep0 = 0
    diagsleep1 = 0
    diagsleep3 = 0
    diagsleep = 0
    split = 1
    qah = 5
    lnfirst = 0
    pfqr = 2
    pfqs = 12345
    skipm = 0x20202022
    rot = 0
    h4d = 4
    h4s = -1
    cst0 = 8
    pa0 = 7
    early2 = 3
    nfe = 8
    fast4 = 0
    warm = 0
    exbf = 0
    wd = 5
    p3st = 0
    rp0 = 1
    rpl = 2
    rps = 5
    prio = 'q7'
    prio2 = None
    qst = 0
    kvst = 0
    pfd = 2
    pf0 = 2
    pfp = 2
    dstamps = False
    pfi = 128
    kvpol = 'sc1'
    only = None
    pfc = 0
    abl = ''
    kvw = 28
    stw = 0
    hack = 0
    pfg = 64
    pfq = 1
    h2poll = 10
    stsched = 3322222
    early = 0
    stper = 2
    h2sig = 7

def emit_interleaved(k, mf, fill, tok):
    for i, (txt, needs) in enumerate(mf):
        need = [tok[x] for x in needs if x in tok]
        if need: k.wait(ds=max(need))
        k.e(txt)
        for f in fill.get(i, []): f()

def spread(fill, items, first, last):
    n = len(items)
    for j, it in enumerate(items):
        s = first + (j * (last - first + 1)) // max(n, 1)
        fill.setdefault(s, []).append(it)

def stamp(k, opt, idx):
    vS = 3 if 'L_q_done:' in k.lines else 5
    if opt.dstamps:
        m = {0: 1, 1: 2, 2: 3, 3: 4, 9: 5, 5: 6, 7: 7, 8: 8}
        if idx not in m: return
        lab = k.newlab('st')
        k.e('s_cmp_lg_u32 s%d, %d' % (sW, opt.stw)); k.e('s_cbranch_scc1 %s' % lab)
        k.e('s_cmp_lg_u32 s2, 77'); k.e('s_cbranch_scc1 %s' % lab)
        k.e('s_memrealtime s[100:101]'); k.e('s_memtime s[94:95]'); k.e('s_waitcnt lgkmcnt(0)')
        k.e('v_mov_b32 v%d, s100' % vS)
        k.e('buffer_store_dword v%d, v%d, %s, 0 offen offset:%d' % (vS, vZ, S(SDBG), m[idx] * 4))
        if m[idx] == 1:
            k.e('v_mov_b32 v%d, s96' % vS)
            k.e('buffer_store_dword v%d, v%d, %s, 0 offen offset:%d' % (vS, vZ, S(SDBG), 36))
        if m[idx] >= 3:
            k.e('v_mov_b32 v%d, s94' % vS)
            k.e('buffer_store_dword v%d, v%d, %s, 0 offen offset:%d' % (vS, vZ, S(SDBG), (m[idx] + 7) * 4))
        k.label(lab)
        return
    if not opt.stamps: return
    if opt.p3st and idx in (1, 2, 3, 4, 9, 10, 11, 13) and 'L_pub2:' not in k.lines: return
    lab = k.newlab('st')
    k.e('s_cmp_lg_u32 s%d, %d' % (sW, opt.stw)); k.e('s_cbranch_scc1 %s' % lab)
    k.e('s_memrealtime s[100:101]'); k.e('s_memtime s[94:95]'); k.e('s_waitcnt lgkmcnt(0)')
    k.e('s_lshl_b32 s99, s2, 7'); k.e('s_add_u32 s99, s99, 0x%x' % (WS_STAMP + idx * 4))
    k.e('v_mov_b32 v%d, s100' % vS)
    k.e('buffer_store_dword v%d, v%d, %s, s99 offen' % (vS, vZ, S(SWS)))
    k.e('v_mov_b32 v%d, s94' % vS)
    k.e('buffer_store_dword v%d, v%d, %s, s99 offen offset:64' % (vS, vZ, S(SWS)))
    if idx == 0:
        k.e('v_mov_b32 v%d, s96' % vS)
        k.e('buffer_store_dword v%d, v%d, %s, s99 offen offset:48' % (vS, vZ, S(SWS)))
    k.label(lab)

def poll(k, srd, soff, target, vtmp):
    lp = k.newlab('poll'); dn = k.newlab('polld')
    k.e('s_mov_b32 s%d, 0x10000' % sSpin)
    k.label(lp)
    k.e('buffer_load_dword v%d, v%d, %s, %s offen sc1' % (vtmp, vZ, S(srd), soff))
    k.e('s_waitcnt vmcnt(0)')
    k.e('v_readfirstlane_b32 s%d, v%d' % (sT, vtmp))
    k.e('s_cmp_ge_u32 s%d, %s' % (sT, target))
    k.e('s_cbranch_scc1 %s' % dn)
    k.e('s_sleep 2')
    k.e('s_sub_u32 s%d, s%d, 1' % (sSpin, sSpin))
    k.e('s_cmp_lg_u32 s%d, 0' % sSpin)
    k.e('s_cbranch_scc1 %s' % lp)
    k.label(dn)

def signal(k, srd, soff, vtmp):
    k.e('v_mov_b32 v%d, 1' % vtmp)
    k.e('s_mov_b64 exec, 1')
    k.e('buffer_atomic_add v%d, v%d, %s, %s offen' % (vtmp, vZ, S(srd), soff))
    k.e('s_mov_b64 exec, -1')

def setprio_young(k, p):
    lab = k.newlab('pr')
    k.e('s_cmp_lt_u32 s%d, 4' % sW); k.e('s_cbranch_scc1 %s' % lab)
    k.e('s_setprio %d' % p)
    k.label(lab)

def signal_w0(k, srd, sreg, vtmp):
    k.e('s_cmp_eq_u32 s%d, 0' % sW); k.e('s_cselect_b32 s%d, s%d, 0x10000000' % (sreg, sreg))
    signal(k, srd, 's%d' % sreg, vtmp)
    k.vm_issued += 1

def dma(k, voff, srd, soff, m0base, m0imm):
    k.e('s_add_u32 m0, s%d, %d' % (m0base, m0imm))
    k.e('s_nop 0')
    return k.vm('buffer_load_dwordx4 v%d, %s, %s offen lds' % (voff, S(srd), soff))

vPf = 123; vPfA = 122
sPc = 93
CTOUCH = [False]
def pf_paced_setup(k):
    k.e('s_lshl_b32 s%d, s%d, 3' % (sT, sP)); k.e('s_add_u32 s%d, s%d, s%d' % (sT, sT, sW)); k.e('s_lshl_b32 s%d, s%d, 13' % (sT, sT))
    k.e('s_lshl_b32 s%d, s%d, 8' % (sT2, sH)); k.e('s_add_u32 s%d, s%d, s%d' % (sT, sT, sT2))
    k.e('v_and_b32 v%d, 1, v0' % vPfA); k.e('v_lshlrev_b32 v%d, 7, v%d' % (vPfA, vPfA)); k.e('v_add_u32 v%d, s%d, v%d' % (vPfA, sT, vPfA))
def pf_paced(k, st):
    def f0():
        k.e('s_add_u32 s%d, s%d, %d' % (sPc, sRot, st)); k.e('s_and_b32 s%d, s%d, 7' % (sPc, sPc)); k.e('s_lshl_b32 s%d, s%d, 19' % (sPc, sPc))
        k.vm('buffer_load_dword v%d, v%d, %s, s%d offen' % (vPf, vPfA, S(SWUK), sPc))
    def f1():
        k.vm('buffer_load_dword v%d, v%d, %s, s%d offen' % (vPf, vPfA, S(SWUV), sPc))
        if CTOUCH[0]:
            k.e('s_lshl_b32 s%d, s2, 3' % sPc); k.e('s_add_u32 s%d, s%d, s%d' % (sPc, sPc, sW)); k.e('s_lshl_b32 s%d, s%d, 10' % (sPc, sPc))
            k.vm('buffer_load_dword v%d, v%d, %s, s%d offen offset:%d' % (vPf, vZ, S(SCKV), sPc, st * 128))
    return [f0, f1]

vPq, vPw = 124, 125
def pfq_setup(k, R_):
    k.e('s_mul_i32 s%d, s%d, 80' % (sT, sP)); k.e('s_mul_i32 s%d, s%d, 10' % (sT2, sW)); k.e('s_add_u32 s%d, s%d, s%d' % (sT, sT, sT2))
    k.e('v_lshrrev_b32 v%d, 1, v0' % vPq); k.e('v_min_u32 v%d, %d, v%d' % (vPq, R_ - 1, vPq)); k.e('v_add_u32 v%d, s%d, v%d' % (vPq, sT, vPq))
    k.e('v_mul_u32_u24 v%d, 3456, v%d' % (vPw, vPq))
    k.e('v_and_b32 v%d, 1, v0' % vV); k.e('v_lshlrev_b32 v%d, 13, v%d' % (vPq, vPq)); k.e('v_lshl_add_u32 v%d, v%d, 7, v%d' % (vPq, vV, vPq))
    k.e('s_lshl_b32 s%d, s%d, 7' % (sT, sF)); k.e('v_add_u32 v%d, s%d, v%d' % (vPw, sT, vPw))
    k.e('s_lshl_b32 s%d, s%d, 8' % (sT, sH)); k.e('v_add_u32 v%d, s%d, v%d' % (vPq, sT, vPq))
def pfq_paced(k, row0):
    def f0():
        k.e('s_mov_b32 s%d, %d' % (sT, row0 * 8192))
        k.vm('buffer_load_dword v%d, v%d, %s, s%d offen' % (vPf, vPq, S(SWQ), sT))
    def f1():
        k.e('s_mov_b32 s%d, %d' % (sT, row0 * 3456))
        k.vm('buffer_load_dword v%d, v%d, %s, s%d offen' % (vPf, vPw, S(SW1), sT))
    return [f0, f1]

def prologue(k, opt):
    if opt.stamps or opt.dstamps: k.e('s_memrealtime s[96:97]')
    k.e('s_cmp_ge_u32 s2, 256'); k.e('s_cbranch_scc1 L_exit')
    if opt.diagsleep0: k.e('s_sleep %d' % opt.diagsleep0)
    k.e('s_load_dwordx16 s[64:79], s[0:1], 0')
    k.e('s_load_dwordx8 s[80:87], s[0:1], 64')
    k.e('v_lshrrev_b32 v%d, 6, v0' % vG)
    k.e('v_and_b32 v0, 63, v0')
    k.e('v_readfirstlane_b32 s%d, v%d' % (sW, vG))
    k.e('v_lshlrev_b32 v%d, 4, v0' % vL16)
    k.e('v_mov_b32 v%d, 0' % vZ)
    k.e('s_and_b32 s%d, s2, 7' % sT); k.e('s_lshr_b32 s%d, s2, 3' % sT2)
    k.e('s_lshl_b32 s%d, s%d, 2' % (sH, sT)); k.e('s_and_b32 s%d, s%d, 3' % (sT, sT2)); k.e('s_add_u32 s%d, s%d, s%d' % (sH, sH, sT))
    k.e('s_lshr_b32 s%d, s%d, 2' % (sP, sT2))
    k.e('s_lshr_b32 s%d, 0x%x, s%d' % (sNoF, opt.skipm, sH)); k.e('s_and_b32 s%d, s%d, 1' % (sNoF, sNoF))
    k.e('s_bfm_b32 s%d, s%d, 0' % (sF, sH)); k.e('s_and_b32 s%d, s%d, 0x%x' % (sF, sF, opt.skipm)); k.e('s_bcnt1_i32_b32 s%d, s%d' % (sF, sF))
    k.e('s_sub_u32 s%d, s%d, s%d' % (sF, sH, sF))
    if opt.rot == 1: k.e('s_lshl_b32 s%d, s%d, 1' % (sRot, sH))
    elif opt.rot == 2: k.e('s_lshr_b32 s%d, s%d, 2' % (sRot, sH)); k.e('s_lshl_b32 s%d, s%d, 1' % (sT, sH)); k.e('s_add_u32 s%d, s%d, s%d' % (sRot, sRot, sT))
    else: k.e('s_mov_b32 s%d, 0' % sRot)
    k.e('s_sub_u32 s%d, 15, s%d' % (sT, sP))
    k.e('s_cmp_lt_u32 s%d, 4' % sW); k.e('s_cselect_b32 s%d, s%d, s%d' % (sT, sT, sP))
    k.e('s_lshl_b32 s%d, s%d, 2' % (sRB, sT)); k.e('s_and_b32 s%d, s%d, 3' % (sT, sW)); k.e('s_add_u32 s%d, s%d, s%d' % (sRB, sRB, sT))
    k.e('s_lshl_b32 s%d, s%d, 12' % (sW4096, sW)); k.e('s_mul_i32 s%d, s%d, 1056' % (sW1056, sW))
    k.e('v_lshrrev_b32 v%d, 4, v0' % vG); k.e('v_and_b32 v%d, 15, v0' % vI)
    k.e('v_lshrrev_b32 v%d, 3, v0' % vU); k.e('v_and_b32 v%d, 7, v0' % vV)
    k.e('s_lshl_b32 s%d, s%d, 8' % (sT, sP)); k.e('s_lshl_b32 s%d, s%d, 5' % (sT2, sW)); k.e('s_add_u32 s%d, s%d, s%d' % (sT, sT, sT2))
    k.e('v_add_u32 v%d, s%d, v%d' % (vU, sT, vU)); k.e('v_lshlrev_b32 v%d, 10, v%d' % (vU, vU))
    k.e('v_xor_b32 v%d, v%d, v%d' % (vV, vV, vG)); k.e('v_lshlrev_b32 v%d, 4, v%d' % (vV, vV))
    k.e('v_add_u32 v%d, v%d, v%d' % (vCD[0], vU, vV))
    k.e('v_xor_b32 v%d, 64, v%d' % (vCD[1], vCD[0])); k.e('v_add_u32 v%d, 0x2000, v%d' % (vCD[1], vCD[1]))
    k.e('v_add_u32 v%d, 0x4000, v%d' % (vCD[2], vCD[0])); k.e('v_add_u32 v%d, 0x4000, v%d' % (vCD[3], vCD[1]))
    k.e('v_and_b32 v%d, 1, v%d' % (vU, vG)); k.e('v_lshlrev_b32 v%d, 2, v%d' % (vU, vU))
    k.e('v_lshrrev_b32 v%d, 1, v%d' % (vV, vG)); k.e('v_lshl_add_u32 v%d, v%d, 4, v%d' % (vU, vV, vU))
    k.e('s_lshr_b32 s%d, s%d, 2' % (sT, sW)); k.e('s_lshl_b32 s%d, s%d, 3' % (sT, sT)); k.e('s_and_b32 s%d, s%d, 3' % (sT2, sW)); k.e('s_add_u32 s%d, s%d, s%d' % (sT, sT, sT2))
    k.e('v_add_u32 v%d, s%d, v%d' % (vU, sT, vU)); k.e('v_lshlrev_b32 v%d, 13, v%d' % (vU, vU))
    k.e('v_lshl_add_u32 v%d, v%d, 4, v%d' % (vU, vI, vU))
    k.e('s_lshl_b32 s%d, s%d, 8' % (sT, sH)); k.e('v_add_u32 v%d, s%d, v%d' % (vWD, sT, vU))
    k.e('s_waitcnt lgkmcnt(0)')
    sizes = [(SX, 64, 2621440), (SCKV, 66, 2097152), (SWQ, 68, 5242880), (SWUK, 70, 4194304), (SWUV, 72, 4194304), (SWO, 74, 5242880),
             (SW1, 78, 2211840), (SW2, 80, 2211840), (SOUT, 82, 2621440), (SDBG, 84, 256), (SWS, 86, 0x10000000)]
    order = [1, 3, 4, 0, 10, 2, 6, 9, 5, 7, 8]
    def mk(i):
        d, p, n = sizes[i]
        k.e('s_mov_b32 s%d, s%d' % (d, p)); k.e('s_and_b32 s%d, s%d, 0xffff' % (d + 1, p + 1))
        k.e('s_mov_b32 s%d, 0x%x' % (d + 2, n)); k.e('s_mov_b32 s%d, 0x20000' % (d + 3))
    for i in order[:4]: mk(i)
    return lambda: [mk(i) for i in order[4:]]

def kv_dma_items(k, s):
    b = s & 1
    it = []
    def setoff():
        k.e('s_add_u32 s%d, s%d, %d' % (sA, sRot, s)); k.e('s_and_b32 s%d, s%d, 7' % (sA, sA))
        k.e('s_lshl_b32 s%d, s%d, 19' % (sB, sA)); k.e('s_lshl_b32 s%d, s%d, 7' % (sA, sA)); k.e('s_add_u32 s%d, s%d, 0x40000' % (sC, sB))
    first = [True]
    def mkc(jj):
        def f():
            if first[0]: setoff(); first[0] = False
            dma(k, vCD[jj], SCKV, 's%d' % sA, sW4096, KV_C[b] + jj * 1024)
        return f
    def mkw(mat, ks):
        def f():
            dma(k, vWD, [SWUK, SWUV][mat], 's%d' % [sB, sC][ks], sW1056, KV_W[b] + (mat * 2 + ks) * 8448)
        return f
    it += [mkc(0), mkw(0, 0), mkc(1), mkw(1, 0), mkc(2), mkw(0, 1), mkc(3), mkw(1, 1)]
    return it

def kv_read_items(k, t, tok):
    s, ks, rb = t >> 1, t & 1, t & 1
    lb = s & 1
    it = []
    for mat in range(2):
        for db in range(2):
            for hf in range(2):
                def f(mat=mat, db=db, hf=hf):
                    r = WF[rb] + (mat * 2 + db) * 4 + hf * 2
                    tok[('w', t, mat, db)] = k.ds('ds_read_b64_tr_b16 %s, v%d offset:%d' % (R(r, 2), vWR[lb], (mat * 2 + ks) * 8448 + hf * 256 + db * 32))
                it.append(f)
    for kb in range(8):
        def f(kb=kb):
            tok[('c', t, kb)] = k.ds('ds_read_b128 %s, v%d offset:%d' % (R(CF[rb] + kb * 4), vCR[lb][ks], kb * 2048))
        it.append(f)
    return it

def rowsum64(k, v, t):
    for r in (8, 4, 2, 1):
        k.e('s_nop 1')
        k.e('v_add_f32_dpp v%d, v%d, v%d row_ror:%d row_mask:0xf bank_mask:0xf' % (v, v, v, r))
    k.e('v_mov_b32 v%d, v%d' % (t, v)); k.e('s_nop 1')
    k.e('v_permlane16_swap_b32 v%d, v%d' % (v, t)); k.e('v_add_f32 v%d, v%d, v%d' % (v, v, t))
    k.e('v_mov_b32 v%d, v%d' % (t, v)); k.e('s_nop 1')
    k.e('v_permlane32_swap_b32 v%d, v%d' % (v, t)); k.e('v_add_f32 v%d, v%d, v%d' % (v, v, t))

def rbf(k, v):
    k.e('v_cvt_pk_bf16_f32 v%d, v%d, v%d' % (v, v, v)); k.e('v_lshlrev_b32 v%d, 16, v%d' % (v, v))

def phase_ln_kv(k, opt, rest_srds):
    import attn
    tok = {}
    if not opt.lnfirst:
        for f in kv_dma_items(k, 0): f()
        t_st0 = k.last_vm()
    X = XR_LN; F = 24
    k.e('s_lshl_b32 s%d, s2, 3' % sT); k.e('s_add_u32 s%d, s%d, s%d' % (sT, sT, sW)); k.e('s_mul_i32 s%d, s%d, 1280' % (sT, sT))
    k.e('v_lshlrev_b32 v%d, 2, v0' % vU)
    for j in range(5):
        k.vm('buffer_load_dword v%d, v%d, %s, s%d offen offset:%d' % (X[j], vU, S(SX), sT, j * 256))
    t_ln = k.last_vm()
    if opt.lnfirst:
        for f in kv_dma_items(k, 0): f()
        t_st0 = k.last_vm()
    for f in kv_dma_items(k, 1): f()
    t_st1 = k.last_vm()
    rest_srds()
    if opt.prio == 'all': setprio_young(k, 1)
    stamp(k, opt, 0)
    if opt.pfi:
        lab = k.newlab('pfi')
        k.e('s_cmp_lg_u32 s%d, 6' % sW); k.e('s_cbranch_scc1 %s' % lab)
        k.e('s_getpc_b64 s[98:99]')
        k.label('L_pc')
        k.e('s_lshr_b32 s%d, s2, 3' % sT); k.e('s_and_b32 s%d, s%d, 15' % (sT, sT)); k.e('s_mul_i32 s%d, s%d, %d' % (sT, sT, opt.pfi * 64))
        k.e('v_mul_u32_u24 v%d, %d, v0' % (vPfA, opt.pfi)); k.e('v_add_u32 v%d, s%d, v%d' % (vPfA, sT, vPfA)); k.e('v_and_b32 v%d, 0xfffffffc, v%d' % (vPfA, vPfA))
        k.e('v_min_u32 v%d, L_exit-L_pc, v%d' % (vPfA, vPfA))
        k.e('global_load_dword v%d, v%d, s[98:99]' % (vPf, vPfA))
        k.label(lab)
    lab = k.newlab('zf')
    k.e('s_cmp_lg_u32 s%d, 7' % sW); k.e('s_cbranch_scc1 %s' % lab)
    k.e('s_lshl_b32 s%d, s2, 9' % sT)
    k.e('buffer_store_dword v%d, v%d, %s, s%d offen sc1' % (vZ, vU, S(SWS), sT))
    k.e('buffer_store_dword v%d, v%d, %s, s%d offen offset:256 sc1' % (vZ, vU, S(SWS), sT))
    k.label(lab)
    k.e('v_lshrrev_b32 v%d, 1, v%d' % (vV, vI)); k.e('v_xor_b32 v%d, v%d, v%d' % (vV, vV, vG)); k.e('v_lshlrev_b32 v%d, 4, v%d' % (vV, vV))
    k.e('v_lshl_add_u32 v%d, v%d, 7, v%d' % (vV, vI, vV))
    k.e('s_lshr_b32 s%d, s%d, 2' % (sT, sW)); k.e('s_lshl_b32 s%d, s%d, 14' % (sT, sT))
    k.e('v_add_u32 v%d, s%d, v%d' % (vCR[0][0], sT, vV)); k.e('v_xor_b32 v%d, 64, v%d' % (vCR[0][1], vCR[0][0]))
    k.e('v_add_u32 v%d, %d, v%d' % (vCR[1][0], KV_C[1], vCR[0][0])); k.e('v_add_u32 v%d, %d, v%d' % (vCR[1][1], KV_C[1], vCR[0][1]))
    k.e('v_lshrrev_b32 v%d, 2, v%d' % (vV, vI)); k.e('v_and_b32 v22, 1, v%d' % vG); k.e('v_lshl_add_u32 v%d, v22, 2, v%d' % (vV, vV))
    k.e('v_lshrrev_b32 v22, 1, v%d' % vG); k.e('v_lshlrev_b32 v22, 9, v22')
    k.e('v_and_b32 v23, 3, v%d' % vI); k.e('v_lshl_add_u32 v22, v23, 3, v22')
    k.e('v_mul_u32_u24 v23, 1056, v%d' % vV); k.e('v_add_u32 v23, v23, v22')
    k.e('v_add_u32 v%d, %d, v23' % (vWQR[0], QC)); k.e('v_add_u32 v%d, %d, v23' % (vWQR[1], QA))
    k.e('s_and_b32 s%d, s%d, 3' % (sT, sW)); k.e('s_lshl_b32 s%d, s%d, 6' % (sT, sT))
    k.e('v_add_u32 v23, s%d, v23' % sT)
    k.e('v_add_u32 v%d, %d, v23' % (vWR[0], KV_W[0])); k.e('v_add_u32 v%d, %d, v23' % (vWR[1], KV_W[1]))
    k.e('v_lshrrev_b32 v23, 1, v%d' % vV); k.e('v_mul_u32_u24 v23, 1056, v23'); k.e('v_add_u32 v23, v23, v22')
    k.e('v_and_b32 v%d, 1, v%d' % (vV, vV)); k.e('v_lshl_add_u32 v23, v%d, 7, v23' % vV)
    k.e('v_add_u32 v%d, %d, v23' % (vW1R[0], QC + 16896)); k.e('v_add_u32 v%d, %d, v23' % (vW1R[1], QA + 16896))
    k.e('v_bfe_u32 v22, v0, 3, 1'); k.e('v_bfe_u32 v23, v0, 4, 1'); k.e('v_lshl_add_u32 v22, v23, 2, v22')
    k.e('v_lshrrev_b32 v23, 5, v0'); k.e('v_lshl_add_u32 v22, v23, 4, v22')
    k.e('s_and_b32 s%d, s%d, 1' % (sT, sW)); k.e('s_lshl_b32 s%d, s%d, 1' % (sT, sT))
    k.e('s_bfe_u32 s%d, s%d, 0x10001' % (sT2, sW)); k.e('s_lshl_b32 s%d, s%d, 3' % (sT2, sT2)); k.e('s_add_u32 s%d, s%d, s%d' % (sT, sT, sT2))
    k.e('s_lshr_b32 s%d, s%d, 2' % (sT2, sW)); k.e('s_lshl_b32 s%d, s%d, 5' % (sT2, sT2)); k.e('s_add_u32 s%d, s%d, s%d' % (sT, sT, sT2))
    k.e('v_add_u32 v22, s%d, v22' % sT); k.e('v_mul_u32_u24 v22, 3456, v22')
    k.e('v_and_b32 v23, 7, v0'); k.e('v_lshl_add_u32 v22, v23, 4, v22')
    k.e('s_lshl_b32 s%d, s%d, 7' % (sT, sF)); k.e('v_add_u32 v%d, s%d, v22' % (vW1D, sT))
    k.e('s_mul_i32 s%d, s%d, %d' % (sXN, sRB, XN_BS)); k.e('s_add_u32 s%d, s%d, 0x%x' % (sXN, sXN, WS_XN))
    k.e('s_mul_i32 s%d, s%d, 0x%x' % (sKst, sH, 2 * KVS)); k.e('s_add_u32 s%d, s%d, 0x%x' % (sKst, sKst, WS_KV))
    k.e('s_lshl_b32 s%d, s%d, 16' % (sT, sP)); k.e('s_add_u32 s%d, s%d, s%d' % (sKst, sKst, sT))
    k.e('s_lshr_b32 s%d, s%d, 2' % (sT, sW)); k.e('s_lshl_b32 s%d, s%d, 15' % (sT, sT)); k.e('s_add_u32 s%d, s%d, s%d' % (sKst, sKst, sT))
    k.e('s_and_b32 s%d, s%d, 3' % (sT, sW)); k.e('s_lshl_b32 s%d, s%d, 11' % (sT2, sT)); k.e('s_add_u32 s%d, s%d, s%d' % (sVst, sKst, sT2))
    k.e('s_add_u32 s%d, s%d, 0x%x' % (sVst, sVst, KVS))
    k.e('s_lshl_b32 s%d, s%d, 10' % (sT, sT)); k.e('s_add_u32 s%d, s%d, s%d' % (sKst, sKst, sT))
    k.e('s_mul_i32 s%d, s%d, 0x%x' % (sHst, sRB, H_BS)); k.e('s_lshl_b32 s%d, s%d, 12' % (sT, sF)); k.e('s_add_u32 s%d, s%d, s%d' % (sHst, sHst, sT))
    k.e('s_add_u32 s%d, s%d, 0x%x' % (sHst, sHst, WS_H))
    k.e('s_mov_b32 s%d, 0x3e0293ee' % sSc); k.e('s_mov_b32 s%d, 0x3e0293ee' % (sSc + 1))
    pf_paced_setup(k)
    pfq_setup(k, opt.pfqr)
    attn.early_setup(k)
    def layer_norm():
        k.wait(vm=t_ln)
        for j in range(5):
            k.e('v_lshlrev_b32 v%d, 16, v%d' % (F + 2 * j, X[j])); k.e('v_and_b32 v%d, 0xffff0000, v%d' % (F + 2 * j + 1, X[j]))
        k.e('v_add_f32 v34, v%d, v%d' % (F, F + 1))
        for j in range(2, 10): k.e('v_add_f32 v34, v34, v%d' % (F + j))
        rowsum64(k, 34, 35)
        k.e('v_mul_f32 v34, 0x3acccccd, v34')
        k.e('v_sub_f32 v36, v%d, v34' % F); k.e('v_mul_f32 v37, v36, v36')
        for j in range(1, 10):
            k.e('v_sub_f32 v36, v%d, v34' % (F + j)); k.e('v_fmac_f32 v37, v36, v36')
        rowsum64(k, 37, 35)
        k.e('v_mul_f32 v37, 0x3acccccd, v37')
        rbf(k, 34); rbf(k, 37)
        k.e('v_add_f32 v37, 0x3727c5ac, v37'); rbf(k, 37)
        k.e('v_sqrt_f32 v37, v37'); k.e('s_nop 0'); rbf(k, 37)
        k.e('v_rcp_f32 v37, v37')
        for j in range(10): k.e('v_sub_f32 v%d, v%d, v34' % (F + j, F + j))
        for j in range(5): k.e('v_cvt_pk_bf16_f32 v%d, v%d, v%d' % (X[j], F + 2 * j, F + 2 * j + 1))
        for j in range(5):
            k.e('v_lshlrev_b32 v%d, 16, v%d' % (F + 2 * j, X[j])); k.e('v_and_b32 v%d, 0xffff0000, v%d' % (F + 2 * j + 1, X[j]))
        for j in range(10): k.e('v_mul_f32 v%d, v%d, v37' % (F + j, F + j))
        for j in range(5): k.e('v_cvt_pk_bf16_f32 v%d, v%d, v%d' % (X[j], F + 2 * j, F + 2 * j + 1))
        k.e('s_mul_i32 s%d, s%d, %d' % (sT, sW, LN_STRIDE)); k.e('s_add_u32 s%d, s%d, %d' % (sT, sT, LN_BUF))
        k.e('v_lshl_add_u32 v38, v0, 2, s%d' % sT)
        for j in range(5): k.ds('ds_write_b32 v%d, v%d offset:%d' % (38, X[j], j * 256))
    def xn_store():
        lab = k.newlab('xs')
        k.e('s_cmp_ge_u32 s%d, 5' % sW); k.e('s_cbranch_scc1 %s' % lab)
        k.e('v_and_b32 v%d, 7, v0' % 32); k.e('v_lshrrev_b32 v%d, 3, v0' % 33)
        k.e('v_mul_u32_u24 v34, %d, v%d' % (LN_STRIDE, 32)); k.e('v_lshl_add_u32 v34, v%d, 4, v34' % 33)
        k.e('s_lshl_b32 s%d, s%d, 8' % (sT, sW)); k.e('s_add_u32 s%d, s%d, %d' % (sT, sT, LN_BUF)); k.e('v_add_u32 v34, s%d, v34' % sT)
        k.e('ds_read_b128 v[40:43], v34'); k.e('ds_read_b128 v[44:47], v34 offset:128')
        k.e('v_lshrrev_b32 v35, 2, v%d' % 33); k.e('v_lshlrev_b32 v35, 11, v35'); k.e('v_and_b32 v36, 3, v%d' % 33)
        k.e('v_lshl_add_u32 v35, v36, 8, v35'); k.e('v_lshl_add_u32 v35, v%d, 4, v35' % 32)
        k.e('s_lshr_b32 s%d, s2, 2' % sT); k.e('s_mul_i32 s%d, s%d, %d' % (sT, sT, XN_BS))
        k.e('s_bfe_u32 s%d, s2, 0x10001' % sT2); k.e('s_lshl_b32 s%d, s%d, 10' % (sT2, sT2)); k.e('s_add_u32 s%d, s%d, s%d' % (sT, sT, sT2))
        k.e('s_and_b32 s%d, s2, 1' % sT2); k.e('s_lshl_b32 s%d, s%d, 7' % (sT2, sT2)); k.e('s_add_u32 s%d, s%d, s%d' % (sT, sT, sT2))
        k.e('s_lshl_b32 s%d, s%d, 13' % (sT2, sW)); k.e('s_add_u32 s%d, s%d, s%d' % (sT, sT, sT2)); k.e('s_add_u32 s%d, s%d, 0x%x' % (sT, sT, WS_XN))
        k.e('s_add_u32 s%d, s%d, 4096' % (sT2, sT))
        k.e('s_waitcnt lgkmcnt(0)')
        k.e('buffer_store_dwordx4 v[40:43], v35, %s, s%d offen sc1' % (S(SWS), sT))
        k.e('buffer_store_dwordx4 v[44:47], v35, %s, s%d offen sc1' % (S(SWS), sT2))
        k.e('s_nop 0')
        k.label(lab)
    if opt.lnfirst == 2: layer_norm()
    k.wait(vm=t_st0)
    k.e('s_barrier')
    stamp(k, opt, 1)
    for f in kv_read_items(k, 0, tok): f()
    for st in range(opt.pf0, 2 + opt.pfd):
        for f in pf_paced(k, st): f()
    st_tok = {0: t_st0, 1: t_st1}
    def mf_step(t):
        b = t & 1; out = []
        for kb in range(8):
            for db in range(2):
                D = ACCK + (kb * 2 + db) * 4
                out.append((mfma(D, WF[b] + db * 4, CF[b] + kb * 4, '0' if t == 0 else D), [('w', t, 0, db), ('c', t, kb)]))
            for db in range(2):
                D = ACCV + (kb * 2 + db) * 4
                out.append((mfma(D, CF[b] + kb * 4, WF[b] + 8 + db * 4, '0' if t == 0 else D), [('w', t, 1, db), ('c', t, kb)]))
        return out
    qtok = {}
    late = {}
    for s in range(8):
        fill = {}
        spread(fill, kv_read_items(k, 2 * s + 1, tok), 0, 23)
        for sl, its in late.items(): fill.setdefault(sl, []).extend(its)
        late = {}
        emit_interleaved(k, mf_step(2 * s), fill, tok)
        if 1 <= s < 7 and opt.kvw >= 32: st_tok[s + 1] = k.last_vm()
        if s == 0 and opt.lnfirst != 2: layer_norm()
        if s == 6:
            lab = k.newlab('g1')
            k.e('s_cmp_ge_u32 s%d, 2' % sW); k.e('s_cbranch_scc1 %s' % lab)
            k.e('s_lshl_b32 s%d, s%d, 7' % (sT2, sW))
            poll(k, SDBG, 's%d' % sT2, '0x80', vT0)
            k.label(lab)
        if s < 7:
            k.wait(vm=st_tok[s + 1], ds=k.last_ds())
            if 'kvb' not in opt.abl or s in (1, 6): k.e('s_barrier')
            if opt.kvst: stamp(k, opt, 4 + s)
            if s == 0: xn_store()
        fill = {}
        if s < 7:
            spread(fill, kv_read_items(k, 2 * s + 2, tok), 0, 23)
        if s < 6 and 'kvd' not in opt.abl:
            both = {}
            spread(both, kv_dma_items(k, s + 2), 1, opt.kvw)
            for sl, its in both.items():
                if sl < 32: fill.setdefault(sl, []).extend(its)
                else: late[sl - 32] = its
            if opt.kvw < 32:
                fill.setdefault(opt.kvw, []).append(lambda s=s: st_tok.__setitem__(s + 2, k.last_vm()))
                if s + 2 + opt.pfd < 8:
                    its = pf_paced(k, s + 2 + opt.pfd)
                    fill.setdefault(29, []).append(its[0]); fill.setdefault(30, []).append(its[1])
                qs = [int(c) for c in str(opt.pfqs)]
                if s in qs:
                    its = pfq_paced(k, min(qs.index(s) * opt.pfqr, 10 - opt.pfqr))
                    fill.setdefault(30, []).append(its[0]); fill.setdefault(31, []).append(its[1])
        if s == 1:
            def g1sig():
                k.e('s_and_b32 s%d, s2, 1' % sT); k.e('s_lshl_b32 s%d, s%d, 7' % (sT, sT))
                signal_w0(k, SDBG, sT, vT0)
            fill.setdefault(31, []).append(g1sig)
        if s == 6:
            spread(fill, q_dma_items(k, 0, True, qtok), 1, 20)
        if s == 7:
            spread(fill, q_xn_items(k, 0, qtok) + q_xn_items(k, 1, qtok), 0, 20)
        emit_interleaved(k, mf_step(2 * s + 1), fill, tok)
    return qtok

XN = 16
QW = [112, 116, 120, 124, 96, 100, 104, 108]
KPK, VPK = 64, 128
ACCQ, ACCH = 160, 224
QF, HPK = 16, 48

def q_dma_items(k, s, ffn, tok):
    slot = QSLOT[s % 3]
    def f0():
        k.e('s_mov_b32 s%d, 0x%x' % (sB, s * 64 * 8192))
        dma(k, vWD, SWQ, 's%d' % sB, sW1056, slot)
    def f1():
        k.e('s_mov_b32 s%d, 0x%x' % (sC, (s * 64 + 32) * 8192))
        tok[('dq', s)] = dma(k, vWD, SWQ, 's%d' % sC, sW1056, slot + 8448)
    def f2():
        k.e('s_mov_b32 s%d, 0x%x' % (sA, s * 64 * 3456))
        tok[('dq', s)] = dma(k, vW1D, SW1, 's%d' % sA, sW1056, slot + 16896)
    return [f0, f1, f2] if ffn else [f0, f1]

def q_xn_items(k, s, tok):
    it = []
    for j in range(4):
        def f(j=j):
            if j == 0: k.e('s_add_u32 s%d, s%d, %d' % (sT2, sXN, s * 4096))
            tok[('x', 2 * s + (j >> 1), j & 1)] = k.vm('buffer_load_dwordx4 %s, v%d, %s, s%d offen offset:%d sc1' % (R(XN + (s % 3) * 16 + j * 4), vL16, S(SWS), sT2, j * 1024))
        it.append(f)
    return it

def kv_pack_items(k):
    it = {}
    def mk(d, a_): return lambda: k.e('v_cvt_pk_bf16_f32 v%d, v%d, v%d' % (d, a_, a_ + 1))
    for kb in range(8):
        for db in range(2):
            a = ACCK + (kb * 2 + db) * 4
            for e in range(2): it[a + 2 * e] = mk(KPK + kb * 4 + db * 2 + e, a + 2 * e)
    for j in range(4):
        for db in range(2):
            for hh in range(2):
                a = ACCV + ((2 * j + hh) * 2 + db) * 4
                for e in range(2): it[a + 2 * e] = mk(VPK + (j * 2 + db) * 4 + hh * 2 + e, a + 2 * e)
    return it

def kv_store_items(k, tok):
    it = []
    for i in range(8):
        def fk(i=i):
            k.e('s_add_u32 s%d, s%d, %d' % (sT, sKst, i * 4096))
            tok['kvst'] = k.vm('buffer_store_dwordx4 %s, v%d, %s, s%d offen sc1' % (R(KPK + i * 4), vL16, S(SWS), sT))
        def fv(i=i):
            k.e('s_add_u32 s%d, s%d, %d' % (sT, sVst, (i >> 1) * 8192))
            tok['kvst'] = k.vm('buffer_store_dwordx4 %s, v%d, %s, s%d offen offset:%d sc1' % (R(VPK + i * 4), vL16, S(SWS), sT, (i & 1) * 1024))
        it += [fk, fv]
    return it

def phase_q(k, opt, tok, ffn, hooks):
    nf = 12 if ffn else 8
    AH = opt.qah
    frags = [(t, c) for t in range(20) for c in range(nf)]
    def read(n, half=None):
        t, c = frags[n]; s, ks = t >> 1, t & 1
        slot = QSLOT[s % 3]; bi = 1 if slot == QA else 0; rel = 0 if slot != QB else QB - QC
        r = QW[n % 8]
        if c < 8: a, off = vWQR[bi], rel + ks * 8448 + c * 32
        else: a, off = vW1R[bi], rel + ks * 4224 + (c - 8) * 32
        if half != 1: k.ds('ds_read_b64_tr_b16 %s, v%d offset:%d' % (R(r, 2), a, off))
        if half != 0: tok[('f', n)] = k.ds('ds_read_b64_tr_b16 %s, v%d offset:%d' % (R(r + 2, 2), a, off + 256))
    k.wait(vm=tok[('dq', 0)])
    k.e('s_barrier')
    if opt.qst: stamp(k, opt, 14)
    for f in q_dma_items(k, 1, ffn, tok): f()
    for n in range(4): read(n)
    pk = kv_pack_items(k)
    for r_ in range(ACCK, ACCQ + 8, 2): pk.pop(r_)()
    for n in range(4, AH): read(n)
    stores = kv_store_items(k, tok)
    per = 2 * nf
    for s in range(10):
        extra = {}
        ex = []
        if s + 2 < 10:
            if 'qx' in opt.abl:
                for t_ in (2 * s + 4, 2 * s + 5): tok[('x', t_, 1)] = tok[('x', 0, 1)]
            else: ex += q_xn_items(k, s + 2, tok)
        sched = [int(c) for c in str(opt.stsched)] + [0] * 10
        assert sum(sched) in (0, 16) and all(x == 0 for x in sched[opt.h2sig:])
        ex += stores[sum(sched[:s]): sum(sched[:s + 1])]
        spread(extra, ex, 1 if s else 4, per - AH - 3)
        if s == 9: spread(extra, hooks('fill9', s), 0, per - 2)
        for i in range(per):
            n = s * per + i
            t, c = frags[n]
            k.wait(ds=tok[('f', n)])
            if c == 0: k.wait(vm=tok[('x', t, 1)])
            for qb in range(2):
                D = (ACCQ + (c * 2 + qb) * 4) if c < 8 else (ACCH + ((c - 8) * 2 + qb) * 4)
                k.e(mfma(D, QW[n % 8], XN + (s % 3) * 16 + (t & 1) * 8 + qb * 4, '0' if t == 0 else D))
                if qb == 0:
                    if i == per - AH and s < 9:
                        hooks('preB', s)
                        k.wait(vm=tok[('dq', s + 1)])
                        if 'qb' not in opt.abl or s == 8: k.e('s_barrier')
                        hooks('postB', s)
                        if opt.qst: stamp(k, opt, 4 + s if s < 8 else 13)
                    if n + AH < len(frags): read(n + AH, 0 if opt.split else None)
                elif opt.split and n + AH < len(frags): read(n + AH, 1)
            if s == 0:
                for r_ in sorted(pk)[:4]: pk.pop(r_)()
            for f in extra.get(i, []): f()
            if s + 2 < 10 and i >= per - AH:
                items = q_dma_items(k, s + 2, ffn, tok)
                j = i - (per - AH)
                if 'qd' in opt.abl: tok[('dq', s + 2)] = tok[('dq', 1)]
                elif j < len(items): items[j]()
            hooks('slot', s, i)
    if opt.qst: stamp(k, opt, 15)
    hooks('end', 9)
    k.e('s_nop 7')
    if ffn:
        for qb in range(2):
            for b in range(2):
                for hh in range(2):
                    a = ACCH + ((2 * b + hh) * 2 + qb) * 4; d = HPK + (b * 2 + qb) * 4 + hh * 2
                    k.e('v_cvt_pk_bf16_f32 v%d, v%d, v%d' % (d, a, a + 1)); k.e('v_cvt_pk_bf16_f32 v%d, v%d, v%d' % (d + 1, a + 2, a + 3))
        for i in range(16): k.e('v_pk_max_i16 v%d, v%d, 0' % (HPK + i, HPK + i))
        for i in range(4):
            tok['hst'] = k.vm('buffer_store_dwordx4 %s, v%d, %s, s%d offen offset:%d sc1' % (R(HPK + i * 4), vL16, S(SWS), sHst, i * 1024))
    for i in range(32): k.e('v_pk_mul_f32 %s, %s, s[%d:%d]' % (R(ACCQ + 2 * i, 2), R(ACCQ + 2 * i, 2), sSc, sSc + 1))
    for qb in range(2):
        for b in range(4):
            for hh in range(2):
                a = ACCQ + ((2 * b + hh) * 2 + qb) * 4; d = QF + (qb * 4 + b) * 4 + hh * 2
                k.e('v_cvt_pk_bf16_f32 v%d, v%d, v%d' % (d, a, a + 1)); k.e('v_cvt_pk_bf16_f32 v%d, v%d, v%d' % (d + 1, a + 2, a + 3))

def build(opt):
    k = KB()
    rest = prologue(k, opt)
    import attn
    attn.OPT[0] = opt
    CTOUCH[0] = (opt.rot == 0)
    if opt.only == 'p3':
        rest(); stamp(k, opt, 0)
        attn.phase_attn_p3(k, opt)
        return finish(k, opt)
    qtok = phase_ln_kv(k, opt, rest)
    stamp(k, opt, 2)
    if opt.diagsleep1: k.e('s_sleep %d' % opt.diagsleep1)
    import attn
    hk = {}
    def hooks(kind, s, i=None):
        if kind == 'fill9': return attn.att_init_items(k)
        if kind == 'postB' and opt.prio == 'q%d' % s: setprio_young(k, 1)
        if kind == 'slot' and s == opt.h2sig + 1 and i == 0:
            k.e('s_lshl_b32 s%d, s%d, 7' % (sT, sH))
            signal_w0(k, SWS, sT, vT0)
        if opt.early:
            if kind == 'preB' and s == 8:
                lab = k.newlab('h2')
                k.e('s_cmp_lg_u32 s%d, 4' % sW); k.e('s_cbranch_scc1 %s' % lab)
                k.e('s_lshl_b32 s%d, s%d, 7' % (sT2, sH))
                poll(k, SWS, 's%d' % sT2, '8', vT0)
                k.label(lab)
            if kind == 'postB' and s == 8:
                attn.ld_setup(k)
            if kind == 'slot' and s == 9 and i in (0, 2, 4, 6, 8, 10):
                lab = k.newlab('kvp')
                k.e('s_cmp_lt_u32 s%d, 4' % sW); k.e('s_cbranch_scc1 %s' % lab)
                for f in attn.ld_group(k, (i >> 1) & 1, i == 2): f()
                k.label(lab)
        elif kind == 'slot' and s == 9 and i == opt.h2poll:
            k.e('s_lshl_b32 s%d, s%d, 7' % (sT2, sH))
            hk['h2'] = k.vm('buffer_load_dword v%d, v%d, %s, s%d offen sc1' % (vT3, vZ, S(SWS), sT2))
        elif kind == 'end':
            lab = k.newlab('h2'); lab2 = k.newlab('h2ok')
            k.e('s_cmp_lt_u32 s%d, 4' % sW); k.e('s_cbranch_scc1 %s' % lab)
            k.e('s_waitcnt vmcnt(0)')
            k.e('v_readfirstlane_b32 s%d, v%d' % (sT, vT3))
            k.e('s_cmp_ge_u32 s%d, 8' % sT); k.e('s_cbranch_scc1 %s' % lab2)
            poll(k, SWS, 's%d' % sT2, '8', vT0)
            k.label(lab2)
            attn.ld_stage(k, True); attn.ld_stage(k)
            k.label(lab)
        elif kind == 'end2':
            lab = k.newlab('h2')
            k.e('s_cmp_lt_u32 s%d, 4' % sW); k.e('s_cbranch_scc1 %s' % lab)
            attn.ld_stage(k)
            k.label(lab)
    st = (k.vm_issued, k.vm_done, k.ds_issued, k.ds_done)
    k.e('s_cmp_lg_u32 s%d, 0' % sNoF); k.e('s_cbranch_scc1 L_q_noffn')
    phase_q(k, opt, dict(qtok), True, hooks)
    k.e('s_branch L_q_done')
    k.label('L_q_noffn')
    k.vm_issued, k.vm_done, k.ds_issued, k.ds_done = st
    phase_q(k, opt, dict(qtok), False, hooks)
    k.label('L_q_done')
    hooks('end2', 9)
    if opt.diagsleep: k.e('s_sleep %d' % opt.diagsleep)
    if opt.prio2 is not None: k.e('s_setprio %d' % opt.prio2)
    stamp(k, opt, 3)
    if opt.dumpq:
        k.e('s_lshl_b32 s%d, s2, 3' % sT); k.e('s_add_u32 s%d, s%d, s%d' % (sT, sT, sW)); k.e('s_lshl_b32 s%d, s%d, 13' % (sT, sT))
        k.e('s_add_u32 s%d, s%d, 0x%x' % (sT, sT, WS_DBGQ)); k.e('s_add_u32 s%d, s%d, 4096' % (sT2, sT))
        for i in range(8):
            k.e('buffer_store_dwordx4 %s, v%d, %s, s%d offen offset:%d' % (R(QF + i * 4), vL16, S(SWS), sT if i < 4 else sT2, (i & 3) * 1024))
    if opt.stop != 'q':
        attn.phase_attn_p3(k, opt)
    return finish(k, opt)

def finish(k, opt):
    k.e('s_waitcnt vmcnt(0)')
    k.label('L_exit')
    k.e('s_endpgm')
    errs = check_hazards(k.lines)
    for e in errs: print('HAZARD', e, file=sys.stderr)
    hdr = open(os.path.join(os.path.dirname(os.path.abspath(__file__)), 'header.txt')).read()
    t = hdr + '; @launch grid=(256,1,1) block=(512,1,1) lds=%d\n' % LDS_BYTES
    t += '.amdgcn_target "amdgcn-amd-amdhsa--gfx950"\n.text\n.globl %s_kernel\n.p2align 8\n.type %s_kernel,@function\n%s_kernel:\n' % (NAME, NAME, NAME)
    t += k.text()
    t += '''.section .rodata,"a"
.p2align 6
.amdhsa_kernel %s_kernel
  .amdhsa_next_free_vgpr 256
  .amdhsa_next_free_sgpr 102
  .amdhsa_accum_offset 256
  .amdhsa_group_segment_fixed_size 0
  .amdhsa_kernarg_size 96
  .amdhsa_user_sgpr_count 2
  .amdhsa_user_sgpr_kernarg_segment_ptr 1
  .amdhsa_system_sgpr_workgroup_id_x 1
.end_amdhsa_kernel
''' % NAME
    return t, len(errs)

if __name__ == '__main__':
    opt = Opt()
    out = sys.argv[1]
    for a in sys.argv[2:]:
        kk, _, v = a.partition('=')
        setattr(opt, kk, (int(v) if v.lstrip('-').isdigit() else (int(v, 16) if v.startswith('0x') else v)) if v else True)
    t, ne = build(opt)
    open(out, 'w').write(t)
    print('wrote', out, len(t.splitlines()), 'lines', ne, 'hazards')
```

```python
from kb import *
import build as B
from build import *

sM, sRem, sLast, sKp, sVp, sLd, sSafe, sDr, sCtx, sFl = 67, 68, 69, 70, 71, 72, 73, 74, 75, 76
sK0, sV0 = 77, 78
sNF = 63
sCx2 = 62
sN4 = 61
PF = [48, 56]; RING = 64; SB = [96, 112]; CB = 128; LACC = 144; ONES = 152; TE = 156; OA = 160
vRd, vD, vNinf = 13, 11, 9
OPK = 224
VOTE = 132128
AH = 6

INLOOP = [False]; OPT = [None]
def ld_setup(k):
    k.e('s_mul_i32 s%d, s%d, 0x%x' % (sK0, sH, 2 * KVS)); k.e('s_add_u32 s%d, s%d, 0x%x' % (sK0, sK0, WS_KV))
    k.e('s_and_b32 s%d, s%d, 3' % (sT, sW)); k.e('s_lshl_b32 s%d, s%d, 12' % (sT, sT))
    k.e('s_add_u32 s%d, s%d, s%d' % (sK0, sK0, sT))
    k.e('s_add_u32 s%d, s%d, 0x%x' % (sVp, sK0, KVS - 8192))
    k.e('s_add_u32 s%d, s%d, 8192' % (sKp, sK0))
    k.e('s_mov_b32 s%d, s%d' % (sLd, sT))
    k.e('s_cmp_lt_u32 s%d, 8192' % sT); k.e('s_cselect_b32 s%d, s%d, s%d' % (sV0, sK0, sVp))

def ld_group(k, which, first=False):
    it = []
    for j in range(4):
        def f(j=j):
            if j == 0:
                k.e('s_add_u32 m0, s%d, %d' % (sLd, which * 16384)); k.e('s_nop 0')
            so = sKp if which == 0 else (sV0 if first else sVp)
            if not (INLOOP[0] and 'atd' in OPT[0].abl):
                k.e('buffer_load_dwordx4 v%d, %s, s%d offen offset:%d %s lds' % (vL16, S(SWS), so, j * 1024, OPT[0].kvpol))
            if which == 1 and j == 3:
                k.e('s_add_u32 s%d, s%d, 16384' % (sKp, sKp)); k.e('s_add_u32 s%d, s%d, 16384' % (sVp, sVp))
                k.e('s_add_u32 s%d, s%d, 32768' % (sLd, sLd)); k.e('s_and_b32 s%d, s%d, 0x1ffff' % (sLd, sLd))
        it.append(f)
    return it

def ld_stage(k, first=False):
    for f in ld_group(k, 0) + ld_group(k, 1, first): f()

def xmax(k, v, t):
    k.e('v_mov_b32 v%d, v%d' % (t, v)); k.e('s_nop 1')
    k.e('v_permlane16_swap_b32 v%d, v%d' % (v, t)); k.e('v_max_f32 v%d, v%d, v%d' % (v, v, t))
    k.e('v_mov_b32 v%d, v%d' % (t, v)); k.e('s_nop 1')
    k.e('v_permlane32_swap_b32 v%d, v%d' % (v, t)); k.e('v_max_f32 v%d, v%d, v%d' % (v, v, t))

def rowmax(k, Sb, qb, d, t):
    r = [Sb + 8 * kb + 4 * qb + i for kb in range(2) for i in range(4)]
    k.e('v_max3_f32 v%d, v%d, v%d, v%d' % (d, r[0], r[1], r[2]))
    k.e('v_max3_f32 v%d, v%d, v%d, v%d' % (d, d, r[3], r[4]))
    k.e('v_max3_f32 v%d, v%d, v%d, v%d' % (d, d, r[5], r[6]))
    k.e('v_max_f32 v%d, v%d, v%d' % (d, d, r[7]))
    xmax(k, d, t)

def build_mask(k):
    for r in range(4):
        k.e('v_cmp_le_i32 vcc, %d, v%d' % (r, vD)); k.e('v_mov_b32 v%d, v%d' % (CB + 8 + r, vNinf)); k.e('s_nop 0')
        k.e('v_cndmask_b32 v%d, v%d, v%d, vcc' % (CB + r, vNinf, CB + r))
        k.e('v_cndmask_b32 v%d, v%d, v%d, vcc' % (CB + 12 + r, vNinf, CB + 12 + r))
    k.e('s_nop 1')

def safe_update(k, par):
    Sn = SB[par ^ 1]; P = PF[par]
    k.e('s_nop 7')
    for qb in range(2):
        d, t, f = TE, TE + 1, TE + 2
        rowmax(k, Sn, qb, d, t)
        k.e('v_max_f32 v%d, 0, v%d' % (d, d))
        k.e('v_exp_f32 v%d, -v%d' % (f, d))
        for kb in range(2):
            for i in range(4):
                k.e('v_sub_f32 v%d, v%d, v%d' % (Sn + 8 * kb + 4 * qb + i, Sn + 8 * kb + 4 * qb + i, d))
                k.e('v_sub_f32 v%d, v%d, v%d' % (CB + 8 * kb + 4 * qb + i, CB + 8 * kb + 4 * qb + i, d))
        for db in range(8):
            for i in range(4): k.e('v_mul_f32 v%d, v%d, v%d' % (OA + db * 8 + qb * 4 + i, OA + db * 8 + qb * 4 + i, f))
        for i in range(4):
            k.e('v_mul_f32 v%d, v%d, v%d' % (LACC + qb * 4 + i, LACC + qb * 4 + i, f))
            p = P + qb * 4 + i
            k.e('v_lshlrev_b32 v%d, 16, v%d' % (d + 3, p)); k.e('v_and_b32 v%d, 0xffff0000, v%d' % (t, p))
            k.e('v_mul_f32 v%d, v%d, v%d' % (d + 3, d + 3, f)); k.e('v_mul_f32 v%d, v%d, v%d' % (t, t, f))
            k.e('v_cvt_pk_bf16_f32 v%d, v%d, v%d' % (p, d + 3, t))
    k.e('s_nop 1')

BODY_OFF = [0 + 1024 * i for i in range(8)] + [16384 + 1024 * i for i in range(8)] + [8192 + 1024 * i for i in range(8)] + [24576 + 1024 * i for i in range(8)]
def rd(k, n, off):
    k.e('ds_read_b128 %s, v%d offset:%d' % (R(RING + 4 * (n % 8)), vRd, off))
def next_stage_addr(k):
    k.e('v_add_u32 v%d, 0x8000, v%d' % (vRd, vRd)); k.e('v_and_b32 v%d, 0x1ffff, v%d' % (vRd, vRd))
def sm_order(Sc):
    return [Sc + 8 * kb + 4 * qb + r for qb in range(2) for kb in range(2) for r in range(4)]
def lm(P, qb):
    return mfma(LACC + 4 * qb, ONES, P + 4 * qb, LACC + 4 * qb)

def bar(k, loader):
    if loader: k.e('s_waitcnt vmcnt(8)')
    k.e('s_barrier')

def step(k, par, loader, fast=None):
    Sc, Sn, Pc, Pp = SB[par], SB[par ^ 1], PF[par], PF[par ^ 1]
    order = sm_order(Sc)
    dm = ld_group(k, 0) + ld_group(k, 1)
    dslot = {10: dm[0:1], 11: dm[1:3], 12: dm[3:4], 13: dm[4:6], 14: dm[6:7], 15: dm[7:8]}
    for g in range(16):
        n = 16 * par + g; fr = RING + 4 * (n % 8)
        if g % 2 == 0: k.e('s_waitcnt lgkmcnt(%d)' % (AH - 2))
        ms = []
        for qb in range(2):
            if g < 8:
                kb, ks = g // 4, g % 4; D = Sn + 8 * kb + 4 * qb
                ms.append(mfma(D, fr, QF + (qb * 4 + ks) * 4, (CB + 8 * kb + 4 * qb) if ks == 0 else D))
            else:
                D = OA + (g - 8) * 8 + 4 * qb
                ms.append(mfma(D, fr, Pp + 4 * qb, D))
        k.e(ms[0])
        k.e('v_exp_f32 v%d, v%d' % (TE + g % 4, order[g]))
        k.e(ms[1])
        if par == 1 and g == 16 - AH:
            if fast is None: next_stage_addr(k)
            bar(k, loader)
        so = 0 if fast is None else (32768 * fast if n + AH < 32 else 32768 * (fast ^ 1))
        rd(k, n + AH, BODY_OFF[(n + AH) % 32] + so)
        if fast == 1 and n + AH == 31: k.e('v_xor_b32 v%d, 0x10000, v%d' % (vRd, vRd))
        if g % 2 == 0 and g >= 2:
            k.e('v_cvt_pk_bf16_f32 v%d, v%d, v%d' % (Pc + (g - 2) // 2, TE + (g - 2) % 4, TE + (g - 1) % 4))
        if g == 15: k.e('v_cvt_pk_bf16_f32 v%d, v%d, v%d' % (Pc + 7, TE + 2, TE + 3))
        if g == 11: k.e(lm(Pp, 0))
        if g == 15: k.e(lm(Pp, 1))
        if loader and par == 1:
            for f in dslot.get(g, []): f()

def tail(k, par, loader):
    Sc, Pc, Pp = SB[par], PF[par], PF[par ^ 1]
    order = sm_order(Sc)
    k.e('s_waitcnt lgkmcnt(0)')
    o1 = 16384 if par == 0 else 24576
    for i in range(8): rd(k, i, o1 + 1024 * i)
    for g in range(16):
        k.e('v_exp_f32 v%d, v%d' % (TE + g % 4, order[g]))
        if g % 2 == 0 and g >= 2:
            k.e('v_cvt_pk_bf16_f32 v%d, v%d, v%d' % (Pc + (g - 2) // 2, TE + (g - 2) % 4, TE + (g - 1) % 4))
    k.e(lm(Pp, 0))
    k.e('v_cvt_pk_bf16_f32 v%d, v%d, v%d' % (Pc + 7, TE + 2, TE + 3))
    k.e(lm(Pp, 1))
    if par == 1:
        k.e('s_waitcnt lgkmcnt(0)')
        next_stage_addr(k)
        bar(k, loader)
    o2 = 24576 if par == 0 else 16384
    dm = ld_group(k, 0) + ld_group(k, 1)
    for i in range(8):
        if par == 0: k.e('s_waitcnt lgkmcnt(7)')
        for qb in range(2):
            D = OA + i * 8 + 4 * qb; k.e(mfma(D, RING + 4 * i, Pp + 4 * qb, D))
        rd(k, i, o2 + 1024 * i)
        if loader and par == 1: dm[i]()
    k.e(lm(Pc, 0)); k.e(lm(Pc, 1))
    for i in range(8):
        k.e('s_waitcnt lgkmcnt(%d)' % (7 - i))
        for qb in range(2):
            D = OA + i * 8 + 4 * qb; k.e(mfma(D, RING + 4 * i, Pc + 4 * qb, D))

def vote(k):
    lab = k.newlab('vote')
    k.e('s_nop 7')
    k.e('v_add_f32 v%d, v%d, v%d' % (TE, LACC, LACC + 4))
    k.e('v_cmp_nge_f32 vcc, 0x4e800000, v%d' % TE)
    k.e('s_nop 4')
    k.e('s_cbranch_vccz %s' % lab)
    k.e('v_mov_b32 v%d, %d' % (TE, VOTE)); k.e('v_mov_b32 v%d, 1' % (TE + 1))
    k.e('ds_write_b32 v%d, v%d' % (TE, TE + 1)); k.e('s_waitcnt lgkmcnt(0)')
    k.label(lab)

def ctx_epilogue(k, defer=False):
    k.e('v_rcp_f32 v%d, v%d' % (TE, LACC)); k.e('v_rcp_f32 v%d, v%d' % (TE + 2, LACC + 4))
    k.e('s_add_u32 s%d, s%d, 4096' % (sCx2, sCtx))
    out = []
    for b in range(4):
        for qb in range(2):
            for hh in range(2):
                a = OA + (2 * b + hh) * 8 + 4 * qb
                for e in range(2):
                    k.e('v_pk_mul_f32 %s, %s, %s op_sel_hi:[1,0]' % (R(a + 2 * e, 2), R(a + 2 * e, 2), R(TE + 2 * qb, 2)))
            for hh in range(2):
                a = OA + (2 * b + hh) * 8 + 4 * qb; d = OPK + (b * 2 + qb) * 4 + 2 * hh
                k.e('v_cvt_pk_bf16_f32 v%d, v%d, v%d' % (d, a, a + 1)); k.e('v_cvt_pk_bf16_f32 v%d, v%d, v%d' % (d + 1, a + 2, a + 3))
            i = b * 2 + qb
            t = 'buffer_store_dwordx4 %s, v%d, %s, s%d offen offset:%d sc1' % (R(OPK + i * 4), vL16, S(SWS), sCtx if i < 4 else sCx2, (i & 3) * 1024)
            if defer: out.append(lambda t=t: k.vm(t))
            else: k.e(t)
    return out

SRP = 88
RU = 4; NRPK = -(-1456 // RU)
def repack(k, it):
    RB = 48; RO = 128
    sU = 93
    k.e('s_sub_u32 s%d, s2, %d' % (sU, 32 * OPT[0].rp0))
    k.e('s_min_u32 s%d, s%d, 0x1000' % (sU, sU))
    k.e('s_lshl_b32 s%d, s%d, 2' % (sU, sU)); k.e('s_and_b32 s%d, s%d, 3' % (sT, sW)); k.e('s_add_u32 s%d, s%d, s%d' % (sU, sU, sT))
    k.e('s_cmp_ge_u32 s%d, %d' % (sU, NRPK)); k.e('s_cbranch_scc1 L_norepack')
    k.e('s_cmp_lg_u32 s%d, 0' % sSafe); k.e('s_cbranch_scc1 L_norepack')
    k.e('s_mul_i32 s%d, s%d, %d' % (sU, sU, RU))
    for j in range(5):
        k.e('v_add_u32 v%d, %d, v0' % (TE, 64 * j))
        k.e('v_mul_u32_u24 v%d, 6554, v%d' % (TE + 1, TE)); k.e('v_lshrrev_b32 v%d, 16, v%d' % (TE + 1, TE + 1))
        k.e('v_mul_u32_u24 v%d, 1120, v%d' % (TE + 1, TE + 1)); k.e('v_lshl_add_u32 v%d, v%d, 4, v%d' % (RO + j, TE, TE + 1))
    st = dict(n=24, d=[7, 15], done=0)
    def itx():
        t = st['d'].pop(0)
        it(st['n'] - 1 - t); st['done'] = t + 1
        st['n'] += 8; st['d'].append(st['n'] - 1)
    k.e('s_mov_b32 s%d, 0x20000' % (SRP + 3))
    ldtok = []
    for e in range(RU):
        if e % OPT[0].rpl == 0: itx()
        k.e('s_add_u32 s%d, s%d, %d' % (sT, sU, e)); k.e('s_and_b32 s%d, s%d, 7' % (sT2, sT)); k.e('s_lshr_b32 s%d, s%d, 3' % (sT, sT))
        k.e('s_mul_i32 s%d, s%d, 160' % (sT2, sT2))
        k.e('s_cmp_lt_u32 s%d, 54' % sT)
        for i in range(3): k.e('s_cselect_b32 s%d, s%d, s%d' % (SRP + i, SW2 + i, SWO + i))
        k.e('s_cselect_b32 s%d, 0, 54' % sA); k.e('s_sub_u32 s%d, s%d, s%d' % (sT, sT, sA))
        k.e('s_mul_i32 s%d, s%d, %d' % (sT, sT, 32 * 1280)); k.e('s_add_u32 s%d, s%d, s%d' % (sT, sT, sT2))
        for j in range(5):
            k.e('buffer_load_dwordx4 %s, v%d, %s, s%d offen' % (R(RB + (e * 5 + j) * 4), RO + j, S(SRP), sT))
            ldtok.append(st['n']); st['n'] += 1
    c = 0
    for e in range(RU):
        for j in range(5):
            while ldtok[e * 5 + j] >= st['done'] or c >= OPT[0].rps:
                itx(); c = 0
            if j == 0:
                k.e('s_add_u32 s%d, s%d, %d' % (sB, sU, e)); k.e('s_and_b32 s%d, s%d, 7' % (sC, sB)); k.e('s_lshr_b32 s%d, s%d, 3' % (sB, sB))
                k.e('s_mul_i32 s%d, s%d, 0x%x' % (sC, sC, WP_CS)); k.e('s_mul_i32 s%d, s%d, 5120' % (sB, sB)); k.e('s_add_u32 s%d, s%d, s%d' % (sB, sB, sC))
                k.e('s_add_u32 s%d, s%d, 0x%x' % (sB, sB, WS_WP)); k.e('s_add_u32 s%d, s%d, 4096' % (sC, sB))
            k.e('buffer_store_dwordx4 %s, v%d, %s, s%d offen offset:%d sc1' % (R(RB + (e * 5 + j) * 4), vL16, S(SWS), sB if j < 4 else sC, (j & 3) * 1024))
            last = st['n']; st['n'] += 1; c += 1
    while last >= st['done']: itx()
    nit = (st['n'] - 24 - 10 * RU) // 8
    pmax = OPT[0].rp0 + (NRPK - 1) // 128
    assert 30 - 4 * pmax - 1 - nit >= 2, (nit, pmax)
    k.e('s_mov_b32 s%d, %d' % (sT, WS_FLAGS + F_H5 * 128))
    signal(k, SWS, 's%d' % sT, vT0)
    k.e('s_branch L_S_drain')
    k.label('L_norepack')

def early_setup(k):
    k.e('s_mov_b32 s%d, 0' % sSafe)
    k.e('s_mov_b32 s%d, s%d' % (sLast, sRB))
    k.e('s_mul_i32 s%d, s%d, 0x%x' % (sCtx, sRB, CTX_BS)); k.e('s_lshl_b32 s%d, s%d, 13' % (sT, sH)); k.e('s_add_u32 s%d, s%d, s%d' % (sCtx, sCtx, sT))
    k.e('s_add_u32 s%d, s%d, 0x%x' % (sCtx, sCtx, WS_CTX))
    ld_setup(k)
    p3_setup(k)

def att_init_items(k):
    it = [lambda: k.e('v_mov_b32 v%d, 0xff800000' % vNinf), lambda: k.e('v_mov_b32 v%d, v%d' % (vRd, vL16)),
          lambda: (k.e('v_and_b32 v%d, 48, v0' % vD), k.e('v_lshrrev_b32 v%d, 2, v%d' % (vD, vD))),
          lambda: (k.e('v_and_b32 v%d, 15, v0' % TE), k.e('v_sub_u32 v%d, v%d, v%d' % (vD, TE, vD)))]
    for i in range(0, 24, 2): it.append(lambda i=i: k.e('v_mov_b64 %s, 0' % R(CB + i, 2)))
    for i in range(4): it.append(lambda i=i: k.e('v_mov_b32 v%d, 0x3f803f80' % (ONES + i)))
    return it

def phase_attn(k, opt, p3_pre, p3_h3_issue, p3_h3_check, p3_preL):
    INLOOP[0] = True
    k.e('v_mov_b32 v%d, %d' % (vT0, VOTE)); k.e('ds_write_b32 v%d, v%d' % (vT0, vZ))
    k.label('L_att_start')
    for i in range(32): k.e('v_mov_b64 %s, 0' % R(OA + 2 * i, 2))
    k.e('s_lshl_b32 s%d, s%d, 1' % (sT, sP)); k.e('s_sub_u32 s%d, 32, s%d' % (sDr, sT))
    k.e('s_add_u32 s%d, s%d, 1' % (sT, sLast)); k.e('s_lshr_b32 s%d, s%d, 1' % (sT, sT)); k.e('s_sub_u32 s%d, s%d, s%d' % (sDr, sDr, sT))
    lab = k.newlab('m0')
    k.e('s_cmp_lg_u32 s%d, 0' % sLast); k.e('s_cbranch_scc1 %s' % lab)
    build_mask(k)
    k.label(lab)
    k.e('s_waitcnt vmcnt(16) lgkmcnt(0)')
    k.e('s_barrier')
    stamp(k, opt, 4)
    for i in range(8): rd(k, i, 16384 + 1024 * i)
    for i in range(8): k.e('v_mov_b32 v%d, 0' % (PF[1] + i))
    for g in range(8):
        k.e('s_waitcnt lgkmcnt(%d)' % (7 if g < 7 else 6))
        kb, ks = g // 4, g % 4
        for qb in range(2):
            D = SB[0] + 8 * kb + 4 * qb
            k.e(mfma(D, RING + 4 * g, QF + (qb * 4 + ks) * 4, (CB + 8 * kb + 4 * qb) if ks == 0 else D))
        if g < AH: rd(k, g, BODY_OFF[g])
    k.e('s_nop 7')
    for qb in range(2):
        rowmax(k, SB[0], qb, TE + qb, TE + 2)
        for kb in range(2):
            for i in range(4):
                k.e('v_sub_f32 v%d, v%d, v%d' % (SB[0] + 8 * kb + 4 * qb + i, SB[0] + 8 * kb + 4 * qb + i, TE + qb))
                k.e('v_sub_f32 v%d, 0, v%d' % (CB + 8 * kb + 4 * qb + i, TE + qb))
    lab = k.newlab('h3')
    k.e('s_cmp_lg_u32 s%d, 0' % sNoF); k.e('s_cbranch_scc1 %s' % lab)
    k.e('s_cmp_lg_u32 s%d, 0' % sSafe); k.e('s_cbranch_scc1 %s' % lab)
    k.e('s_lshl_b32 s%d, s%d, 7' % (sT, sRB)); k.e('s_add_u32 s%d, s%d, %d' % (sT, sT, WS_FLAGS + F_H3 * 128))
    k.e('s_waitcnt vmcnt(0)')
    signal(k, SWS, 's%d' % sT, vT0)
    k.label(lab)
    if opt.pf:
        lab = k.newlab('pf3')
        k.e('s_cmp_ge_u32 s%d, 4' % sW); k.e('s_cbranch_scc1 %s' % lab)
        k.e('s_lshl_b32 s%d, s2, 2' % sT); k.e('s_add_u32 s%d, s%d, s%d' % (sT, sT, sW))
        k.e('s_mul_i32 s%d, s%d, 5120' % (sT2, sT)); k.e('v_lshlrev_b32 v%d, 6, v0' % vT0)
        k.e('buffer_load_dword v8, v%d, %s, s%d offen' % (vT0, S(SWO), sT2))
        k.e('s_mov_b32 exec_hi, 0'); k.e('s_mov_b32 exec_lo, 0xffff')
        k.e('s_add_u32 s%d, s%d, 4096' % (sT2, sT2))
        k.e('buffer_load_dword v8, v%d, %s, s%d offen' % (vT0, S(SWO), sT2))
        k.e('s_mov_b64 exec, -1')
        k.e('s_mul_i32 s%d, s%d, 2160' % (sT2, sT))
        k.e('buffer_load_dword v8, v%d, %s, s%d offen' % (vT0, S(SW2), sT2))
        k.label(lab)
    k.e('s_sub_u32 s%d, s%d, 1' % (sRem, sLast)); k.e('s_mov_b32 s%d, 0' % sM); k.e('s_mov_b32 s%d, 0' % sNF)
    lab = k.newlab('ns')
    k.e('s_cmp_lg_u32 s%d, 0' % sSafe); k.e('s_cbranch_scc1 %s' % lab)
    k.e('s_cmp_lt_u32 s%d, 2' % sLast); k.e('s_cbranch_scc1 %s' % lab)
    k.e('s_mov_b32 s%d, 1' % sRem); k.e('s_sub_u32 s%d, s%d, 2' % (sM, sLast))
    k.e('s_lshr_b32 s%d, s%d, 2' % (sNF, sM)); k.e('s_and_b32 s%d, s%d, 3' % (sM, sM))
    k.label(lab)
    lab = k.newlab('m1')
    k.e('s_cmp_lg_u32 s%d, 1' % sLast); k.e('s_cbranch_scc1 %s' % lab)
    build_mask(k)
    k.label(lab)
    stamp(k, opt, 9)
    k.e('s_cmp_ge_u32 s%d, 4' % sW); k.e('s_cbranch_scc1 L_S_entry')
    for v, loader in (('L', False), ('S', True)):
        if loader:
            k.label('L_S_entry')
            k.e('s_cmp_eq_u32 s%d, 0' % sLast); k.e('s_cbranch_scc1 L_S_tail0')
        if not loader and opt.fast4:
            k.e('s_lshr_b32 s%d, s%d, 1' % (sT, sNF)); k.e('s_and_b32 s%d, s%d, 1' % (sNF, sNF))
            k.e('s_sub_u32 s%d, s%d, 1' % (sN4, sT)); k.e('s_cbranch_scc1 L_L_f2')
            k.e('.p2align 6')
            k.label('L_L_fast4')
            for b in range(4):
                for par in range(2): step(k, par, loader, b & 1)
            k.e('s_sub_u32 s%d, s%d, 1' % (sN4, sN4)); k.e('s_cbranch_scc0 L_L_fast4')
            k.label('L_L_f2')
        k.e('s_sub_u32 s%d, s%d, 1' % (sNF, sNF)); k.e('s_cbranch_scc1 L_%s_loop' % v)
        k.e('.p2align 6')
        k.label('L_%s_fast' % v)
        for b in range(2):
            for par in range(2): step(k, par, loader, b)
        k.e('s_sub_u32 s%d, s%d, 1' % (sNF, sNF)); k.e('s_cbranch_scc0 L_%s_fast' % v)
        k.label('L_%s_loop' % v)
        for par in range(2):
            step(k, par, loader)
            k.e('s_sub_u32 s%d, s%d, 1' % (sM, sM))
            if par == 0:
                k.e('s_cbranch_scc1 L_%s_h0' % v); k.label('L_%s_c0' % v)
            else:
                k.e('s_cbranch_scc0 L_%s_loop' % v)
        for par in (1, 0):
            k.label('L_%s_h%d' % (v, par))
            lab = k.newlab('nsafe')
            k.e('s_cmp_eq_u32 s%d, 0' % sSafe); k.e('s_cbranch_scc1 %s' % lab)
            safe_update(k, par)
            k.label(lab)
            k.e('s_cmp_eq_u32 s%d, 0' % sRem); k.e('s_cbranch_scc1 L_%s_tail%d' % (v, par ^ 1))
            lab = k.newlab('nmask')
            k.e('s_cmp_lg_u32 s%d, 1' % sRem); k.e('s_cbranch_scc1 %s' % lab)
            build_mask(k)
            k.label(lab)
            k.e('s_sub_u32 s%d, s%d, 1' % (sRem, sRem)); k.e('s_mov_b32 s%d, 0' % sM)
            k.e('s_branch %s' % ('L_%s_c0' % v if par == 0 else 'L_%s_loop' % v))
        for par in range(2):
            k.label('L_%s_tail%d' % (v, par))
            stamp(k, opt, 10)
            if not loader: p3_h3_issue()
            tail(k, par, loader)
            if par == 0: k.e('s_branch L_%s_done' % v)
        k.label('L_%s_done' % v)
        vote(k)
        stamp(k, opt, 11)
        if not loader:
            lp = k.newlab('dr')
            k.e('s_cmp_eq_u32 s%d, 0' % sDr); k.e('s_cbranch_scc1 L_att_end')
            k.label(lp)
            k.e('s_barrier'); k.e('s_sub_u32 s%d, s%d, 1' % (sDr, sDr)); k.e('s_cmp_lg_u32 s%d, 0' % sDr); k.e('s_cbranch_scc1 %s' % lp)
            k.e('s_branch L_att_end')
        else:
            def it(n):
                lab = k.newlab('nd')
                k.e('s_waitcnt vmcnt(%d)' % n); k.e('s_barrier')
                k.e('s_cmp_le_u32 s%d, 2' % sDr); k.e('s_cbranch_scc1 %s' % lab)
                ld_stage(k)
                k.label(lab)
                k.e('s_sub_u32 s%d, s%d, 1' % (sDr, sDr))
            it(8)
            ctx_epilogue(k)
            repack(k, it)
            def polls():
                p3_h3_issue()
                k.e('s_mov_b32 s%d, %d' % (sT2, WS_FLAGS + F_H5 * 128))
                poll(k, SWS, 's%d' % sT2, str(NRPK), vT0)
                p3_h3_check()
            lastn = 2 if opt.early2 else 1
            if opt.early2: k.e('s_cmp_eq_u32 s%d, 1' % sDr); k.e('s_cbranch_scc1 L_S_late')
            for _ in range(2):
                k.e('s_cmp_eq_u32 s%d, %d' % (sDr, lastn)); k.e('s_cbranch_scc1 L_S_final')
                it(16)
            k.label('L_S_drain')
            k.e('s_cmp_eq_u32 s%d, %d' % (sDr, lastn)); k.e('s_cbranch_scc1 L_S_final')
            it(8)
            if opt.l2w:
                k.e('s_cmp_lg_u32 s%d, %d' % (sDr, opt.l2w)); k.e('s_cbranch_scc1 L_S_drain')
                k.e('s_mov_b32 s%d, %d' % (sT2, WS_FLAGS + F_H5 * 128))
                poll_issue(k, 's%d' % sT2)
                k.e('s_waitcnt vmcnt(0)')
                k.e('v_readfirstlane_b32 s%d, v%d' % (sT, vPl))
                k.e('s_cmp_lt_u32 s%d, %d' % (sT, NRPK)); k.e('s_cbranch_scc1 L_S_drain')
                k.e('s_lshr_b32 s%d, s2, 3' % sT); k.e('s_lshl_b32 s%d, s%d, 2' % (sT, sT)); k.e('s_and_b32 s%d, s%d, 3' % (sT2, sW)); k.e('s_add_u32 s%d, s%d, s%d' % (sT, sT, sT2))
                k.e('v_lshlrev_b32 v%d, 7, v0' % vT0)
                for e in range(opt.l2n):
                    k.e('s_add_u32 s%d, s%d, %d' % (sA, sT, 96 * e)); k.e('s_and_b32 s%d, s%d, 7' % (sB, sA)); k.e('s_lshr_b32 s%d, s%d, 3' % (sA, sA))
                    k.e('s_mul_i32 s%d, s%d, 0x%x' % (sB, sB, WP_CS)); k.e('s_lshl_b32 s%d, s%d, 13' % (sA, sA)); k.e('s_add_u32 s%d, s%d, s%d' % (sA, sA, sB))
                    k.e('s_mul_i32 s%d, s%d, %d' % (sB, sKH, 64 * 5120)); k.e('s_add_u32 s%d, s%d, s%d' % (sA, sA, sB)); k.e('s_add_u32 s%d, s%d, 0x%x' % (sA, sA, WS_WP + 54 * 5120))
                    k.e('buffer_load_dword v8, v%d, %s, s%d offen sc1' % (vT0, S(SWS), sA))
            k.e('s_branch L_S_drain')
            if opt.early2:
                k.label('L_S_late')
                k.e('s_waitcnt vmcnt(0)'); k.e('s_barrier'); polls(); p3_pre(None)
                k.e('s_branch L_att_end2')
            k.label('L_S_final')
            if opt.early2 and opt.nbpoll:
                k.e('s_mov_b32 s%d, %d' % (sT2, WS_FLAGS + F_H5 * 128))
                poll_issue(k, 's%d' % sT2)
                k.e('s_waitcnt vmcnt(0)')
                k.e('v_readfirstlane_b32 s%d, v%d' % (sT, vPl))
                k.e('s_cmp_ge_u32 s%d, %d' % (sT, NRPK)); k.e('s_cbranch_scc1 L_S_early')
                k.e('s_barrier'); k.e('s_barrier')
                polls(); p3_pre(None)
                k.e('s_branch L_att_end2')
                k.label('L_S_early')
                p3_h3_issue(); p3_h3_check()
            else:
                polls()
            k.e('s_barrier')
            p3_pre(opt.early2 if opt.early2 else None)
            k.e('s_branch L_att_end2')
    k.label('L_att_end')
    p3_h3_check()
    p3_preL()
    k.label('L_att_end2')
    k.e('v_mov_b32 v%d, %d' % (vT0, VOTE))
    k.e('s_barrier')
    k.e('ds_read_b32 v%d, v%d' % (vT0, vT0))
    stamp(k, opt, 5)
    k.e('s_waitcnt lgkmcnt(0)')
    k.e('v_readfirstlane_b32 s%d, v%d' % (sT, vT0))
    k.e('s_cmp_eq_u32 s%d, 0' % sT); k.e('s_cbranch_scc1 L_att_ok')
    k.e('s_cmp_lg_u32 s%d, 0' % sSafe); k.e('s_cbranch_scc1 L_att_ok')
    k.e('s_mov_b32 s%d, 1' % sSafe)
    k.e('s_waitcnt vmcnt(0)'); k.e('s_barrier')
    for f in att_init_items(k): f()
    k.e('s_cmp_lt_u32 s%d, 4' % sW); k.e('s_cbranch_scc1 L_att_start')
    ld_setup(k); ld_stage(k, True); ld_stage(k); ld_stage(k)
    k.e('s_branch L_att_start')
    k.label('L_att_ok')

sRBP, sKH, sAh, sAc, sW2o, sWOo, sWp, sH4 = 79, 80, 81, 82, 83, 84, 85, 86
vPR = 7; vA = [vL16, 15]; vXo = 6; vPl = 10
AR = 48
PW = 16
PACC = 160
XR = 200
NST = 23; NF = 7
def set_half(opt, kh):
    global NST, NF
    NF = opt.nfe if kh == 0 else 14 - opt.nfe
    NST = NF + 16
HORD = [0, 1, 2, 3, 8, 9, 10, 11, 4, 5, 6, 7, 12, 13, 14, 15]
def krel(st): return st if st < NF else HORD[st - NF]
def pslot(st): return ((st + 7) % 8) * 20480

def p3_setup(k):
    k.e('s_and_b32 s%d, s2, 1' % sKH)
    k.e('s_bfe_u32 s%d, s2, 0x20001' % sT); k.e('s_lshl_b32 s%d, s%d, 2' % (sT, sT)); k.e('s_bfe_u32 s%d, s2, 0x20003' % sT2); k.e('s_add_u32 s%d, s%d, s%d' % (sT, sT, sT2))
    k.e('s_lshl_b32 s%d, s%d, 2' % (sRBP, sT)); k.e('s_and_b32 s%d, s%d, 3' % (sA, sW)); k.e('s_add_u32 s%d, s%d, s%d' % (sRBP, sRBP, sA))
    k.e('s_lshr_b32 s%d, s%d, 2' % (sT, sW))
    k.e('s_lshl_b32 s%d, s%d, 12' % (sT2, sT))
    k.e('s_mul_i32 s%d, s%d, 0x%x' % (sAh, sRBP, H_BS)); k.e('s_add_u32 s%d, s%d, s%d' % (sAh, sAh, sT2)); k.e('s_add_u32 s%d, s%d, 0x%x' % (sAh, sAh, WS_H))
    k.e('s_mul_i32 s%d, s%d, 0x%x' % (sAc, sRBP, CTX_BS)); k.e('s_add_u32 s%d, s%d, s%d' % (sAc, sAc, sT2)); k.e('s_add_u32 s%d, s%d, 0x%x' % (sAc, sAc, WS_CTX))
    k.e('s_mul_i32 s%d, s%d, %d' % (sT2, sKH, (4 * OPT[0].nfe - 2) * 2048)); k.e('s_add_u32 s%d, s%d, s%d' % (sAh, sAh, sT2))
    k.e('s_lshl_b32 s%d, s%d, 17' % (sT2, sKH)); k.e('s_add_u32 s%d, s%d, s%d' % (sAc, sAc, sT2))
    k.e('s_lshl_b32 s%d, s%d, 1' % (sT2, sW)); k.e('s_mul_i32 s%d, s%d, 3' % (sWp, sW)); k.e('s_sub_u32 s%d, s%d, 4' % (sWp, sWp))
    k.e('s_max_i32 s%d, s%d, s%d' % (sWp, sWp, sT2)); k.e('s_lshl_b32 s%d, s%d, 10' % (sWp, sWp))
    k.e('s_lshr_b32 s%d, s2, 5' % sB); k.e('s_mul_i32 s%d, s%d, 0x%x' % (sW2o, sB, WP_CS)); k.e('s_add_u32 s%d, s%d, 0x%x' % (sW2o, sW2o, WS_WP))
    k.e('s_mul_i32 s%d, s%d, %d' % (sT2, sKH, 64 * 5120)); k.e('s_add_u32 s%d, s%d, s%d' % (sWOo, sW2o, sT2)); k.e('s_add_u32 s%d, s%d, %d' % (sWOo, sWOo, 54 * 5120))
    k.e('s_mul_i32 s%d, s%d, %d' % (sT2, sKH, (4 * OPT[0].nfe - 2) * 5120)); k.e('s_add_u32 s%d, s%d, s%d' % (sW2o, sW2o, sT2))
    k.e('s_lshl_b32 s%d, s%d, 1' % (sH4, sRBP)); k.e('s_add_u32 s%d, s%d, s%d' % (sH4, sH4, sKH)); k.e('s_lshl_b32 s%d, s%d, 8' % (sH4, sH4))
    k.e('s_add_u32 s%d, s%d, %d' % (sH4, sH4, WS_FLAGS + F_H4 * 128))
    k.e('v_add_u32 v%d, 4096, v%d' % (vA[1], vL16))
    k.e('v_lshrrev_b32 v%d, 2, v0' % vPR); k.e('v_mul_u32_u24 v%d, 160, v%d' % (vPR, vPR))
    k.e('v_and_b32 v%d, 3, v0' % vU); k.e('v_lshl_add_u32 v%d, v%d, 3, v%d' % (vPR, vU, vPR))
    k.e('s_mul_i32 s%d, s%d, 10240' % (sT2, sT)); k.e('s_add_u32 s%d, s%d, %d' % (sT2, sT2, pslot(0))); k.e('v_add_u32 v%d, s%d, v%d' % (vPR, sT2, vPR))
    k.e('s_lshl_b32 s%d, s%d, 1' % (sT2, sRBP)); k.e('s_add_u32 s%d, s%d, s%d' % (sT2, sT2, sT)); k.e('s_lshl_b32 s%d, s%d, 4' % (sT2, sT2))
    k.e('v_and_b32 v%d, 15, v0' % vU); k.e('v_add_u32 v%d, s%d, v%d' % (vU, sT2, vU)); k.e('v_mul_u32_u24 v%d, 1280, v%d' % (vXo, vU))
    k.e('v_lshrrev_b32 v%d, 4, v0' % vU); k.e('v_lshl_add_u32 v%d, v%d, 3, v%d' % (vXo, vU, vXo))
    k.e('s_mul_i32 s%d, s%d, 160' % (sT, sB)); k.e('v_add_u32 v%d, s%d, v%d' % (vXo, sT, vXo))

def p3_w_items(k, st, role, tok):
    base, rel = (sW2o if st < NF else sWOo), krel(st)
    it = []
    for j in range(2 + role):
        def f(j=j):
            if j == 0:
                k.e('s_add_u32 s%d, s%d, s%d' % (sA, base, sWp))
                if rel: k.e('s_add_u32 s%d, s%d, 0x%x' % (sA, sA, rel * 20480))
                k.e('s_add_u32 m0, s%d, %d' % (sWp, pslot(st))); k.e('s_nop 0')
            tok[('pw', st)] = k.vm('buffer_load_dwordx4 v%d, %s, s%d offen offset:%d sc1 lds' % (vL16, S(SWS), sA, j * 1024))
        it.append(f)
    return it

def p3_a_items(k, st, na, tok):
    base, rel = (sAh if st < NF else sAc), krel(st)
    it = []
    for j in range(4):
        def f(j=j):
            if j == 0: k.e('s_add_u32 s%d, s%d, %d' % (sB, base, rel * 8192))
            tok[('pa', st, j >> 1)] = k.vm('buffer_load_dwordx4 %s, v%d, %s, s%d offen offset:%d sc1' % (R(AR + (st % na) * 16 + j * 4), vL16, S(SWS), sB, j * 1024))
        it.append(f)
    return it

def poll_issue(k, soff):
    k.e('buffer_load_dword v%d, v%d, %s, %s offen sc1' % (vPl, vZ, S(SWS), soff))
def poll_check(k, soff, target, meanwhile=None):
    lab = k.newlab('pok')
    k.e('v_readfirstlane_b32 s%d, v%d' % (sT, vPl))
    k.e('s_cmp_ge_u32 s%d, %d' % (sT, target)); k.e('s_cbranch_scc1 %s' % lab)
    if meanwhile: meanwhile()
    poll(k, SWS, soff, str(target), vPl)
    k.label(lab)
def keeper_scc(k):
    k.e('s_bfe_u32 s%d, s%d, 0x10001' % (sC, sW)); k.e('s_cmp_eq_u32 s%d, s%d' % (sC, sKH))

def p3_body(k, opt, role, tok, kh):
    ksl = role
    WD = opt.wd
    NA = 7 if role else 5
    AD = NA - 1
    A0 = PA0 if role else 0
    late = {}
    if role == 0:
        stores = tok['stores']
        if opt.h4s < 0:
            assert opt.cst0 == 8
            tst = k.last_vm()
            for f in p3_w_items(k, 1, role, tok): f()
            k.wait(vm=tst)
            signal(k, SWS, 's%d' % sFl, vT0); k.vm_issued += 1
            for f in p3_a_items(k, 1, NA, tok): f()
        else:
            for f in p3_w_items(k, 1, role, tok) + p3_a_items(k, 1, NA, tok): f()
        late[0] = stores[opt.cst0:] + [lambda: tok.__setitem__('st', k.last_vm())] + p3_w_items(k, 2, role, tok) + p3_a_items(k, 2, NA, tok)
        late[1] = p3_w_items(k, 3, role, tok) + p3_a_items(k, 3, NA, tok)
        for st in range(4, WD): late[st - 2] = p3_w_items(k, st, role, tok)
        k.wait(vm=tok[('pa', 0, 0)])
        anext = 4
    else:
        signal(k, SWS, 's%d' % sFl, vT0); k.vm_issued += 1
        for st in range(1, WD):
            for f in p3_w_items(k, st, role, tok): f()
            if st >= A0 and st < min(4, NF):
                for f in p3_a_items(k, st, NA, tok): f()
        A0 = max(A0, min(4, NF))
        k.wait(vm=tok['x'])
        for i in range(20):
            k.e('v_lshlrev_b32 v%d, 16, v%d' % (PACC + 2 * i, XR + i)); k.e('v_and_b32 v%d, 0xffff0000, v%d' % (PACC + 2 * i + 1, XR + i))
        anext = A0
    k.ds_issued = k.ds_done = 0
    AHP = 5
    frags = [(st, e, cb) for st in range(NST) for e in range(2) for cb in range(5)]
    def read(n, half=None):
        st, e, cb = frags[n]
        if e == 0 and cb == 0 and st > 0 and half != 1:
            k.e('v_add_u32 v%d, 0x%x, v%d' % (vPR, (pslot(st) - pslot(st - 1)) & 0xffffffff, vPR))
        r = PW + 4 * (n % 8); off = e * 5120 + cb * 32
        if half != 1: k.ds('ds_read_b64_tr_b16 %s, v%d offset:%d' % (R(r, 2), vPR, off))
        if half != 0: tok[('pf', n)] = k.ds('ds_read_b64_tr_b16 %s, v%d offset:%d' % (R(r + 2, 2), vPR, off + 2560))
    k.e('s_barrier')
    stamp(k, opt, 6)
    for n in range(AHP): read(n)
    HC = max(NF - opt.h4d, 1)
    HC2 = NF + 8 - opt.h4d2
    assert opt.h4s < HC
    for st in range(NST):
        extra = {}
        ex = list(late.get(st, []))
        lim = min(st + 4, NST - 1)
        while anext <= lim and (anext < NF or st > HC) and (anext < NF + 8 or st > HC2) and anext - NA < st:
            ex += p3_a_items(k, anext, NA, tok); anext += 1
        spread(extra, ex, 0, 4)
        wit = p3_w_items(k, st + WD, role, tok) if st + WD < NST else []
        for i in range(10):
            n = st * 10 + i
            _, e, cb = frags[n]
            k.wait(ds=tok[('pf', n)])
            if cb == 0: k.wait(vm=tok[('pa', st, e)])
            ms = [mfma(PACC + (cb * 2 + q) * 4, PW + 4 * (n % 8), AR + (st % NA) * 16 + e * 8 + q * 4, PACC + (cb * 2 + q) * 4) for q in range(2)]
            if st == 0 and ksl == 0 and kh == 1: ms = [None, None]
            if ms[0]: k.e(ms[0])
            if i == 10 - AHP and st < NST - 1:
                if st == HC:
                    k.wait(vm=tok['h4'])
                    def warm():
                        k.e('s_bfe_u32 s%d, s2, 0x20003' % sT); k.e('s_lshl_b32 s%d, s%d, 3' % (sT, sT)); k.e('s_add_u32 s%d, s%d, s%d' % (sT, sT, sW))
                        k.e('s_mul_i32 s%d, s%d, 10240' % (sT, sT)); k.e('s_add_u32 s%d, s%d, s%d' % (sT, sT, sWOo))
                        k.e('v_lshlrev_b32 v%d, 7, v0' % vT0)
                        k.e('buffer_load_dword v%d, v%d, %s, s%d offen sc1' % (vPl, vT0, S(SWS), sT))
                        k.e('v_and_b32 v%d, 0x7ff, v%d' % (vT0, vT0)); k.e('s_add_u32 s%d, s%d, 8192' % (sT, sT))
                        k.e('buffer_load_dword v%d, v%d, %s, s%d offen sc1' % (vPl, vT0, S(SWS), sT))
                    poll_check(k, 's%d' % sH4, 8, warm if opt.warm else None)
                if st == HC2:
                    k.wait(vm=tok['h4'])
                    poll_check(k, 's%d' % sH4, 8)
                k.wait(vm=tok[('pw', st + 1)])
                k.e('s_barrier')
                if opt.p3st and st in P3ST: stamp(k, opt, P3ST[st])
                if role == 0 and st == opt.h4s:
                    k.wait(vm=tok['st'])
                    signal(k, SWS, 's%d' % sFl, vT0); k.vm_issued += 1
                if st == HC2 - 1: k.e('s_add_u32 s%d, s%d, 128' % (sH4, sH4))
                if st in (HC - 1, HC2 - 1):
                    poll_issue(k, 's%d' % sH4); k.vm_issued += 1; tok['h4'] = k.last_vm()
            if n + AHP < len(frags): read(n + AHP, 0 if opt.split else None)
            if ms[1]: k.e(ms[1])
            if opt.split and n + AHP < len(frags): read(n + AHP, 1)
            for f in extra.get(i, []): f()
            if i >= 10 - AHP and wit: wit.pop(0)()
        assert not wit
    stamp(k, opt, 7)
    if opt.diagsleep3: k.e('s_sleep %d' % opt.diagsleep3)
    KA = [PACC + (c * 2 + ksl) * 4 for c in range(5)]; SA = [PACC + (c * 2 + 1 - ksl) * 4 for c in range(5)]
    k.e('s_mul_i32 s%d, s%d, 5120' % (sT, sW)); k.e('v_add_u32 v%d, s%d, v%d' % (vT0, sT, vL16))
    k.e('s_xor_b32 s%d, s%d, 4' % (sT2, sW)); k.e('s_mul_i32 s%d, s%d, 5120' % (sT2, sT2)); k.e('v_add_u32 v%d, s%d, v%d' % (vPl, sT2, vL16))
    XB = [x for x in (0, 20480, 40960, 61440) if not {x, x + 20480} & {pslot(NST - 1), pslot(NST - 2)}][0]
    k.e('v_add_u32 v%d, %d, v%d' % (vT0, XB, vT0)); k.e('v_add_u32 v%d, %d, v%d' % (vPl, XB, vPl))
    k.e('s_nop 2')
    for c in range(5): k.e('ds_write_b128 v%d, %s offset:%d' % (vT0, R(SA[c]), c * 1024))
    keeper_scc(k); k.e('s_cselect_b32 s%d, 1, 0' % sC); k.e('s_xor_b32 s%d, s2, s%d' % (sT2, sC))
    k.e('s_mul_i32 s%d, s%d, 0x%x' % (sA, sT2, EX_BS)); k.e('s_add_u32 s%d, s%d, s%d' % (sA, sA, sT)); k.e('s_add_u32 s%d, s%d, 0x%x' % (sA, sA, WS_EX))
    k.e('s_lshl_b32 s%d, s%d, 7' % (sFl, sT2)); k.e('s_lshl_b32 s%d, s%d, 2' % (sT2, sW)); k.e('s_add_u32 s%d, s%d, s%d' % (sFl, sFl, sT2))
    k.e('s_add_u32 s%d, s%d, %d' % (sFl, sFl, WS_FLAGS + F_X5 * 128))
    k.e('s_waitcnt lgkmcnt(0)')
    k.e('s_barrier')
    RX = 16
    for c in range(5): k.e('ds_read_b128 %s, v%d offset:%d' % (R(RX + c * 4), vPl, c * 1024))
    keep = k.newlab('keep')
    k.e('s_cmp_lg_u32 s%d, 0' % sC); k.e('s_cbranch_scc1 %s' % keep)
    def add_sib(c):
        k.e('s_waitcnt lgkmcnt(%d)' % (4 - c))
        for e in range(2): k.e('v_pk_add_f32 %s, %s, %s' % (R(KA[c] + 2 * e, 2), R(KA[c] + 2 * e, 2), R(RX + c * 4 + 2 * e, 2)))
    for c in range(5):
        add_sib(c)
        k.e('buffer_store_dwordx4 %s, v%d, %s, s%d offen offset:%d sc1' % (R(KA[c]), vA[c >> 2], S(SWS), sA, (c & 3) * 1024))
    k.e('v_mov_b32 v%d, 1' % vT0)
    k.e('s_waitcnt vmcnt(0)')
    k.e('s_mov_b64 exec, 1')
    k.e('buffer_store_dword v%d, v%d, %s, s%d offen sc1' % (vT0, vZ, S(SWS), sFl))
    k.e('s_branch L_fin')
    k.label(keep)
    for c in range(5): add_sib(c)
    poll(k, SWS, 's%d' % sFl, '1', vPl)
    for c in range(5):
        k.e('buffer_load_dwordx4 %s, v%d, %s, s%d offen offset:%d sc1' % (R(RX + c * 4), vA[c >> 2], S(SWS), sA, (c & 3) * 1024))
    for c in range(5):
        a = KA[c]
        k.e('s_waitcnt vmcnt(4)')
        for e in range(2): k.e('v_pk_add_f32 %s, %s, %s' % (R(a + 2 * e, 2), R(a + 2 * e, 2), R(RX + c * 4 + 2 * e, 2)))
        k.e('v_cvt_pk_bf16_f32 v%d, v%d, v%d' % (a, a, a + 1)); k.e('v_cvt_pk_bf16_f32 v%d, v%d, v%d' % (a + 1, a + 2, a + 3))
        k.e('buffer_store_dwordx2 %s, v%d, %s, 0 offen offset:%d' % (R(a, 2), vXo, S(SOUT), c * 32))
    k.e('s_branch L_fin')

P3ST = {0: 1, 2: 2, 4: 3, 6: 4, 9: 9, 13: 10, 17: 11, 21: 13}
def phase_attn_p3(k, opt):
    tokS = {}; tokL = {}; trk = {}
    global PA0
    PA0 = min(opt.pa0, opt.nfe, 14 - opt.nfe)
    assert opt.early2 < PA0 and PA0 >= 4
    def h3_issue():
        k.e('s_lshl_b32 s%d, s%d, 7' % (sFl, sRBP)); k.e('s_add_u32 s%d, s%d, %d' % (sFl, sFl, WS_FLAGS + F_H3 * 128))
        poll_issue(k, 's%d' % sFl)
    def h3_check():
        k.e('s_waitcnt vmcnt(0)')
        poll_check(k, 's%d' % sFl, 27)
    def pre(barrier_at):
        k.vm_issued = k.vm_done = 0
        k.e('s_and_b32 s%d, s%d, 3' % (sT, sW)); k.e('s_mul_i32 s%d, s%d, 5120' % (sT, sT))
        k.e('s_add_u32 s%d, s%d, s%d' % (sA, sW2o, sT)); k.e('s_add_u32 m0, s%d, %d' % (sT, pslot(0))); k.e('s_nop 0')
        for j in range(5):
            if j == 4: k.e('s_add_u32 m0, s%d, %d' % (sT, pslot(0) + 4096)); k.e('s_nop 0')
            k.vm('buffer_load_dwordx4 v%d, %s, s%d offen offset:%d sc1 lds' % (vA[j >> 2], S(SWS), sA, (j & 3) * 1024))
        for f in p3_a_items(k, 0, 7, tokS): f()
        keeper_scc(k); k.e('s_cselect_b32 s%d, 0, 0x10000000' % sC)
        k.e('v_subrev_u32 v%d, %d, v%d' % (vT0, 16 * 1280, vXo))
        for c in range(5):
            for qb in range(2):
                tokS['x'] = k.vm('buffer_load_dwordx2 %s, v%d, %s, s%d offen offset:%d' % (R(XR + (c * 2 + qb) * 2, 2), vXo if qb else vT0, S(SX), sC, c * 32))
        for st in range(1, PA0):
            if st == barrier_at: k.e('s_barrier')
            for f in p3_a_items(k, st, 7, tokS): f()
        trk['S'] = (k.vm_issued, k.vm_done)
    def preL():
        k.vm_issued = k.vm_done = 0
        for f in p3_a_items(k, 0, 5, tokL): f()
        tokL['stores'] = ctx_epilogue(k, defer=True)
        for f in tokL['stores'][:opt.cst0]: f()
        for i in range(20): k.e('v_mov_b64 %s, 0' % R(PACC + 2 * i, 2))
        trk['L'] = (k.vm_issued, k.vm_done)
    phase_attn(k, opt, pre, h3_issue, h3_check, preL)
    k.e('s_lshl_b32 s%d, s%d, 1' % (sFl, sRB)); k.e('s_lshr_b32 s%d, s%d, 4' % (sT, sH)); k.e('s_add_u32 s%d, s%d, s%d' % (sFl, sFl, sT))
    k.e('s_lshl_b32 s%d, s%d, 1' % (sFl, sFl)); k.e('s_add_u32 s%d, s%d, s%d' % (sFl, sFl, sKH))
    k.e('s_lshl_b32 s%d, s%d, 7' % (sFl, sFl)); k.e('s_add_u32 s%d, s%d, %d' % (sFl, sFl, WS_FLAGS + F_H4 * 128))
    k.label('L_pub2')
    k.e('s_cmp_ge_u32 s%d, 4' % sW); k.e('s_cbranch_scc1 L_p3_S')
    for role, tk, nm in ((0, tokL, 'L'), (1, tokS, 'S')):
        if role: k.label('L_p3_S')
        k.e('s_cmp_lg_u32 s%d, 0' % sKH); k.e('s_cbranch_scc1 L_p3_%s1' % nm)
        for kh in range(2):
            if kh: k.label('L_p3_%s1' % nm)
            set_half(opt, kh)
            k.vm_issued, k.vm_done = trk[nm]
            p3_body(k, opt, role, dict(tk), kh)
    k.label('L_fin')
    stamp(k, opt, 8)
```

```python
import sys, os
sys.path.insert(0, os.path.dirname(os.path.abspath(__file__)))
from kb import *

NAME = 'parallel_sum__compressed_kv_cla__dense_activation_relu__prompt'
WS_FLAGS = 0
WS_XN = 0x20000;   XN_BS = 40960
WS_H = WS_XN + 64 * XN_BS;   H_BS = 0x1B000
WS_KV = WS_H + 64 * H_BS;  KVS = 0x83000
WS_CTX = WS_KV + 64 * KVS; CTX_BS = 0x43000
WS_EX = WS_CTX + 64 * CTX_BS; EX_BS = 0x14C00
WS_WP = WS_EX + 256 * EX_BS; WP_CS = 183 * 5120 + 3072
WS_DBGQ = 0x6000000
WS_STAMP = 0x7000000
assert WS_WP + 8 * WP_CS <= WS_DBGQ
F_H2, F_H3, F_H4, F_X5, F_H5 = 0, 32, 96, 352, 608
SX, SCKV, SWQ, SWUK, SWUV, SWO, SW1, SW2, SOUT, SDBG, SWS = 4, 8, 12, 16, 20, 24, 28, 32, 36, 40, 44
sW, sH, sP, sRB = 48, 49, 50, 51
sW4096, sW1056 = 52, 53
sA, sB, sC, sT, sT2 = 54, 55, 56, 57, 58
sXN, sKst, sVst, sHst = 59, 60, 61, 62
sSc = 64
sSpin = 66
sRot = 63
sF, sNoF = 3, 92
KV_C = [0, 66560]; KV_W = [32768, 99328]
QA, QB, QC = 138496, 113152, 87808
QSLOT = [QA, QC, QB]
LN_BUF = QA; LN_STRIDE = 1296
LDS_BYTES = 163840
vL16, vWD, vW1D, vZ = 1, 2, 3, 4
vT0, vT3 = 5, 8
vG, vI, vU, vV = 16, 17, 18, 19
XR_LN = [8, 13, 14, 126, 127]
vWQR = [9, 10]
vW1R = [11, 12]
vCD = [112, 113, 114, 115]
vCR = [[116, 117], [118, 119]]
vWR = [120, 121]
ACCK, ACCV = 128, 192
CF = [16, 64]; WF = [48, 96]

class Opt:
    stamps = False
    dumpq = False
    stop = None
    pf = 8
    stouch = 0
    wpol = ''
    diagsleep0 = 0
    diagsleep1 = 0
    diagsleep3 = 0
    diagsleep = 0
    split = 1
    qah = 5
    lnfirst = 0
    pfqr = 2
    pfqs = 12345
    skipm = 0x20202022
    rot = 0
    h4d = 4
    h4d2 = 4
    h4s = -1
    cst0 = 8
    pa0 = 7
    early2 = 3
    l2w = 0
    l2n = 2
    nbpoll = 1
    nfe = 9
    fast4 = 0
    warm = 0
    exbf = 0
    wd = 5
    p3st = 0
    rp0 = 1
    rpl = 4
    rps = 20
    prio = 'q7'
    prio2 = None
    qst = 0
    kvst = 0
    pfd = 2
    pf0 = 2
    pfp = 2
    dstamps = False
    pfi = 128
    kvpol = 'sc1'
    only = None
    pfc = 0
    abl = ''
    kvw = 28
    stw = 0
    hack = 0
    pfg = 64
    pfq = 1
    h2poll = 10
    stsched = 3322222
    early = 0
    stper = 2
    h2sig = 7

def emit_interleaved(k, mf, fill, tok):
    for i, (txt, needs) in enumerate(mf):
        need = [tok[x] for x in needs if x in tok]
        if need: k.wait(ds=max(need))
        k.e(txt)
        for f in fill.get(i, []): f()

def spread(fill, items, first, last):
    n = len(items)
    for j, it in enumerate(items):
        s = first + (j * (last - first + 1)) // max(n, 1)
        fill.setdefault(s, []).append(it)

def stamp(k, opt, idx):
    vS = 3 if 'L_q_done:' in k.lines else 5
    if opt.dstamps:
        m = {0: 1, 1: 2, 2: 3, 3: 4, 9: 5, 5: 6, 7: 7, 8: 8}
        if idx not in m: return
        lab = k.newlab('st')
        k.e('s_cmp_lg_u32 s%d, %d' % (sW, opt.stw)); k.e('s_cbranch_scc1 %s' % lab)
        k.e('s_cmp_lg_u32 s2, 77'); k.e('s_cbranch_scc1 %s' % lab)
        k.e('s_memrealtime s[100:101]'); k.e('s_memtime s[94:95]'); k.e('s_waitcnt lgkmcnt(0)')
        k.e('v_mov_b32 v%d, s100' % vS)
        k.e('buffer_store_dword v%d, v%d, %s, 0 offen offset:%d' % (vS, vZ, S(SDBG), m[idx] * 4))
        if m[idx] == 1:
            k.e('v_mov_b32 v%d, s96' % vS)
            k.e('buffer_store_dword v%d, v%d, %s, 0 offen offset:%d' % (vS, vZ, S(SDBG), 36))
        if m[idx] >= 3:
            k.e('v_mov_b32 v%d, s94' % vS)
            k.e('buffer_store_dword v%d, v%d, %s, 0 offen offset:%d' % (vS, vZ, S(SDBG), (m[idx] + 7) * 4))
        k.label(lab)
        return
    if not opt.stamps: return
    if opt.p3st and idx in (1, 2, 3, 4, 9, 10, 11, 13) and 'L_pub2:' not in k.lines: return
    lab = k.newlab('st')
    k.e('s_cmp_lg_u32 s%d, %d' % (sW, opt.stw)); k.e('s_cbranch_scc1 %s' % lab)
    k.e('s_memrealtime s[100:101]'); k.e('s_memtime s[94:95]'); k.e('s_waitcnt lgkmcnt(0)')
    k.e('s_lshl_b32 s99, s2, 7'); k.e('s_add_u32 s99, s99, 0x%x' % (WS_STAMP + idx * 4))
    k.e('v_mov_b32 v%d, s100' % vS)
    k.e('buffer_store_dword v%d, v%d, %s, s99 offen' % (vS, vZ, S(SWS)))
    k.e('v_mov_b32 v%d, s94' % vS)
    k.e('buffer_store_dword v%d, v%d, %s, s99 offen offset:64' % (vS, vZ, S(SWS)))
    if idx == 0:
        k.e('v_mov_b32 v%d, s96' % vS)
        k.e('buffer_store_dword v%d, v%d, %s, s99 offen offset:48' % (vS, vZ, S(SWS)))
    k.label(lab)

def poll(k, srd, soff, target, vtmp):
    lp = k.newlab('poll'); dn = k.newlab('polld')
    k.e('s_mov_b32 s%d, 0x10000' % sSpin)
    k.label(lp)
    k.e('buffer_load_dword v%d, v%d, %s, %s offen sc1' % (vtmp, vZ, S(srd), soff))
    k.e('s_waitcnt vmcnt(0)')
    k.e('v_readfirstlane_b32 s%d, v%d' % (sT, vtmp))
    k.e('s_cmp_ge_u32 s%d, %s' % (sT, target))
    k.e('s_cbranch_scc1 %s' % dn)
    k.e('s_sleep 2')
    k.e('s_sub_u32 s%d, s%d, 1' % (sSpin, sSpin))
    k.e('s_cmp_lg_u32 s%d, 0' % sSpin)
    k.e('s_cbranch_scc1 %s' % lp)
    k.label(dn)

def signal(k, srd, soff, vtmp):
    k.e('v_mov_b32 v%d, 1' % vtmp)
    k.e('s_mov_b64 exec, 1')
    k.e('buffer_atomic_add v%d, v%d, %s, %s offen' % (vtmp, vZ, S(srd), soff))
    k.e('s_mov_b64 exec, -1')

def setprio_young(k, p):
    lab = k.newlab('pr')
    k.e('s_cmp_lt_u32 s%d, 4' % sW); k.e('s_cbranch_scc1 %s' % lab)
    k.e('s_setprio %d' % p)
    k.label(lab)

def signal_w0(k, srd, sreg, vtmp):
    k.e('s_cmp_eq_u32 s%d, 0' % sW); k.e('s_cselect_b32 s%d, s%d, 0x10000000' % (sreg, sreg))
    signal(k, srd, 's%d' % sreg, vtmp)
    k.vm_issued += 1

WPOL = ['']
def dma(k, voff, srd, soff, m0base, m0imm):
    k.e('s_add_u32 m0, s%d, %d' % (m0base, m0imm))
    k.e('s_nop 0')
    return k.vm('buffer_load_dwordx4 v%d, %s, %s offen %s lds' % (voff, S(srd), soff, WPOL[0]))

vPf = 123; vPfA = 122
sPc = 93
CTOUCH = [False]
def pf_paced_setup(k):
    k.e('s_lshl_b32 s%d, s%d, 3' % (sT, sP)); k.e('s_add_u32 s%d, s%d, s%d' % (sT, sT, sW)); k.e('s_lshl_b32 s%d, s%d, 13' % (sT, sT))
    k.e('s_lshl_b32 s%d, s%d, 8' % (sT2, sH)); k.e('s_add_u32 s%d, s%d, s%d' % (sT, sT, sT2))
    k.e('v_and_b32 v%d, 1, v0' % vPfA); k.e('v_lshlrev_b32 v%d, 7, v%d' % (vPfA, vPfA)); k.e('v_add_u32 v%d, s%d, v%d' % (vPfA, sT, vPfA))
def pf_paced(k, st):
    def f0():
        k.e('s_add_u32 s%d, s%d, %d' % (sPc, sRot, st)); k.e('s_and_b32 s%d, s%d, 7' % (sPc, sPc)); k.e('s_lshl_b32 s%d, s%d, 19' % (sPc, sPc))
        k.vm('buffer_load_dword v%d, v%d, %s, s%d offen' % (vPf, vPfA, S(SWUK), sPc))
    def f1():
        k.vm('buffer_load_dword v%d, v%d, %s, s%d offen' % (vPf, vPfA, S(SWUV), sPc))
        if CTOUCH[0]:
            k.e('s_lshl_b32 s%d, s2, 3' % sPc); k.e('s_add_u32 s%d, s%d, s%d' % (sPc, sPc, sW)); k.e('s_lshl_b32 s%d, s%d, 10' % (sPc, sPc))
            k.vm('buffer_load_dword v%d, v%d, %s, s%d offen offset:%d' % (vPf, vZ, S(SCKV), sPc, st * 128))
    return [f0, f1]

vPq, vPw = 124, 125
def pfq_setup(k, R_):
    k.e('s_mul_i32 s%d, s%d, 80' % (sT, sP)); k.e('s_mul_i32 s%d, s%d, 10' % (sT2, sW)); k.e('s_add_u32 s%d, s%d, s%d' % (sT, sT, sT2))
    k.e('v_lshrrev_b32 v%d, 1, v0' % vPq); k.e('v_min_u32 v%d, %d, v%d' % (vPq, R_ - 1, vPq)); k.e('v_add_u32 v%d, s%d, v%d' % (vPq, sT, vPq))
    k.e('v_mul_u32_u24 v%d, 3456, v%d' % (vPw, vPq))
    k.e('v_and_b32 v%d, 1, v0' % vV); k.e('v_lshlrev_b32 v%d, 13, v%d' % (vPq, vPq)); k.e('v_lshl_add_u32 v%d, v%d, 7, v%d' % (vPq, vV, vPq))
    k.e('s_lshl_b32 s%d, s%d, 7' % (sT, sF)); k.e('v_add_u32 v%d, s%d, v%d' % (vPw, sT, vPw))
    k.e('s_lshl_b32 s%d, s%d, 8' % (sT, sH)); k.e('v_add_u32 v%d, s%d, v%d' % (vPq, sT, vPq))
def pfq_paced(k, row0):
    def f0():
        k.e('s_mov_b32 s%d, %d' % (sT, row0 * 8192))
        k.vm('buffer_load_dword v%d, v%d, %s, s%d offen' % (vPf, vPq, S(SWQ), sT))
    def f1():
        k.e('s_mov_b32 s%d, %d' % (sT, row0 * 3456))
        k.vm('buffer_load_dword v%d, v%d, %s, s%d offen' % (vPf, vPw, S(SW1), sT))
    return [f0, f1]

def prologue(k, opt):
    if opt.stamps or opt.dstamps: k.e('s_memrealtime s[96:97]')
    k.e('s_cmp_ge_u32 s2, 256'); k.e('s_cbranch_scc1 L_exit')
    if opt.diagsleep0: k.e('s_sleep %d' % opt.diagsleep0)
    k.e('s_load_dwordx16 s[64:79], s[0:1], 0')
    k.e('s_load_dwordx8 s[80:87], s[0:1], 64')
    k.e('v_lshrrev_b32 v%d, 6, v0' % vG)
    k.e('v_and_b32 v0, 63, v0')
    k.e('v_readfirstlane_b32 s%d, v%d' % (sW, vG))
    k.e('v_lshlrev_b32 v%d, 4, v0' % vL16)
    k.e('v_mov_b32 v%d, 0' % vZ)
    k.e('s_and_b32 s%d, s2, 7' % sT); k.e('s_lshr_b32 s%d, s2, 3' % sT2)
    k.e('s_lshl_b32 s%d, s%d, 2' % (sH, sT)); k.e('s_and_b32 s%d, s%d, 3' % (sT, sT2)); k.e('s_add_u32 s%d, s%d, s%d' % (sH, sH, sT))
    k.e('s_lshr_b32 s%d, s%d, 2' % (sP, sT2))
    k.e('s_lshr_b32 s%d, 0x%x, s%d' % (sNoF, opt.skipm, sH)); k.e('s_and_b32 s%d, s%d, 1' % (sNoF, sNoF))
    k.e('s_bfm_b32 s%d, s%d, 0' % (sF, sH)); k.e('s_and_b32 s%d, s%d, 0x%x' % (sF, sF, opt.skipm)); k.e('s_bcnt1_i32_b32 s%d, s%d' % (sF, sF))
    k.e('s_sub_u32 s%d, s%d, s%d' % (sF, sH, sF))
    if opt.rot == 1: k.e('s_lshl_b32 s%d, s%d, 1' % (sRot, sH))
    elif opt.rot == 2: k.e('s_lshr_b32 s%d, s%d, 2' % (sRot, sH)); k.e('s_lshl_b32 s%d, s%d, 1' % (sT, sH)); k.e('s_add_u32 s%d, s%d, s%d' % (sRot, sRot, sT))
    else: k.e('s_mov_b32 s%d, 0' % sRot)
    k.e('s_sub_u32 s%d, 15, s%d' % (sT, sP))
    k.e('s_cmp_lt_u32 s%d, 4' % sW); k.e('s_cselect_b32 s%d, s%d, s%d' % (sT, sT, sP))
    k.e('s_lshl_b32 s%d, s%d, 2' % (sRB, sT)); k.e('s_and_b32 s%d, s%d, 3' % (sT, sW)); k.e('s_add_u32 s%d, s%d, s%d' % (sRB, sRB, sT))
    k.e('s_lshl_b32 s%d, s%d, 12' % (sW4096, sW)); k.e('s_mul_i32 s%d, s%d, 1056' % (sW1056, sW))
    k.e('v_lshrrev_b32 v%d, 4, v0' % vG); k.e('v_and_b32 v%d, 15, v0' % vI)
    k.e('v_lshrrev_b32 v%d, 3, v0' % vU); k.e('v_and_b32 v%d, 7, v0' % vV)
    k.e('s_lshl_b32 s%d, s%d, 8' % (sT, sP)); k.e('s_lshl_b32 s%d, s%d, 5' % (sT2, sW)); k.e('s_add_u32 s%d, s%d, s%d' % (sT, sT, sT2))
    k.e('v_add_u32 v%d, s%d, v%d' % (vU, sT, vU)); k.e('v_lshlrev_b32 v%d, 10, v%d' % (vU, vU))
    k.e('v_xor_b32 v%d, v%d, v%d' % (vV, vV, vG)); k.e('v_lshlrev_b32 v%d, 4, v%d' % (vV, vV))
    k.e('v_add_u32 v%d, v%d, v%d' % (vCD[0], vU, vV))
    k.e('v_xor_b32 v%d, 64, v%d' % (vCD[1], vCD[0])); k.e('v_add_u32 v%d, 0x2000, v%d' % (vCD[1], vCD[1]))
    k.e('v_add_u32 v%d, 0x4000, v%d' % (vCD[2], vCD[0])); k.e('v_add_u32 v%d, 0x4000, v%d' % (vCD[3], vCD[1]))
    k.e('v_and_b32 v%d, 1, v%d' % (vU, vG)); k.e('v_lshlrev_b32 v%d, 2, v%d' % (vU, vU))
    k.e('v_lshrrev_b32 v%d, 1, v%d' % (vV, vG)); k.e('v_lshl_add_u32 v%d, v%d, 4, v%d' % (vU, vV, vU))
    k.e('s_lshr_b32 s%d, s%d, 2' % (sT, sW)); k.e('s_lshl_b32 s%d, s%d, 3' % (sT, sT)); k.e('s_and_b32 s%d, s%d, 3' % (sT2, sW)); k.e('s_add_u32 s%d, s%d, s%d' % (sT, sT, sT2))
    k.e('v_add_u32 v%d, s%d, v%d' % (vU, sT, vU)); k.e('v_lshlrev_b32 v%d, 13, v%d' % (vU, vU))
    k.e('v_lshl_add_u32 v%d, v%d, 4, v%d' % (vU, vI, vU))
    k.e('s_lshl_b32 s%d, s%d, 8' % (sT, sH)); k.e('v_add_u32 v%d, s%d, v%d' % (vWD, sT, vU))
    k.e('s_waitcnt lgkmcnt(0)')
    if opt.stouch:
        for i, p_ in enumerate((70, 72, 64, 86, 68, 78)[:opt.stouch]): k.e('s_load_dword s%d, s[%d:%d], 0' % (88 + i, p_, p_ + 1))
    sizes = [(SX, 64, 2621440), (SCKV, 66, 2097152), (SWQ, 68, 5242880), (SWUK, 70, 4194304), (SWUV, 72, 4194304), (SWO, 74, 5242880),
             (SW1, 78, 2211840), (SW2, 80, 2211840), (SOUT, 82, 2621440), (SDBG, 84, 256), (SWS, 86, 0x10000000)]
    order = [1, 3, 4, 0, 10, 2, 6, 9, 5, 7, 8]
    def mk(i):
        d, p, n = sizes[i]
        k.e('s_mov_b32 s%d, s%d' % (d, p)); k.e('s_and_b32 s%d, s%d, 0xffff' % (d + 1, p + 1))
        k.e('s_mov_b32 s%d, 0x%x' % (d + 2, n)); k.e('s_mov_b32 s%d, 0x20000' % (d + 3))
    for i in order[:4]: mk(i)
    return lambda: [mk(i) for i in order[4:]]

def kv_dma_items(k, s):
    b = s & 1
    it = []
    def setoff():
        k.e('s_add_u32 s%d, s%d, %d' % (sA, sRot, s)); k.e('s_and_b32 s%d, s%d, 7' % (sA, sA))
        k.e('s_lshl_b32 s%d, s%d, 19' % (sB, sA)); k.e('s_lshl_b32 s%d, s%d, 7' % (sA, sA)); k.e('s_add_u32 s%d, s%d, 0x40000' % (sC, sB))
    first = [True]
    def mkc(jj):
        def f():
            if first[0]: setoff(); first[0] = False
            dma(k, vCD[jj], SCKV, 's%d' % sA, sW4096, KV_C[b] + jj * 1024)
        return f
    def mkw(mat, ks):
        def f():
            dma(k, vWD, [SWUK, SWUV][mat], 's%d' % [sB, sC][ks], sW1056, KV_W[b] + (mat * 2 + ks) * 8448)
        return f
    it += [mkc(0), mkw(0, 0), mkc(1), mkw(1, 0), mkc(2), mkw(0, 1), mkc(3), mkw(1, 1)]
    return it

def kv_read_items(k, t, tok):
    s, ks, rb = t >> 1, t & 1, t & 1
    lb = s & 1
    it = []
    for mat in range(2):
        for db in range(2):
            for hf in range(2):
                def f(mat=mat, db=db, hf=hf):
                    r = WF[rb] + (mat * 2 + db) * 4 + hf * 2
                    tok[('w', t, mat, db)] = k.ds('ds_read_b64_tr_b16 %s, v%d offset:%d' % (R(r, 2), vWR[lb], (mat * 2 + ks) * 8448 + hf * 256 + db * 32))
                it.append(f)
    for kb in range(8):
        def f(kb=kb):
            tok[('c', t, kb)] = k.ds('ds_read_b128 %s, v%d offset:%d' % (R(CF[rb] + kb * 4), vCR[lb][ks], kb * 2048))
        it.append(f)
    return it

def rowsum64(k, v, t):
    for r in (8, 4, 2, 1):
        k.e('s_nop 1')
        k.e('v_add_f32_dpp v%d, v%d, v%d row_ror:%d row_mask:0xf bank_mask:0xf' % (v, v, v, r))
    k.e('v_mov_b32 v%d, v%d' % (t, v)); k.e('s_nop 1')
    k.e('v_permlane16_swap_b32 v%d, v%d' % (v, t)); k.e('v_add_f32 v%d, v%d, v%d' % (v, v, t))
    k.e('v_mov_b32 v%d, v%d' % (t, v)); k.e('s_nop 1')
    k.e('v_permlane32_swap_b32 v%d, v%d' % (v, t)); k.e('v_add_f32 v%d, v%d, v%d' % (v, v, t))

def rbf(k, v):
    k.e('v_cvt_pk_bf16_f32 v%d, v%d, v%d' % (v, v, v)); k.e('v_lshlrev_b32 v%d, 16, v%d' % (v, v))

def phase_ln_kv(k, opt, rest_srds):
    import attn
    tok = {}
    if not opt.lnfirst:
        for f in kv_dma_items(k, 0): f()
        t_st0 = k.last_vm()
    X = XR_LN; F = 24
    k.e('s_lshl_b32 s%d, s2, 3' % sT); k.e('s_add_u32 s%d, s%d, s%d' % (sT, sT, sW)); k.e('s_mul_i32 s%d, s%d, 1280' % (sT, sT))
    k.e('v_lshlrev_b32 v%d, 2, v0' % vU)
    for j in range(5):
        k.vm('buffer_load_dword v%d, v%d, %s, s%d offen offset:%d' % (X[j], vU, S(SX), sT, j * 256))
    t_ln = k.last_vm()
    if opt.lnfirst:
        for f in kv_dma_items(k, 0): f()
        t_st0 = k.last_vm()
    for f in kv_dma_items(k, 1): f()
    t_st1 = k.last_vm()
    rest_srds()
    if opt.prio == 'all': setprio_young(k, 1)
    stamp(k, opt, 0)
    if opt.pfi:
        lab = k.newlab('pfi')
        k.e('s_cmp_lg_u32 s%d, 6' % sW); k.e('s_cbranch_scc1 %s' % lab)
        k.e('s_getpc_b64 s[98:99]')
        k.label('L_pc')
        k.e('s_lshr_b32 s%d, s2, 3' % sT); k.e('s_and_b32 s%d, s%d, 15' % (sT, sT)); k.e('s_mul_i32 s%d, s%d, %d' % (sT, sT, opt.pfi * 64))
        k.e('v_mul_u32_u24 v%d, %d, v0' % (vPfA, opt.pfi)); k.e('v_add_u32 v%d, s%d, v%d' % (vPfA, sT, vPfA)); k.e('v_and_b32 v%d, 0xfffffffc, v%d' % (vPfA, vPfA))
        k.e('v_min_u32 v%d, L_exit-L_pc, v%d' % (vPfA, vPfA))
        k.e('global_load_dword v%d, v%d, s[98:99]' % (vPf, vPfA))
        k.label(lab)
    lab = k.newlab('zf')
    k.e('s_cmp_lg_u32 s%d, 7' % sW); k.e('s_cbranch_scc1 %s' % lab)
    k.e('s_lshl_b32 s%d, s2, 9' % sT)
    k.e('buffer_store_dword v%d, v%d, %s, s%d offen sc1' % (vZ, vU, S(SWS), sT))
    k.e('buffer_store_dword v%d, v%d, %s, s%d offen offset:256 sc1' % (vZ, vU, S(SWS), sT))
    k.label(lab)
    k.e('v_lshrrev_b32 v%d, 1, v%d' % (vV, vI)); k.e('v_xor_b32 v%d, v%d, v%d' % (vV, vV, vG)); k.e('v_lshlrev_b32 v%d, 4, v%d' % (vV, vV))
    k.e('v_lshl_add_u32 v%d, v%d, 7, v%d' % (vV, vI, vV))
    k.e('s_lshr_b32 s%d, s%d, 2' % (sT, sW)); k.e('s_lshl_b32 s%d, s%d, 14' % (sT, sT))
    k.e('v_add_u32 v%d, s%d, v%d' % (vCR[0][0], sT, vV)); k.e('v_xor_b32 v%d, 64, v%d' % (vCR[0][1], vCR[0][0]))
    k.e('v_add_u32 v%d, %d, v%d' % (vCR[1][0], KV_C[1], vCR[0][0])); k.e('v_add_u32 v%d, %d, v%d' % (vCR[1][1], KV_C[1], vCR[0][1]))
    k.e('v_lshrrev_b32 v%d, 2, v%d' % (vV, vI)); k.e('v_and_b32 v22, 1, v%d' % vG); k.e('v_lshl_add_u32 v%d, v22, 2, v%d' % (vV, vV))
    k.e('v_lshrrev_b32 v22, 1, v%d' % vG); k.e('v_lshlrev_b32 v22, 9, v22')
    k.e('v_and_b32 v23, 3, v%d' % vI); k.e('v_lshl_add_u32 v22, v23, 3, v22')
    k.e('v_mul_u32_u24 v23, 1056, v%d' % vV); k.e('v_add_u32 v23, v23, v22')
    k.e('v_add_u32 v%d, %d, v23' % (vWQR[0], QC)); k.e('v_add_u32 v%d, %d, v23' % (vWQR[1], QA))
    k.e('s_and_b32 s%d, s%d, 3' % (sT, sW)); k.e('s_lshl_b32 s%d, s%d, 6' % (sT, sT))
    k.e('v_add_u32 v23, s%d, v23' % sT)
    k.e('v_add_u32 v%d, %d, v23' % (vWR[0], KV_W[0])); k.e('v_add_u32 v%d, %d, v23' % (vWR[1], KV_W[1]))
    k.e('v_lshrrev_b32 v23, 1, v%d' % vV); k.e('v_mul_u32_u24 v23, 1056, v23'); k.e('v_add_u32 v23, v23, v22')
    k.e('v_and_b32 v%d, 1, v%d' % (vV, vV)); k.e('v_lshl_add_u32 v23, v%d, 7, v23' % vV)
    k.e('v_add_u32 v%d, %d, v23' % (vW1R[0], QC + 16896)); k.e('v_add_u32 v%d, %d, v23' % (vW1R[1], QA + 16896))
    k.e('v_bfe_u32 v22, v0, 3, 1'); k.e('v_bfe_u32 v23, v0, 4, 1'); k.e('v_lshl_add_u32 v22, v23, 2, v22')
    k.e('v_lshrrev_b32 v23, 5, v0'); k.e('v_lshl_add_u32 v22, v23, 4, v22')
    k.e('s_and_b32 s%d, s%d, 1' % (sT, sW)); k.e('s_lshl_b32 s%d, s%d, 1' % (sT, sT))
    k.e('s_bfe_u32 s%d, s%d, 0x10001' % (sT2, sW)); k.e('s_lshl_b32 s%d, s%d, 3' % (sT2, sT2)); k.e('s_add_u32 s%d, s%d, s%d' % (sT, sT, sT2))
    k.e('s_lshr_b32 s%d, s%d, 2' % (sT2, sW)); k.e('s_lshl_b32 s%d, s%d, 5' % (sT2, sT2)); k.e('s_add_u32 s%d, s%d, s%d' % (sT, sT, sT2))
    k.e('v_add_u32 v22, s%d, v22' % sT); k.e('v_mul_u32_u24 v22, 3456, v22')
    k.e('v_and_b32 v23, 7, v0'); k.e('v_lshl_add_u32 v22, v23, 4, v22')
    k.e('s_lshl_b32 s%d, s%d, 7' % (sT, sF)); k.e('v_add_u32 v%d, s%d, v22' % (vW1D, sT))
    k.e('s_mul_i32 s%d, s%d, %d' % (sXN, sRB, XN_BS)); k.e('s_add_u32 s%d, s%d, 0x%x' % (sXN, sXN, WS_XN))
    k.e('s_mul_i32 s%d, s%d, 0x%x' % (sKst, sH, 2 * KVS)); k.e('s_add_u32 s%d, s%d, 0x%x' % (sKst, sKst, WS_KV))
    k.e('s_lshl_b32 s%d, s%d, 16' % (sT, sP)); k.e('s_add_u32 s%d, s%d, s%d' % (sKst, sKst, sT))
    k.e('s_lshr_b32 s%d, s%d, 2' % (sT, sW)); k.e('s_lshl_b32 s%d, s%d, 15' % (sT, sT)); k.e('s_add_u32 s%d, s%d, s%d' % (sKst, sKst, sT))
    k.e('s_and_b32 s%d, s%d, 3' % (sT, sW)); k.e('s_lshl_b32 s%d, s%d, 11' % (sT2, sT)); k.e('s_add_u32 s%d, s%d, s%d' % (sVst, sKst, sT2))
    k.e('s_add_u32 s%d, s%d, 0x%x' % (sVst, sVst, KVS))
    k.e('s_lshl_b32 s%d, s%d, 10' % (sT, sT)); k.e('s_add_u32 s%d, s%d, s%d' % (sKst, sKst, sT))
    k.e('s_mul_i32 s%d, s%d, 0x%x' % (sHst, sRB, H_BS)); k.e('s_lshl_b32 s%d, s%d, 12' % (sT, sF)); k.e('s_add_u32 s%d, s%d, s%d' % (sHst, sHst, sT))
    k.e('s_add_u32 s%d, s%d, 0x%x' % (sHst, sHst, WS_H))
    k.e('s_mov_b32 s%d, 0x3e0293ee' % sSc); k.e('s_mov_b32 s%d, 0x3e0293ee' % (sSc + 1))
    pf_paced_setup(k)
    pfq_setup(k, opt.pfqr)
    attn.early_setup(k)
    def layer_norm():
        k.wait(vm=t_ln)
        for j in range(5):
            k.e('v_lshlrev_b32 v%d, 16, v%d' % (F + 2 * j, X[j])); k.e('v_and_b32 v%d, 0xffff0000, v%d' % (F + 2 * j + 1, X[j]))
        k.e('v_add_f32 v34, v%d, v%d' % (F, F + 1))
        for j in range(2, 10): k.e('v_add_f32 v34, v34, v%d' % (F + j))
        rowsum64(k, 34, 35)
        k.e('v_mul_f32 v34, 0x3acccccd, v34')
        k.e('v_sub_f32 v36, v%d, v34' % F); k.e('v_mul_f32 v37, v36, v36')
        for j in range(1, 10):
            k.e('v_sub_f32 v36, v%d, v34' % (F + j)); k.e('v_fmac_f32 v37, v36, v36')
        rowsum64(k, 37, 35)
        k.e('v_mul_f32 v37, 0x3acccccd, v37')
        rbf(k, 34); rbf(k, 37)
        k.e('v_add_f32 v37, 0x3727c5ac, v37'); rbf(k, 37)
        k.e('v_sqrt_f32 v37, v37'); k.e('s_nop 0'); rbf(k, 37)
        k.e('v_rcp_f32 v37, v37')
        for j in range(10): k.e('v_sub_f32 v%d, v%d, v34' % (F + j, F + j))
        for j in range(5): k.e('v_cvt_pk_bf16_f32 v%d, v%d, v%d' % (X[j], F + 2 * j, F + 2 * j + 1))
        for j in range(5):
            k.e('v_lshlrev_b32 v%d, 16, v%d' % (F + 2 * j, X[j])); k.e('v_and_b32 v%d, 0xffff0000, v%d' % (F + 2 * j + 1, X[j]))
        for j in range(10): k.e('v_mul_f32 v%d, v%d, v37' % (F + j, F + j))
        for j in range(5): k.e('v_cvt_pk_bf16_f32 v%d, v%d, v%d' % (X[j], F + 2 * j, F + 2 * j + 1))
        k.e('s_mul_i32 s%d, s%d, %d' % (sT, sW, LN_STRIDE)); k.e('s_add_u32 s%d, s%d, %d' % (sT, sT, LN_BUF))
        k.e('v_lshl_add_u32 v38, v0, 2, s%d' % sT)
        for j in range(5): k.ds('ds_write_b32 v%d, v%d offset:%d' % (38, X[j], j * 256))
    def xn_store():
        lab = k.newlab('xs')
        k.e('s_cmp_ge_u32 s%d, 5' % sW); k.e('s_cbranch_scc1 %s' % lab)
        k.e('v_and_b32 v%d, 7, v0' % 32); k.e('v_lshrrev_b32 v%d, 3, v0' % 33)
        k.e('v_mul_u32_u24 v34, %d, v%d' % (LN_STRIDE, 32)); k.e('v_lshl_add_u32 v34, v%d, 4, v34' % 33)
        k.e('s_lshl_b32 s%d, s%d, 8' % (sT, sW)); k.e('s_add_u32 s%d, s%d, %d' % (sT, sT, LN_BUF)); k.e('v_add_u32 v34, s%d, v34' % sT)
        k.e('ds_read_b128 v[40:43], v34'); k.e('ds_read_b128 v[44:47], v34 offset:128')
        k.e('v_lshrrev_b32 v35, 2, v%d' % 33); k.e('v_lshlrev_b32 v35, 11, v35'); k.e('v_and_b32 v36, 3, v%d' % 33)
        k.e('v_lshl_add_u32 v35, v36, 8, v35'); k.e('v_lshl_add_u32 v35, v%d, 4, v35' % 32)
        k.e('s_lshr_b32 s%d, s2, 2' % sT); k.e('s_mul_i32 s%d, s%d, %d' % (sT, sT, XN_BS))
        k.e('s_bfe_u32 s%d, s2, 0x10001' % sT2); k.e('s_lshl_b32 s%d, s%d, 10' % (sT2, sT2)); k.e('s_add_u32 s%d, s%d, s%d' % (sT, sT, sT2))
        k.e('s_and_b32 s%d, s2, 1' % sT2); k.e('s_lshl_b32 s%d, s%d, 7' % (sT2, sT2)); k.e('s_add_u32 s%d, s%d, s%d' % (sT, sT, sT2))
        k.e('s_lshl_b32 s%d, s%d, 13' % (sT2, sW)); k.e('s_add_u32 s%d, s%d, s%d' % (sT, sT, sT2)); k.e('s_add_u32 s%d, s%d, 0x%x' % (sT, sT, WS_XN))
        k.e('s_add_u32 s%d, s%d, 4096' % (sT2, sT))
        k.e('s_waitcnt lgkmcnt(0)')
        k.e('buffer_store_dwordx4 v[40:43], v35, %s, s%d offen sc1' % (S(SWS), sT))
        k.e('buffer_store_dwordx4 v[44:47], v35, %s, s%d offen sc1' % (S(SWS), sT2))
        k.e('s_nop 0')
        k.label(lab)
    if opt.stouch: k.e('s_waitcnt lgkmcnt(0)')
    if opt.lnfirst == 2: layer_norm()
    k.wait(vm=t_st0)
    k.e('s_barrier')
    stamp(k, opt, 1)
    for f in kv_read_items(k, 0, tok): f()
    for st in range(opt.pf0, 2 + opt.pfd):
        for f in pf_paced(k, st): f()
    st_tok = {0: t_st0, 1: t_st1}
    def mf_step(t):
        b = t & 1; out = []
        for kb in range(8):
            for db in range(2):
                D = ACCK + (kb * 2 + db) * 4
                out.append((mfma(D, WF[b] + db * 4, CF[b] + kb * 4, '0' if t == 0 else D), [('w', t, 0, db), ('c', t, kb)]))
            for db in range(2):
                D = ACCV + (kb * 2 + db) * 4
                out.append((mfma(D, CF[b] + kb * 4, WF[b] + 8 + db * 4, '0' if t == 0 else D), [('w', t, 1, db), ('c', t, kb)]))
        return out
    qtok = {}
    late = {}
    for s in range(8):
        fill = {}
        spread(fill, kv_read_items(k, 2 * s + 1, tok), 0, 23)
        for sl, its in late.items(): fill.setdefault(sl, []).extend(its)
        late = {}
        emit_interleaved(k, mf_step(2 * s), fill, tok)
        if 1 <= s < 7 and opt.kvw >= 32: st_tok[s + 1] = k.last_vm()
        if s == 0 and opt.lnfirst != 2: layer_norm()
        if s == 6:
            lab = k.newlab('g1')
            k.e('s_cmp_ge_u32 s%d, 2' % sW); k.e('s_cbranch_scc1 %s' % lab)
            k.e('s_lshl_b32 s%d, s%d, 7' % (sT2, sW))
            poll(k, SDBG, 's%d' % sT2, '0x80', vT0)
            k.label(lab)
        if s < 7:
            k.wait(vm=st_tok[s + 1], ds=k.last_ds())
            if 'kvb' not in opt.abl or s in (1, 6): k.e('s_barrier')
            if opt.kvst: stamp(k, opt, 4 + s)
            if s == 0: xn_store()
        fill = {}
        if s < 7:
            spread(fill, kv_read_items(k, 2 * s + 2, tok), 0, 23)
        if s < 6 and 'kvd' not in opt.abl:
            both = {}
            spread(both, kv_dma_items(k, s + 2), 1, opt.kvw)
            for sl, its in both.items():
                if sl < 32: fill.setdefault(sl, []).extend(its)
                else: late[sl - 32] = its
            if opt.kvw < 32:
                fill.setdefault(opt.kvw, []).append(lambda s=s: st_tok.__setitem__(s + 2, k.last_vm()))
                if s + 2 + opt.pfd < 8:
                    its = pf_paced(k, s + 2 + opt.pfd)
                    fill.setdefault(29, []).append(its[0]); fill.setdefault(30, []).append(its[1])
                qs = [int(c) for c in str(opt.pfqs)]
                if s in qs:
                    its = pfq_paced(k, min(qs.index(s) * opt.pfqr, 10 - opt.pfqr))
                    fill.setdefault(30, []).append(its[0]); fill.setdefault(31, []).append(its[1])
        if s == 1:
            def g1sig():
                k.e('s_and_b32 s%d, s2, 1' % sT); k.e('s_lshl_b32 s%d, s%d, 7' % (sT, sT))
                signal_w0(k, SDBG, sT, vT0)
            fill.setdefault(31, []).append(g1sig)
        if s == 6:
            spread(fill, q_dma_items(k, 0, True, qtok), 1, 20)
        if s == 7:
            spread(fill, q_xn_items(k, 0, qtok) + q_xn_items(k, 1, qtok), 0, 20)
        emit_interleaved(k, mf_step(2 * s + 1), fill, tok)
    return qtok

XN = 16
QW = [112, 116, 120, 124, 96, 100, 104, 108]
KPK, VPK = 64, 128
ACCQ, ACCH = 160, 224
QF, HPK = 16, 48

def q_dma_items(k, s, ffn, tok):
    slot = QSLOT[s % 3]
    def f0():
        k.e('s_mov_b32 s%d, 0x%x' % (sB, s * 64 * 8192))
        dma(k, vWD, SWQ, 's%d' % sB, sW1056, slot)
    def f1():
        k.e('s_mov_b32 s%d, 0x%x' % (sC, (s * 64 + 32) * 8192))
        tok[('dq', s)] = dma(k, vWD, SWQ, 's%d' % sC, sW1056, slot + 8448)
    def f2():
        k.e('s_mov_b32 s%d, 0x%x' % (sA, s * 64 * 3456))
        tok[('dq', s)] = dma(k, vW1D, SW1, 's%d' % sA, sW1056, slot + 16896)
    return [f0, f1, f2] if ffn else [f0, f1]

def q_xn_items(k, s, tok):
    it = []
    for j in range(4):
        def f(j=j):
            if j == 0: k.e('s_add_u32 s%d, s%d, %d' % (sT2, sXN, s * 4096))
            tok[('x', 2 * s + (j >> 1), j & 1)] = k.vm('buffer_load_dwordx4 %s, v%d, %s, s%d offen offset:%d sc1' % (R(XN + (s % 3) * 16 + j * 4), vL16, S(SWS), sT2, j * 1024))
        it.append(f)
    return it

def kv_pack_items(k):
    it = {}
    def mk(d, a_): return lambda: k.e('v_cvt_pk_bf16_f32 v%d, v%d, v%d' % (d, a_, a_ + 1))
    for kb in range(8):
        for db in range(2):
            a = ACCK + (kb * 2 + db) * 4
            for e in range(2): it[a + 2 * e] = mk(KPK + kb * 4 + db * 2 + e, a + 2 * e)
    for j in range(4):
        for db in range(2):
            for hh in range(2):
                a = ACCV + ((2 * j + hh) * 2 + db) * 4
                for e in range(2): it[a + 2 * e] = mk(VPK + (j * 2 + db) * 4 + hh * 2 + e, a + 2 * e)
    return it

def kv_store_items(k, tok):
    it = []
    for i in range(8):
        def fk(i=i):
            k.e('s_add_u32 s%d, s%d, %d' % (sT, sKst, i * 4096))
            tok['kvst'] = k.vm('buffer_store_dwordx4 %s, v%d, %s, s%d offen sc1' % (R(KPK + i * 4), vL16, S(SWS), sT))
        def fv(i=i):
            k.e('s_add_u32 s%d, s%d, %d' % (sT, sVst, (i >> 1) * 8192))
            tok['kvst'] = k.vm('buffer_store_dwordx4 %s, v%d, %s, s%d offen offset:%d sc1' % (R(VPK + i * 4), vL16, S(SWS), sT, (i & 1) * 1024))
        it += [fk, fv]
    return it

def phase_q(k, opt, tok, ffn, hooks):
    nf = 12 if ffn else 8
    AH = opt.qah
    frags = [(t, c) for t in range(20) for c in range(nf)]
    def read(n, half=None):
        t, c = frags[n]; s, ks = t >> 1, t & 1
        slot = QSLOT[s % 3]; bi = 1 if slot == QA else 0; rel = 0 if slot != QB else QB - QC
        r = QW[n % 8]
        if c < 8: a, off = vWQR[bi], rel + ks * 8448 + c * 32
        else: a, off = vW1R[bi], rel + ks * 4224 + (c - 8) * 32
        if half != 1: k.ds('ds_read_b64_tr_b16 %s, v%d offset:%d' % (R(r, 2), a, off))
        if half != 0: tok[('f', n)] = k.ds('ds_read_b64_tr_b16 %s, v%d offset:%d' % (R(r + 2, 2), a, off + 256))
    k.wait(vm=tok[('dq', 0)])
    k.e('s_barrier')
    if opt.qst: stamp(k, opt, 14)
    for f in q_dma_items(k, 1, ffn, tok): f()
    for n in range(4): read(n)
    pk = kv_pack_items(k)
    for r_ in range(ACCK, ACCQ + 8, 2): pk.pop(r_)()
    for n in range(4, AH): read(n)
    stores = kv_store_items(k, tok)
    per = 2 * nf
    for s in range(10):
        extra = {}
        ex = []
        if s + 2 < 10:
            if 'qx' in opt.abl:
                for t_ in (2 * s + 4, 2 * s + 5): tok[('x', t_, 1)] = tok[('x', 0, 1)]
            else: ex += q_xn_items(k, s + 2, tok)
        sched = [int(c) for c in str(opt.stsched)] + [0] * 10
        assert sum(sched) in (0, 16) and all(x == 0 for x in sched[opt.h2sig:])
        ex += stores[sum(sched[:s]): sum(sched[:s + 1])]
        spread(extra, ex, 1 if s else 4, per - AH - 3)
        if s == 9: spread(extra, hooks('fill9', s), 0, per - 2)
        for i in range(per):
            n = s * per + i
            t, c = frags[n]
            k.wait(ds=tok[('f', n)])
            if c == 0: k.wait(vm=tok[('x', t, 1)])
            for qb in range(2):
                D = (ACCQ + (c * 2 + qb) * 4) if c < 8 else (ACCH + ((c - 8) * 2 + qb) * 4)
                k.e(mfma(D, QW[n % 8], XN + (s % 3) * 16 + (t & 1) * 8 + qb * 4, '0' if t == 0 else D))
                if qb == 0:
                    if i == per - AH and s < 9:
                        hooks('preB', s)
                        k.wait(vm=tok[('dq', s + 1)])
                        if 'qb' not in opt.abl or s == 8: k.e('s_barrier')
                        hooks('postB', s)
                        if opt.qst: stamp(k, opt, 4 + s if s < 8 else 13)
                    if n + AH < len(frags): read(n + AH, 0 if opt.split else None)
                elif opt.split and n + AH < len(frags): read(n + AH, 1)
            if s == 0:
                for r_ in sorted(pk)[:4]: pk.pop(r_)()
            for f in extra.get(i, []): f()
            if s + 2 < 10 and i >= per - AH:
                items = q_dma_items(k, s + 2, ffn, tok)
                j = i - (per - AH)
                if 'qd' in opt.abl: tok[('dq', s + 2)] = tok[('dq', 1)]
                elif j < len(items): items[j]()
            hooks('slot', s, i)
    if opt.qst: stamp(k, opt, 15)
    hooks('end', 9)
    k.e('s_nop 7')
    if ffn:
        for qb in range(2):
            for b in range(2):
                for hh in range(2):
                    a = ACCH + ((2 * b + hh) * 2 + qb) * 4; d = HPK + (b * 2 + qb) * 4 + hh * 2
                    k.e('v_cvt_pk_bf16_f32 v%d, v%d, v%d' % (d, a, a + 1)); k.e('v_cvt_pk_bf16_f32 v%d, v%d, v%d' % (d + 1, a + 2, a + 3))
        for i in range(16): k.e('v_pk_max_i16 v%d, v%d, 0' % (HPK + i, HPK + i))
        for i in range(4):
            tok['hst'] = k.vm('buffer_store_dwordx4 %s, v%d, %s, s%d offen offset:%d sc1' % (R(HPK + i * 4), vL16, S(SWS), sHst, i * 1024))
    for i in range(32): k.e('v_pk_mul_f32 %s, %s, s[%d:%d]' % (R(ACCQ + 2 * i, 2), R(ACCQ + 2 * i, 2), sSc, sSc + 1))
    for qb in range(2):
        for b in range(4):
            for hh in range(2):
                a = ACCQ + ((2 * b + hh) * 2 + qb) * 4; d = QF + (qb * 4 + b) * 4 + hh * 2
                k.e('v_cvt_pk_bf16_f32 v%d, v%d, v%d' % (d, a, a + 1)); k.e('v_cvt_pk_bf16_f32 v%d, v%d, v%d' % (d + 1, a + 2, a + 3))

def build(opt):
    k = KB()
    rest = prologue(k, opt)
    import attn
    attn.OPT[0] = opt
    CTOUCH[0] = (opt.rot == 0)
    WPOL[0] = opt.wpol.replace('+', ' ')
    opt.kvpol = opt.kvpol.replace('+', ' ')
    if opt.only == 'p3':
        rest(); stamp(k, opt, 0)
        attn.phase_attn_p3(k, opt)
        return finish(k, opt)
    qtok = phase_ln_kv(k, opt, rest)
    stamp(k, opt, 2)
    if opt.diagsleep1: k.e('s_sleep %d' % opt.diagsleep1)
    import attn
    hk = {}
    def hooks(kind, s, i=None):
        if kind == 'fill9': return attn.att_init_items(k)
        if kind == 'postB' and opt.prio == 'q%d' % s: setprio_young(k, 1)
        if kind == 'slot' and s == opt.h2sig + 1 and i == 0:
            k.e('s_lshl_b32 s%d, s%d, 7' % (sT, sH))
            signal_w0(k, SWS, sT, vT0)
        if opt.early:
            if kind == 'preB' and s == 8:
                lab = k.newlab('h2')
                k.e('s_cmp_lg_u32 s%d, 4' % sW); k.e('s_cbranch_scc1 %s' % lab)
                k.e('s_lshl_b32 s%d, s%d, 7' % (sT2, sH))
                poll(k, SWS, 's%d' % sT2, '8', vT0)
                k.label(lab)
            if kind == 'postB' and s == 8:
                attn.ld_setup(k)
            if kind == 'slot' and s == 9 and i in (0, 2, 4, 6, 8, 10):
                lab = k.newlab('kvp')
                k.e('s_cmp_lt_u32 s%d, 4' % sW); k.e('s_cbranch_scc1 %s' % lab)
                for f in attn.ld_group(k, (i >> 1) & 1, i == 2): f()
                k.label(lab)
        elif kind == 'slot' and s == 9 and i == opt.h2poll:
            k.e('s_lshl_b32 s%d, s%d, 7' % (sT2, sH))
            hk['h2'] = k.vm('buffer_load_dword v%d, v%d, %s, s%d offen sc1' % (vT3, vZ, S(SWS), sT2))
        elif kind == 'end':
            lab = k.newlab('h2'); lab2 = k.newlab('h2ok')
            k.e('s_cmp_lt_u32 s%d, 4' % sW); k.e('s_cbranch_scc1 %s' % lab)
            k.e('s_waitcnt vmcnt(0)')
            k.e('v_readfirstlane_b32 s%d, v%d' % (sT, vT3))
            k.e('s_cmp_ge_u32 s%d, 8' % sT); k.e('s_cbranch_scc1 %s' % lab2)
            poll(k, SWS, 's%d' % sT2, '8', vT0)
            k.label(lab2)
            attn.ld_stage(k, True); attn.ld_stage(k)
            k.label(lab)
        elif kind == 'end2':
            lab = k.newlab('h2')
            k.e('s_cmp_lt_u32 s%d, 4' % sW); k.e('s_cbranch_scc1 %s' % lab)
            attn.ld_stage(k)
            k.label(lab)
    st = (k.vm_issued, k.vm_done, k.ds_issued, k.ds_done)
    k.e('s_cmp_lg_u32 s%d, 0' % sNoF); k.e('s_cbranch_scc1 L_q_noffn')
    phase_q(k, opt, dict(qtok), True, hooks)
    k.e('s_branch L_q_done')
    k.label('L_q_noffn')
    k.vm_issued, k.vm_done, k.ds_issued, k.ds_done = st
    phase_q(k, opt, dict(qtok), False, hooks)
    k.label('L_q_done')
    hooks('end2', 9)
    if opt.diagsleep: k.e('s_sleep %d' % opt.diagsleep)
    if opt.prio2 is not None: k.e('s_setprio %d' % opt.prio2)
    stamp(k, opt, 3)
    if opt.dumpq:
        k.e('s_lshl_b32 s%d, s2, 3' % sT); k.e('s_add_u32 s%d, s%d, s%d' % (sT, sT, sW)); k.e('s_lshl_b32 s%d, s%d, 13' % (sT, sT))
        k.e('s_add_u32 s%d, s%d, 0x%x' % (sT, sT, WS_DBGQ)); k.e('s_add_u32 s%d, s%d, 4096' % (sT2, sT))
        for i in range(8):
            k.e('buffer_store_dwordx4 %s, v%d, %s, s%d offen offset:%d' % (R(QF + i * 4), vL16, S(SWS), sT if i < 4 else sT2, (i & 3) * 1024))
    if opt.stop != 'q':
        attn.phase_attn_p3(k, opt)
    return finish(k, opt)

def finish(k, opt):
    k.e('s_waitcnt vmcnt(0)')
    k.label('L_exit')
    k.e('s_endpgm')
    errs = check_hazards(k.lines)
    for e in errs: print('HAZARD', e, file=sys.stderr)
    hdr = open(os.path.join(os.path.dirname(os.path.abspath(__file__)), 'header.txt')).read()
    t = hdr + '; @launch grid=(256,1,1) block=(512,1,1) lds=%d\n' % LDS_BYTES
    t += '.amdgcn_target "amdgcn-amd-amdhsa--gfx950"\n.text\n.globl %s_kernel\n.p2align 8\n.type %s_kernel,@function\n%s_kernel:\n' % (NAME, NAME, NAME)
    t += k.text()
    t += '''.section .rodata,"a"
.p2align 6
.amdhsa_kernel %s_kernel
  .amdhsa_next_free_vgpr 256
  .amdhsa_next_free_sgpr 102
  .amdhsa_accum_offset 256
  .amdhsa_group_segment_fixed_size 0
  .amdhsa_kernarg_size 96
  .amdhsa_user_sgpr_count 2
  .amdhsa_user_sgpr_kernarg_segment_ptr 1
  .amdhsa_system_sgpr_workgroup_id_x 1
.end_amdhsa_kernel
''' % NAME
    return t, len(errs)

if __name__ == '__main__':
    opt = Opt()
    out = sys.argv[1]
    for a in sys.argv[2:]:
        kk, _, v = a.partition('=')
        setattr(opt, kk, (int(v) if v.lstrip('-').isdigit() else (int(v, 16) if v.startswith('0x') else v)) if v else True)
    t, ne = build(opt)
    open(out, 'w').write(t)
    print('wrote', out, len(t.splitlines()), 'lines', ne, 'hazards')
```

```python
from kb import *
import build as B
from build import *

sM, sRem, sLast, sKp, sVp, sLd, sSafe, sDr, sCtx, sFl = 67, 68, 69, 70, 71, 72, 73, 74, 75, 76
sK0, sV0 = 77, 78
sNF = 63
sCx2 = 62
sN4 = 61
sKe, sVe, sLo = 94, 95, 96
sHp, sHe = 60, 59
vHp = 14
PF = [48, 56]; RING = 64; SB = [96, 112]; CB = 128; LACC = 144; ONES = 152; TE = 156; OA = 160
vRd, vD, vNinf = 13, 11, 9
OPK = 224
VOTE = 132128
AH = 6

INLOOP = [False]; OPT = [None]
def ld_setup(k):
    k.e('s_mul_i32 s%d, s%d, 0x%x' % (sK0, sH, 2 * KVS)); k.e('s_add_u32 s%d, s%d, 0x%x' % (sK0, sK0, WS_KV))
    k.e('s_and_b32 s%d, s%d, 3' % (sT, sW)); k.e('s_lshl_b32 s%d, s%d, 12' % (sT, sT))
    k.e('s_add_u32 s%d, s%d, s%d' % (sK0, sK0, sT))
    k.e('s_add_u32 s%d, s%d, 0x%x' % (sVp, sK0, KVS - 8192))
    k.e('s_add_u32 s%d, s%d, 8192' % (sKp, sK0))
    k.e('s_mov_b32 s%d, s%d' % (sLd, sT))
    k.e('s_cmp_lt_u32 s%d, 8192' % sT); k.e('s_cselect_b32 s%d, s%d, s%d' % (sV0, sK0, sVp))
    k.e('s_sub_u32 s%d, s%d, s%d' % (sKe, sK0, sT)); k.e('s_lshl_b32 s%d, s%d, 15' % (sT, sP)); k.e('s_sub_u32 s%d, s%d, s%d' % (sKe, sKe, sT))
    k.e('s_add_u32 s%d, s%d, 0x80000' % (sKe, sKe)); k.e('s_add_u32 s%d, s%d, 0x%x' % (sVe, sKe, KVS))

def help_setup(k):
    k.e('s_mul_i32 s%d, s%d, 0x%x' % (sHe, sH, 2 * KVS)); k.e('s_add_u32 s%d, s%d, 0x%x' % (sHe, sHe, WS_KV))
    k.e('s_and_b32 s%d, s%d, 1' % (sT, sW)); k.e('s_lshl_b32 s%d, s%d, 13' % (sT, sT)); k.e('s_add_u32 s%d, s%d, s%d' % (sHe, sHe, sT))
    k.e('s_bitcmp1_b32 s%d, 1' % sW); k.e('s_cselect_b32 s%d, 0x%x, 0' % (sT, KVS - 16384)); k.e('s_add_u32 s%d, s%d, s%d' % (sHe, sHe, sT)); k.e('s_add_u32 s%d, s%d, 8192' % (sHe, sHe))
    k.e('s_sub_u32 s%d, %d, s%d' % (sT, 7 + OPT[0].hlead, sP)); k.e('s_lshl_b32 s%d, s%d, 14' % (sT, sT)); k.e('s_add_u32 s%d, s%d, s%d' % (sHp, sHe, sT))
    k.e('s_add_u32 s%d, s%d, 0x%x' % (sHe, sHe, 32 * 16384))
    k.e('s_cmp_ge_u32 s%d, 6' % sP); k.e('s_cselect_b32 s%d, s%d, 0' % (sHe, sHe))
    k.e('v_lshlrev_b32 v%d, 7, v0' % vHp)
def help_touch(k):
    k.e('s_cmp_lt_u32 s%d, s%d' % (sHp, sHe)); k.e('s_cselect_b32 s%d, s%d, 0x10000000' % (sT, sHp))
    k.e('buffer_load_dword v8, v%d, %s, s%d offen sc1' % (vHp, S(SWS), sT))
    k.e('s_add_u32 s%d, s%d, 32768' % (sHp, sHp))
def help_dummy(k):
    k.e('s_mov_b32 s%d, 0x10000000' % sT)
    k.e('buffer_load_dword v8, v%d, %s, s%d offen' % (vZ, S(SWS), sT))

def ld_group(k, which, first=False):
    it = []
    for j in range(4):
        def f(j=j):
            so = sKp if which == 0 else (sV0 if first else sVp)
            if j == 0:
                k.e('s_add_u32 m0, s%d, %d' % (sLd, which * 16384))
                k.e('s_cmp_lt_u32 s%d, s%d' % (so, sVe if which else sKe)); k.e('s_cselect_b32 s%d, s%d, 0x10000000' % (sLo, so))
            so = sLo
            if not (INLOOP[0] and 'atd' in OPT[0].abl):
                k.e('buffer_load_dwordx4 v%d, %s, s%d offen offset:%d %s lds' % (vL16, S(SWS), so, j * 1024, OPT[0].kvpol))
            if which == 1 and j == 3:
                k.e('s_add_u32 s%d, s%d, 16384' % (sKp, sKp)); k.e('s_add_u32 s%d, s%d, 16384' % (sVp, sVp))
                k.e('s_add_u32 s%d, s%d, 32768' % (sLd, sLd)); k.e('s_and_b32 s%d, s%d, 0x1ffff' % (sLd, sLd))
        it.append(f)
    return it

def ld_stage(k, first=False):
    for f in ld_group(k, 0) + ld_group(k, 1, first): f()

def xmax(k, v, t):
    k.e('v_mov_b32 v%d, v%d' % (t, v)); k.e('s_nop 1')
    k.e('v_permlane16_swap_b32 v%d, v%d' % (v, t)); k.e('v_max_f32 v%d, v%d, v%d' % (v, v, t))
    k.e('v_mov_b32 v%d, v%d' % (t, v)); k.e('s_nop 1')
    k.e('v_permlane32_swap_b32 v%d, v%d' % (v, t)); k.e('v_max_f32 v%d, v%d, v%d' % (v, v, t))

def rowmax(k, Sb, qb, d, t):
    r = [Sb + 8 * kb + 4 * qb + i for kb in range(2) for i in range(4)]
    k.e('v_max3_f32 v%d, v%d, v%d, v%d' % (d, r[0], r[1], r[2]))
    k.e('v_max3_f32 v%d, v%d, v%d, v%d' % (d, d, r[3], r[4]))
    k.e('v_max3_f32 v%d, v%d, v%d, v%d' % (d, d, r[5], r[6]))
    k.e('v_max_f32 v%d, v%d, v%d' % (d, d, r[7]))
    xmax(k, d, t)

def build_mask(k):
    for r in range(4):
        k.e('v_cmp_le_i32 vcc, %d, v%d' % (r, vD)); k.e('v_mov_b32 v%d, v%d' % (CB + 8 + r, vNinf)); k.e('s_nop 0')
        k.e('v_cndmask_b32 v%d, v%d, v%d, vcc' % (CB + r, vNinf, CB + r))
        k.e('v_cndmask_b32 v%d, v%d, v%d, vcc' % (CB + 12 + r, vNinf, CB + 12 + r))
    k.e('s_nop 1')

def safe_update(k, par):
    Sn = SB[par ^ 1]; P = PF[par]
    k.e('s_nop 7')
    for qb in range(2):
        d, t, f = TE, TE + 1, TE + 2
        rowmax(k, Sn, qb, d, t)
        k.e('v_max_f32 v%d, 0, v%d' % (d, d))
        k.e('v_exp_f32 v%d, -v%d' % (f, d))
        for kb in range(2):
            for i in range(4):
                k.e('v_sub_f32 v%d, v%d, v%d' % (Sn + 8 * kb + 4 * qb + i, Sn + 8 * kb + 4 * qb + i, d))
                k.e('v_sub_f32 v%d, v%d, v%d' % (CB + 8 * kb + 4 * qb + i, CB + 8 * kb + 4 * qb + i, d))
        for db in range(8):
            for i in range(4): k.e('v_mul_f32 v%d, v%d, v%d' % (OA + db * 8 + qb * 4 + i, OA + db * 8 + qb * 4 + i, f))
        for i in range(4):
            k.e('v_mul_f32 v%d, v%d, v%d' % (LACC + qb * 4 + i, LACC + qb * 4 + i, f))
            p = P + qb * 4 + i
            k.e('v_lshlrev_b32 v%d, 16, v%d' % (d + 3, p)); k.e('v_and_b32 v%d, 0xffff0000, v%d' % (t, p))
            k.e('v_mul_f32 v%d, v%d, v%d' % (d + 3, d + 3, f)); k.e('v_mul_f32 v%d, v%d, v%d' % (t, t, f))
            k.e('v_cvt_pk_bf16_f32 v%d, v%d, v%d' % (p, d + 3, t))
    k.e('s_nop 1')

BODY_OFF = [0 + 1024 * i for i in range(8)] + [16384 + 1024 * i for i in range(8)] + [8192 + 1024 * i for i in range(8)] + [24576 + 1024 * i for i in range(8)]
def rd(k, n, off):
    k.e('ds_read_b128 %s, v%d offset:%d' % (R(RING + 4 * (n % 8)), vRd, off))
def next_stage_addr(k):
    k.e('v_add_u32 v%d, 0x8000, v%d' % (vRd, vRd)); k.e('v_and_b32 v%d, 0x1ffff, v%d' % (vRd, vRd))
def sm_order(Sc):
    return [Sc + 8 * kb + 4 * qb + r for qb in range(2) for kb in range(2) for r in range(4)]
def lm(P, qb):
    return mfma(LACC + 4 * qb, ONES, P + 4 * qb, LACC + 4 * qb)

def bar(k, loader, inloop=False):
    if loader: k.e('s_waitcnt vmcnt(%d)' % (10 if inloop and OPT[0].hlead else 8))
    k.e('s_barrier')

def step(k, par, loader, fast=None):
    Sc, Sn, Pc, Pp = SB[par], SB[par ^ 1], PF[par], PF[par ^ 1]
    order = sm_order(Sc)
    dm = ld_group(k, 0) + ld_group(k, 1)
    dslot = [{10: dm[0:1], 11: dm[1:3], 12: dm[3:4], 13: dm[4:6], 14: dm[6:7], 15: dm[7:8]}, {10: dm[0:4], 11: dm[4:8]}, {11: dm[0:2], 12: dm[2:4], 13: dm[4:6], 14: dm[6:8]}][OPT[0].dsl]
    for g in range(16):
        n = 16 * par + g; fr = RING + 4 * (n % 8)
        if g % 2 == 0: k.e('s_waitcnt lgkmcnt(%d)' % (AH - 2))
        ms = []
        for qb in range(2):
            if g < 8:
                kb, ks = g // 4, g % 4; D = Sn + 8 * kb + 4 * qb
                ms.append(mfma(D, fr, QF + (qb * 4 + ks) * 4, (CB + 8 * kb + 4 * qb) if ks == 0 else D))
            else:
                D = OA + (g - 8) * 8 + 4 * qb
                ms.append(mfma(D, fr, Pp + 4 * qb, D))
        k.e(ms[0])
        k.e('v_exp_f32 v%d, v%d' % (TE + g % 4, order[g]))
        k.e(ms[1])
        if par == 1 and g == 16 - AH:
            if fast is None: next_stage_addr(k)
            bar(k, loader, True)
        so = 0 if fast is None else (32768 * fast if n + AH < 32 else 32768 * (fast ^ 1))
        if not ('atr' in OPT[0].abl and fast is not None and (n & 8)): rd(k, n + AH, BODY_OFF[(n + AH) % 32] + so)
        if fast == 1 and n + AH == 31: k.e('v_xor_b32 v%d, 0x10000, v%d' % (vRd, vRd))
        if g % 2 == 0 and g >= 2:
            k.e('v_cvt_pk_bf16_f32 v%d, v%d, v%d' % (Pc + (g - 2) // 2, TE + (g - 2) % 4, TE + (g - 1) % 4))
        if g == 15: k.e('v_cvt_pk_bf16_f32 v%d, v%d, v%d' % (Pc + 7, TE + 2, TE + 3))
        if g == 11: k.e(lm(Pp, 0))
        if g == 15: k.e(lm(Pp, 1))
        if loader and par == 1:
            for f in dslot.get(g, []): f()
            if g == 15 and OPT[0].hlead: help_touch(k)

def tail(k, par, loader):
    Sc, Pc, Pp = SB[par], PF[par], PF[par ^ 1]
    order = sm_order(Sc)
    k.e('s_waitcnt lgkmcnt(0)')
    o1 = 16384 if par == 0 else 24576
    for i in range(8): rd(k, i, o1 + 1024 * i)
    for g in range(16):
        k.e('v_exp_f32 v%d, v%d' % (TE + g % 4, order[g]))
        if g % 2 == 0 and g >= 2:
            k.e('v_cvt_pk_bf16_f32 v%d, v%d, v%d' % (Pc + (g - 2) // 2, TE + (g - 2) % 4, TE + (g - 1) % 4))
    k.e(lm(Pp, 0))
    k.e('v_cvt_pk_bf16_f32 v%d, v%d, v%d' % (Pc + 7, TE + 2, TE + 3))
    k.e(lm(Pp, 1))
    if par == 1:
        k.e('s_waitcnt lgkmcnt(0)')
        next_stage_addr(k)
        bar(k, loader)
    o2 = 24576 if par == 0 else 16384
    dm = ld_group(k, 0) + ld_group(k, 1)
    for i in range(8):
        if par == 0: k.e('s_waitcnt lgkmcnt(7)')
        for qb in range(2):
            D = OA + i * 8 + 4 * qb; k.e(mfma(D, RING + 4 * i, Pp + 4 * qb, D))
        rd(k, i, o2 + 1024 * i)
        if loader and par == 1: dm[i]()
    k.e(lm(Pc, 0)); k.e(lm(Pc, 1))
    for i in range(8):
        k.e('s_waitcnt lgkmcnt(%d)' % (7 - i))
        for qb in range(2):
            D = OA + i * 8 + 4 * qb; k.e(mfma(D, RING + 4 * i, Pc + 4 * qb, D))

def vote(k):
    lab = k.newlab('vote')
    k.e('s_nop 7')
    k.e('v_add_f32 v%d, v%d, v%d' % (TE, LACC, LACC + 4))
    k.e('v_cmp_nge_f32 vcc, 0x4e800000, v%d' % TE)
    k.e('s_nop 4')
    k.e('s_cbranch_vccz %s' % lab)
    k.e('v_mov_b32 v%d, %d' % (TE, VOTE)); k.e('v_mov_b32 v%d, 1' % (TE + 1))
    k.e('ds_write_b32 v%d, v%d' % (TE, TE + 1)); k.e('s_waitcnt lgkmcnt(0)')
    k.label(lab)

def ctx_epilogue(k, defer=False):
    k.e('v_rcp_f32 v%d, v%d' % (TE, LACC)); k.e('v_rcp_f32 v%d, v%d' % (TE + 2, LACC + 4))
    k.e('s_add_u32 s%d, s%d, 4096' % (sCx2, sCtx))
    out = []
    for b in range(4):
        for qb in range(2):
            for hh in range(2):
                a = OA + (2 * b + hh) * 8 + 4 * qb
                for e in range(2):
                    k.e('v_pk_mul_f32 %s, %s, %s op_sel_hi:[1,0]' % (R(a + 2 * e, 2), R(a + 2 * e, 2), R(TE + 2 * qb, 2)))
            for hh in range(2):
                a = OA + (2 * b + hh) * 8 + 4 * qb; d = OPK + (b * 2 + qb) * 4 + 2 * hh
                k.e('v_cvt_pk_bf16_f32 v%d, v%d, v%d' % (d, a, a + 1)); k.e('v_cvt_pk_bf16_f32 v%d, v%d, v%d' % (d + 1, a + 2, a + 3))
            i = b * 2 + qb
            t = 'buffer_store_dwordx4 %s, v%d, %s, s%d offen offset:%d sc1' % (R(OPK + i * 4), vL16, S(SWS), sCtx if i < 4 else sCx2, (i & 3) * 1024)
            if defer: out.append(lambda t=t: k.vm(t))
            else: k.e(t)
    return out

SRP = 88
RU = 4; NRPK = -(-1456 // RU)
def set_ru(n):
    global RU, NRPK
    RU = n; NRPK = -(-1456 // RU)
def repack(k, it):
    RB = 48; RO = 128
    sU = 93
    k.e('s_sub_u32 s%d, s2, %d' % (sU, 32 * OPT[0].rp0))
    k.e('s_min_u32 s%d, s%d, 0x1000' % (sU, sU))
    k.e('s_lshl_b32 s%d, s%d, 2' % (sU, sU)); k.e('s_and_b32 s%d, s%d, 3' % (sT, sW)); k.e('s_add_u32 s%d, s%d, s%d' % (sU, sU, sT))
    k.e('s_cmp_ge_u32 s%d, %d' % (sU, NRPK)); k.e('s_cbranch_scc1 L_norepack')
    k.e('s_cmp_lg_u32 s%d, 0' % sSafe); k.e('s_cbranch_scc1 L_norepack')
    k.e('s_mul_i32 s%d, s%d, %d' % (sU, sU, RU))
    for j in range(5):
        k.e('v_add_u32 v%d, %d, v0' % (TE, 64 * j))
        k.e('v_mul_u32_u24 v%d, 6554, v%d' % (TE + 1, TE)); k.e('v_lshrrev_b32 v%d, 16, v%d' % (TE + 1, TE + 1))
        k.e('v_mul_u32_u24 v%d, 1120, v%d' % (TE + 1, TE + 1)); k.e('v_lshl_add_u32 v%d, v%d, 4, v%d' % (RO + j, TE, TE + 1))
    st = dict(n=24, d=[7, 15], done=0)
    def itx():
        t = st['d'].pop(0)
        it(st['n'] - 1 - t); st['done'] = t + 1
        st['n'] += 8; st['d'].append(st['n'] - 1)
    k.e('s_mov_b32 s%d, 0x20000' % (SRP + 3))
    ldtok = []
    for e in range(RU):
        if e % OPT[0].rpl == 0: itx()
        k.e('s_add_u32 s%d, s%d, %d' % (sT, sU, e)); k.e('s_and_b32 s%d, s%d, 7' % (sT2, sT)); k.e('s_lshr_b32 s%d, s%d, 3' % (sT, sT))
        k.e('s_mul_i32 s%d, s%d, 160' % (sT2, sT2))
        k.e('s_cmp_lt_u32 s%d, 54' % sT)
        for i in range(3): k.e('s_cselect_b32 s%d, s%d, s%d' % (SRP + i, SW2 + i, SWO + i))
        k.e('s_cselect_b32 s%d, 0, 54' % sA); k.e('s_sub_u32 s%d, s%d, s%d' % (sT, sT, sA))
        k.e('s_mul_i32 s%d, s%d, %d' % (sT, sT, 32 * 1280)); k.e('s_add_u32 s%d, s%d, s%d' % (sT, sT, sT2))
        for j in range(5):
            k.e('buffer_load_dwordx4 %s, v%d, %s, s%d offen' % (R(RB + (e * 5 + j) * 4), RO + j, S(SRP), sT))
            ldtok.append(st['n']); st['n'] += 1
    c = 0
    for e in range(RU):
        for j in range(5):
            while ldtok[e * 5 + j] >= st['done'] or c >= OPT[0].rps:
                itx(); c = 0
            if j == 0:
                k.e('s_add_u32 s%d, s%d, %d' % (sB, sU, e)); k.e('s_and_b32 s%d, s%d, 7' % (sC, sB)); k.e('s_lshr_b32 s%d, s%d, 3' % (sB, sB))
                k.e('s_mul_i32 s%d, s%d, 0x%x' % (sC, sC, WP_CS)); k.e('s_mul_i32 s%d, s%d, 5120' % (sB, sB)); k.e('s_add_u32 s%d, s%d, s%d' % (sB, sB, sC))
                k.e('s_add_u32 s%d, s%d, 0x%x' % (sB, sB, WS_WP)); k.e('s_add_u32 s%d, s%d, 4096' % (sC, sB))
            k.e('buffer_store_dwordx4 %s, v%d, %s, s%d offen offset:%d sc1' % (R(RB + (e * 5 + j) * 4), vL16, S(SWS), sB if j < 4 else sC, (j & 3) * 1024))
            last = st['n']; st['n'] += 1; c += 1
    while last >= st['done']: itx()
    nit = (st['n'] - 24 - 10 * RU) // 8
    pmax = OPT[0].rp0 + (NRPK - 1) // 128
    assert 30 - 4 * pmax - 1 - nit >= 2, (nit, pmax)
    k.e('s_mov_b32 s%d, %d' % (sT, WS_FLAGS + F_H5 * 128))
    signal(k, SWS, 's%d' % sT, vT0)
    k.e('s_branch L_S_drain')
    k.label('L_norepack')

def early_setup(k):
    k.e('s_mov_b32 s%d, 0' % sSafe)
    k.e('s_mov_b32 s%d, s%d' % (sLast, sRB))
    k.e('s_mul_i32 s%d, s%d, 0x%x' % (sCtx, sRB, CTX_BS)); k.e('s_lshl_b32 s%d, s%d, 13' % (sT, sH)); k.e('s_add_u32 s%d, s%d, s%d' % (sCtx, sCtx, sT))
    k.e('s_add_u32 s%d, s%d, 0x%x' % (sCtx, sCtx, WS_CTX))
    ld_setup(k)
    p3_setup(k)

def att_init_items(k):
    it = [lambda: k.e('v_mov_b32 v%d, 0xff800000' % vNinf), lambda: k.e('v_mov_b32 v%d, v%d' % (vRd, vL16)),
          lambda: (k.e('v_and_b32 v%d, 48, v0' % vD), k.e('v_lshrrev_b32 v%d, 2, v%d' % (vD, vD))),
          lambda: (k.e('v_and_b32 v%d, 15, v0' % TE), k.e('v_sub_u32 v%d, v%d, v%d' % (vD, TE, vD)))]
    for i in range(0, 24, 2): it.append(lambda i=i: k.e('v_mov_b64 %s, 0' % R(CB + i, 2)))
    for i in range(4): it.append(lambda i=i: k.e('v_mov_b32 v%d, 0x3f803f80' % (ONES + i)))
    return it

def phase_attn(k, opt, p3_pre, p3_h3_issue, p3_h3_check, p3_preL):
    INLOOP[0] = True
    k.e('v_mov_b32 v%d, %d' % (vT0, VOTE)); k.e('ds_write_b32 v%d, v%d' % (vT0, vZ))
    k.label('L_att_start')
    k.e('s_lshl_b32 s%d, s%d, 1' % (sT, sP)); k.e('s_sub_u32 s%d, 32, s%d' % (sDr, sT))
    k.e('s_add_u32 s%d, s%d, 1' % (sT, sLast)); k.e('s_lshr_b32 s%d, s%d, 1' % (sT, sT)); k.e('s_sub_u32 s%d, s%d, s%d' % (sDr, sDr, sT))
    lab = k.newlab('m0')
    k.e('s_cmp_lg_u32 s%d, 0' % sLast); k.e('s_cbranch_scc1 %s' % lab)
    build_mask(k)
    k.label(lab)
    k.e('s_waitcnt vmcnt(16) lgkmcnt(0)')
    k.e('s_barrier')
    stamp(k, opt, 4)
    for i in range(8): rd(k, i, 16384 + 1024 * i)
    for i in range(8): k.e('v_mov_b32 v%d, 0' % (PF[1] + i))
    for g in range(8):
        k.e('s_waitcnt lgkmcnt(%d)' % (7 if g < 7 else 6))
        kb, ks = g // 4, g % 4
        for qb in range(2):
            D = SB[0] + 8 * kb + 4 * qb
            k.e(mfma(D, RING + 4 * g, QF + (qb * 4 + ks) * 4, (CB + 8 * kb + 4 * qb) if ks == 0 else D))
        if g < AH: rd(k, g, BODY_OFF[g])
    k.e('s_nop 7')
    for qb in range(2):
        rowmax(k, SB[0], qb, TE + qb, TE + 2)
        for kb in range(2):
            for i in range(4):
                k.e('v_sub_f32 v%d, v%d, v%d' % (SB[0] + 8 * kb + 4 * qb + i, SB[0] + 8 * kb + 4 * qb + i, TE + qb))
                k.e('v_sub_f32 v%d, 0, v%d' % (CB + 8 * kb + 4 * qb + i, TE + qb))
    lab = k.newlab('h3')
    k.e('s_cmp_lg_u32 s%d, 0' % sNoF); k.e('s_cbranch_scc1 %s' % lab)
    k.e('s_cmp_lg_u32 s%d, 0' % sSafe); k.e('s_cbranch_scc1 %s' % lab)
    k.e('s_lshl_b32 s%d, s%d, 7' % (sT, sRB)); k.e('s_add_u32 s%d, s%d, %d' % (sT, sT, WS_FLAGS + F_H3 * 128))
    k.e('s_waitcnt vmcnt(0)')
    signal(k, SWS, 's%d' % sT, vT0)
    k.label(lab)
    if 'nop3' not in opt.abl:
        lab = k.newlab('pf3')
        nw = (8 - opt.pf3) * 128
        so, s2_ = -(-5242880 // nw // 128) * 128, -(-2211840 // nw // 128) * 128
        assert so <= 8192
        k.e('s_cmp_ge_u32 s%d, 4' % sW); k.e('s_cbranch_scc1 %s' % lab)
        k.e('s_cmp_lt_u32 s%d, %d' % (sP, opt.pf3)); k.e('s_cbranch_scc1 %s' % lab)
        k.e('s_sub_u32 s%d, s2, %d' % (sT, 32 * opt.pf3)); k.e('s_lshl_b32 s%d, s%d, 2' % (sT, sT)); k.e('s_add_u32 s%d, s%d, s%d' % (sT, sT, sW))
        k.e('s_mul_i32 s%d, s%d, %d' % (sT2, sT, so)); k.e('v_lshlrev_b32 v%d, 7, v0' % vT0); k.e('v_min_u32 v%d, %d, v%d' % (vT0, so - 128, vT0))
        k.e('buffer_load_dword v8, v%d, %s, s%d offen' % (vT0, S(SWO), sT2))
        k.e('s_mul_i32 s%d, s%d, %d' % (sT2, sT, s2_)); k.e('v_min_u32 v%d, %d, v%d' % (vT0, s2_ - 128, vT0))
        k.e('buffer_load_dword v8, v%d, %s, s%d offen' % (vT0, S(SW2), sT2))
        k.label(lab)
    if opt.tlb:
        lab = k.newlab('tlb')
        k.e('s_cmp_lg_u32 s%d, 0' % sW); k.e('s_cbranch_scc1 %s' % lab)
        for d in range(2):
            k.e('s_xor_b32 s%d, s2, %d' % (sT, d)); k.e('s_mul_i32 s%d, s%d, 0x%x' % (sT, sT, EX_BS)); k.e('s_add_u32 s%d, s%d, 0x%x' % (sT, sT, WS_EX + 41088))
            k.e('buffer_load_dword v8, v%d, %s, s%d offen' % (vZ, S(SWS), sT))
        k.e('s_mov_b64 exec, 1')
        k.e('buffer_load_dword v8, v%d, %s, 0 offen' % (vXo, S(SOUT)))
        k.e('s_mov_b64 exec, -1')
        k.label(lab)
    k.e('s_sub_u32 s%d, s%d, 1' % (sRem, sLast)); k.e('s_mov_b32 s%d, 0' % sM); k.e('s_mov_b32 s%d, 0' % sNF)
    lab = k.newlab('ns')
    k.e('s_cmp_lg_u32 s%d, 0' % sSafe); k.e('s_cbranch_scc1 %s' % lab)
    k.e('s_cmp_lt_u32 s%d, 2' % sLast); k.e('s_cbranch_scc1 %s' % lab)
    k.e('s_mov_b32 s%d, 1' % sRem); k.e('s_sub_u32 s%d, s%d, 2' % (sM, sLast))
    k.e('s_lshr_b32 s%d, s%d, 2' % (sNF, sM)); k.e('s_and_b32 s%d, s%d, 3' % (sM, sM))
    k.label(lab)
    lab = k.newlab('m1')
    k.e('s_cmp_lg_u32 s%d, 1' % sLast); k.e('s_cbranch_scc1 %s' % lab)
    build_mask(k)
    k.label(lab)
    stamp(k, opt, 9)
    k.e('s_cmp_ge_u32 s%d, 4' % sW); k.e('s_cbranch_scc1 L_S_entry')
    for v, loader in (('L', False), ('S', True)):
        if loader:
            k.label('L_S_entry')
            if opt.hlead: help_setup(k); help_dummy(k); help_dummy(k)
            k.e('s_cmp_eq_u32 s%d, 0' % sLast); k.e('s_cbranch_scc1 L_S_tail0')
        if not loader and opt.fast4:
            k.e('s_lshr_b32 s%d, s%d, 1' % (sT, sNF)); k.e('s_and_b32 s%d, s%d, 1' % (sNF, sNF))
            k.e('s_sub_u32 s%d, s%d, 1' % (sN4, sT)); k.e('s_cbranch_scc1 L_L_f2')
            k.e('.p2align 6')
            k.label('L_L_fast4')
            for b in range(4):
                for par in range(2): step(k, par, loader, b & 1)
            k.e('s_sub_u32 s%d, s%d, 1' % (sN4, sN4)); k.e('s_cbranch_scc0 L_L_fast4')
            k.label('L_L_f2')
        k.e('s_sub_u32 s%d, s%d, 1' % (sNF, sNF)); k.e('s_cbranch_scc1 L_%s_loop' % v)
        k.e('.p2align 6')
        k.label('L_%s_fast' % v)
        for b in range(2):
            for par in range(2): step(k, par, loader, b)
        if opt.itst and not loader:
            lab = k.newlab('its')
            k.e('s_cmp_lg_u32 s%d, %d' % (sW, opt.stw)); k.e('s_cbranch_scc1 %s' % lab)
            k.e('s_memtime s[88:89]'); k.e('s_lshl_b32 s99, s2, 7'); k.e('s_lshl_b32 s98, s%d, 2' % sNF); k.e('s_add_u32 s99, s99, s98')
            k.e('s_add_u32 s99, s99, 0x%x' % (WS_STAMP + 0x10000)); k.e('s_waitcnt lgkmcnt(0)'); k.e('v_mov_b32 v3, s88')
            k.e('buffer_store_dword v3, v%d, %s, s99 offen' % (vZ, S(SWS)))
            k.label(lab)
        k.e('s_sub_u32 s%d, s%d, 1' % (sNF, sNF)); k.e('s_cbranch_scc0 L_%s_fast' % v)
        k.label('L_%s_loop' % v)
        for par in range(2):
            step(k, par, loader)
            k.e('s_sub_u32 s%d, s%d, 1' % (sM, sM))
            if par == 0:
                k.e('s_cbranch_scc1 L_%s_h0' % v); k.label('L_%s_c0' % v)
            else:
                k.e('s_cbranch_scc0 L_%s_loop' % v)
        for par in (1, 0):
            k.label('L_%s_h%d' % (v, par))
            lab = k.newlab('nsafe')
            k.e('s_cmp_eq_u32 s%d, 0' % sSafe); k.e('s_cbranch_scc1 %s' % lab)
            safe_update(k, par)
            k.label(lab)
            k.e('s_cmp_eq_u32 s%d, 0' % sRem); k.e('s_cbranch_scc1 L_%s_tail%d' % (v, par ^ 1))
            lab = k.newlab('nmask')
            k.e('s_cmp_lg_u32 s%d, 1' % sRem); k.e('s_cbranch_scc1 %s' % lab)
            build_mask(k)
            k.label(lab)
            k.e('s_sub_u32 s%d, s%d, 1' % (sRem, sRem)); k.e('s_mov_b32 s%d, 0' % sM)
            k.e('s_branch %s' % ('L_%s_c0' % v if par == 0 else 'L_%s_loop' % v))
        for par in range(2):
            k.label('L_%s_tail%d' % (v, par))
            stamp(k, opt, 10)
            if not loader: p3_h3_issue()
            tail(k, par, loader)
            if par == 0: k.e('s_branch L_%s_done' % v)
        k.label('L_%s_done' % v)
        vote(k)
        if loader and opt.dprio is not None: k.e('s_setprio %d' % opt.dprio)
        stamp(k, opt, 11)
        if not loader:
            lp = k.newlab('dr')
            if opt.lsplit:
                k.e('s_cmp_lt_u32 s%d, %d' % (sW, opt.lsplit)); k.e('s_cselect_b32 s%d, 1, 0' % sN4); k.e('s_sub_u32 s%d, s%d, s%d' % (sDr, sDr, sN4))
            k.e('s_cmp_eq_u32 s%d, 0' % sDr); k.e('s_cbranch_scc1 L_att_end')
            k.label(lp)
            k.e('s_barrier'); k.e('s_sub_u32 s%d, s%d, 1' % (sDr, sDr)); k.e('s_cmp_lg_u32 s%d, 0' % sDr); k.e('s_cbranch_scc1 %s' % lp)
            k.e('s_branch L_att_end')
        else:
            def it(n):
                lab = k.newlab('nd')
                k.e('s_waitcnt vmcnt(%d)' % n); k.e('s_barrier')
                k.e('s_cmp_le_u32 s%d, 2' % sDr); k.e('s_cbranch_scc1 %s' % lab)
                if opt.dsleep: k.e('s_sleep %d' % opt.dsleep)
                ld_stage(k)
                k.label(lab)
                k.e('s_sub_u32 s%d, s%d, 1' % (sDr, sDr))
            it(8)
            ctx_epilogue(k)
            repack(k, it)
            def polls():
                p3_h3_issue()
                k.e('s_mov_b32 s%d, %d' % (sT2, WS_FLAGS + F_H5 * 128))
                poll(k, SWS, 's%d' % sT2, str(NRPK), vT0)
                p3_h3_check()
            lastn = 2 if opt.early2 else 1
            if opt.early2: k.e('s_cmp_eq_u32 s%d, 1' % sDr); k.e('s_cbranch_scc1 L_S_late')
            for _ in range(2):
                k.e('s_cmp_eq_u32 s%d, %d' % (sDr, lastn)); k.e('s_cbranch_scc1 L_S_final')
                it(16)
            k.label('L_S_drain')
            k.e('s_cmp_eq_u32 s%d, %d' % (sDr, lastn)); k.e('s_cbranch_scc1 L_S_final')
            it(8)
            if opt.early5:
                k.e('s_cmp_lg_u32 s%d, %d' % (sDr, opt.early5)); k.e('s_cbranch_scc1 L_S_drain')
                k.e('s_mov_b32 s%d, %d' % (sT2, WS_FLAGS + F_H5 * 128))
                poll_issue(k, 's%d' % sT2)
                k.e('s_waitcnt vmcnt(0)')
                k.e('v_readfirstlane_b32 s%d, v%d' % (sT, vPl))
                k.e('s_cmp_lt_u32 s%d, %d' % (sT, NRPK)); k.e('s_cbranch_scc1 L_S_drain')
                p3_h3_issue(); p3_h3_check()
                it(0)
                cnt = []
                def mid():
                    cnt.append(k.vm_issued); it(min(63, k.vm_issued + 8))
                p3_pre(opt.e5mid, mid, PA0)
                npre = k.vm_issued
                assert opt.early5 >= 5 and cnt
                it(min(63, npre + 8))
                k.label('L_S_drain2')
                k.e('s_cmp_eq_u32 s%d, 1' % sDr); k.e('s_cbranch_scc1 L_S_fin2')
                it(8)
                k.e('s_branch L_S_drain2')
                k.label('L_S_fin2')
                k.e('s_waitcnt vmcnt(0)'); k.e('s_barrier')
                k.e('s_branch L_att_end2')
            k.e('s_branch L_S_drain')
            if opt.early2:
                k.label('L_S_late')
                k.e('s_waitcnt vmcnt(0)'); k.e('s_barrier'); polls(); p3_pre(None)
                k.e('s_branch L_att_end2')
            k.label('L_S_final')
            if opt.early2 and opt.nbpoll:
                k.e('s_mov_b32 s%d, %d' % (sT2, WS_FLAGS + F_H5 * 128))
                poll_issue(k, 's%d' % sT2)
                k.e('s_waitcnt vmcnt(0)')
                k.e('v_readfirstlane_b32 s%d, v%d' % (sT, vPl))
                k.e('s_cmp_ge_u32 s%d, %d' % (sT, NRPK)); k.e('s_cbranch_scc1 L_S_early')
                k.e('s_barrier'); k.e('s_barrier')
                polls(); p3_pre(None)
                k.e('s_branch L_att_end2')
                k.label('L_S_early')
                p3_h3_issue(); p3_h3_check()
            else:
                polls()
            k.e('s_barrier')
            p3_pre(opt.early2 if opt.early2 else None)
            k.e('s_branch L_att_end2')
    k.label('L_att_end')
    p3_h3_check()
    p3_preL()
    if opt.lsplit:
        k.e('s_cmp_eq_u32 s%d, 0' % sN4); k.e('s_cbranch_scc1 L_att_end2')
        k.e('s_barrier')
    k.label('L_att_end2')
    k.e('v_mov_b32 v%d, %d' % (vT0, VOTE))
    k.e('s_barrier')
    k.e('ds_read_b32 v%d, v%d' % (vT0, vT0))
    stamp(k, opt, 5)
    k.e('s_waitcnt lgkmcnt(0)')
    k.e('v_readfirstlane_b32 s%d, v%d' % (sT, vT0))
    k.e('s_cmp_eq_u32 s%d, 0' % sT); k.e('s_cbranch_scc1 L_att_ok')
    k.e('s_cmp_lg_u32 s%d, 0' % sSafe); k.e('s_cbranch_scc1 L_att_ok')
    k.e('s_mov_b32 s%d, 1' % sSafe)
    k.e('s_waitcnt vmcnt(0)'); k.e('s_barrier')
    for f in att_init_items(k): f()
    for i in range(32): k.e('v_mov_b64 %s, 0' % R(OA + 2 * i, 2))
    k.e('s_cmp_lt_u32 s%d, 4' % sW); k.e('s_cbranch_scc1 L_att_start')
    ld_setup(k); ld_stage(k, True); ld_stage(k); ld_stage(k)
    k.e('s_branch L_att_start')
    k.label('L_att_ok')

sRBP, sKH, sAh, sAc, sW2o, sWOo, sWp, sH4 = 79, 80, 81, 82, 83, 84, 85, 86
vPR = 7; vA = [vL16, 15]; vXo = 6; vPl = 10
AR = 48
PW = 16
PACC = 160
XR = 200
NST = 23; NF = 7
PX = 0xC1
sNE = 87
def nfe_table(opt):
    a, b, c = [int(x, 16) for x in str(opt.nft)]
    return [a, a, c, c, c, c, b, b]
def set_half(nfe, kh):
    global NST, NF
    NF = nfe if kh == 0 else 14 - nfe
    NST = NF + 16
HORD = [0, 1, 2, 3, 8, 9, 10, 11, 4, 5, 6, 7, 12, 13, 14, 15]
def krel(st): return st if st < NF else HORD[st - NF]
def pslot(st): return ((st + 7) % 8) * 20480

def p3_setup(k):
    k.e('s_and_b32 s%d, s2, 1' % sKH)
    k.e('s_bfe_u32 s%d, s2, 0x20001' % sT); k.e('s_lshl_b32 s%d, s%d, 2' % (sT, sT)); k.e('s_bfe_u32 s%d, s2, 0x20003' % sT2); k.e('s_add_u32 s%d, s%d, s%d' % (sT, sT, sT2))
    k.e('s_lshl_b32 s%d, s%d, 2' % (sRBP, sT)); k.e('s_and_b32 s%d, s%d, 3' % (sA, sW)); k.e('s_add_u32 s%d, s%d, s%d' % (sRBP, sRBP, sA))
    k.e('s_lshr_b32 s%d, s%d, 2' % (sT, sW))
    k.e('s_lshl_b32 s%d, s%d, 12' % (sT2, sT))
    k.e('s_mul_i32 s%d, s%d, 0x%x' % (sAh, sRBP, H_BS)); k.e('s_add_u32 s%d, s%d, s%d' % (sAh, sAh, sT2)); k.e('s_add_u32 s%d, s%d, 0x%x' % (sAh, sAh, WS_H))
    k.e('s_mul_i32 s%d, s%d, 0x%x' % (sAc, sRBP, CTX_BS)); k.e('s_add_u32 s%d, s%d, s%d' % (sAc, sAc, sT2)); k.e('s_add_u32 s%d, s%d, 0x%x' % (sAc, sAc, WS_CTX))
    k.e('s_lshr_b32 s%d, s2, 5' % sB); k.e('s_mul_i32 s%d, s%d, %d' % (sT2, sKH, (PX >> 5))); k.e('s_xor_b32 s%d, s%d, s%d' % (sB, sB, sT2))
    k.e('s_lshl_b32 s%d, s%d, 2' % (sT2, sB)); k.e('s_lshr_b32 s%d, 0x%x, s%d' % (sNE, sum(v << (4 * i) for i, v in enumerate(nfe_table(OPT[0]))), sT2)); k.e('s_and_b32 s%d, s%d, 15' % (sNE, sNE))
    k.e('s_lshl_b32 s%d, s%d, 2' % (sC, sNE)); k.e('s_sub_u32 s%d, s%d, 2' % (sC, sC)); k.e('s_mul_i32 s%d, s%d, s%d' % (sC, sC, sKH))
    k.e('s_lshl_b32 s%d, s%d, 11' % (sT2, sC)); k.e('s_add_u32 s%d, s%d, s%d' % (sAh, sAh, sT2))
    k.e('s_lshl_b32 s%d, s%d, 17' % (sT2, sKH)); k.e('s_add_u32 s%d, s%d, s%d' % (sAc, sAc, sT2))
    k.e('s_lshl_b32 s%d, s%d, 1' % (sT2, sW)); k.e('s_mul_i32 s%d, s%d, 3' % (sWp, sW)); k.e('s_sub_u32 s%d, s%d, 4' % (sWp, sWp))
    k.e('s_max_i32 s%d, s%d, s%d' % (sWp, sWp, sT2)); k.e('s_lshl_b32 s%d, s%d, 10' % (sWp, sWp))
    k.e('s_mul_i32 s%d, s%d, 0x%x' % (sW2o, sB, WP_CS)); k.e('s_add_u32 s%d, s%d, 0x%x' % (sW2o, sW2o, WS_WP))
    k.e('s_mul_i32 s%d, s%d, %d' % (sT2, sKH, 64 * 5120)); k.e('s_add_u32 s%d, s%d, s%d' % (sWOo, sW2o, sT2)); k.e('s_add_u32 s%d, s%d, %d' % (sWOo, sWOo, 54 * 5120))
    k.e('s_mul_i32 s%d, s%d, 5120' % (sT2, sC)); k.e('s_add_u32 s%d, s%d, s%d' % (sW2o, sW2o, sT2))
    k.e('s_lshl_b32 s%d, s%d, 1' % (sH4, sRBP)); k.e('s_add_u32 s%d, s%d, s%d' % (sH4, sH4, sKH)); k.e('s_lshl_b32 s%d, s%d, 8' % (sH4, sH4))
    k.e('s_add_u32 s%d, s%d, %d' % (sH4, sH4, WS_FLAGS + F_H4 * 128))
    k.e('v_add_u32 v%d, 4096, v%d' % (vA[1], vL16))
    k.e('v_lshrrev_b32 v%d, 2, v0' % vPR); k.e('v_mul_u32_u24 v%d, 160, v%d' % (vPR, vPR))
    k.e('v_and_b32 v%d, 3, v0' % vU); k.e('v_lshl_add_u32 v%d, v%d, 3, v%d' % (vPR, vU, vPR))
    k.e('s_mul_i32 s%d, s%d, 10240' % (sT2, sT)); k.e('s_add_u32 s%d, s%d, %d' % (sT2, sT2, pslot(0))); k.e('v_add_u32 v%d, s%d, v%d' % (vPR, sT2, vPR))
    k.e('s_lshl_b32 s%d, s%d, 1' % (sT2, sRBP)); k.e('s_add_u32 s%d, s%d, s%d' % (sT2, sT2, sT)); k.e('s_lshl_b32 s%d, s%d, 4' % (sT2, sT2))
    k.e('v_and_b32 v%d, 15, v0' % vU); k.e('v_add_u32 v%d, s%d, v%d' % (vU, sT2, vU)); k.e('v_mul_u32_u24 v%d, 1280, v%d' % (vXo, vU))
    k.e('v_lshrrev_b32 v%d, 4, v0' % vU); k.e('v_lshl_add_u32 v%d, v%d, 3, v%d' % (vXo, vU, vXo))
    k.e('s_mul_i32 s%d, s%d, 160' % (sT, sB)); k.e('v_add_u32 v%d, s%d, v%d' % (vXo, sT, vXo))

def p3_w_items(k, st, role, tok):
    base, rel = (sW2o if st < NF else sWOo), krel(st)
    it = []
    for j in range(2 + role):
        def f(j=j):
            if j == 0:
                k.e('s_add_u32 s%d, s%d, s%d' % (sA, base, sWp))
                if rel: k.e('s_add_u32 s%d, s%d, 0x%x' % (sA, sA, rel * 20480))
                k.e('s_add_u32 m0, s%d, %d' % (sWp, pslot(st))); k.e('s_nop 0')
            tok[('pw', st)] = k.vm('buffer_load_dwordx4 v%d, %s, s%d offen offset:%d sc1 lds' % (vL16, S(SWS), sA, j * 1024))
        it.append(f)
    return it

def p3_a_items(k, st, na, tok):
    base, rel = (sAh if st < NF else sAc), krel(st)
    it = []
    for j in range(4):
        def f(j=j):
            if j == 0: k.e('s_add_u32 s%d, s%d, %d' % (sB, base, rel * 8192))
            tok[('pa', st, j >> 1)] = k.vm('buffer_load_dwordx4 %s, v%d, %s, s%d offen offset:%d sc1' % (R(AR + (st % na) * 16 + j * 4), vL16, S(SWS), sB, j * 1024))
        it.append(f)
    return it

def NAS(): return 6 if OPT[0].wreg else 7
WREG = [160 + 4 * i for i in range(10)] + [220 + 4 * i for i in range(9)] + [144]
def wreg_loads(k, st, tok):
    it = []
    for j in range(5):
        def f(j=j):
            if j == 0: k.e('s_add_u32 s%d, s%d, 0x%x' % (sA, sWq, st * 20480))
            tok[('wr', st)] = k.vm('buffer_load_dwordx4 %s, v%d, %s, s%d offen offset:%d sc1' % (R(WREG[(st - 1) * 5 + j]), vA[j >> 2], S(SWS), sA, (j & 3) * 1024))
        it.append(f)
    return it
def wreg_writes(k, st, tok):
    it = []
    for j in range(5):
        def f(j=j):
            if j == 0:
                k.e('v_add_u32 v%d, 0x%x, v%d' % (vWw, (pslot(st) - (pslot(st - 1) if st > 1 else 0)) & 0xffffffff, vWw))
                k.wait(vm=tok[('wr', st)])
            tok[('ww', st)] = k.ds('ds_write_b128 v%d, %s offset:%d' % (vWw, R(WREG[(st - 1) * 5 + j]), j * 1024))
        it.append(f)
    return it
sWq = 97; vWw = 2; sPre = 98

def poll_issue(k, soff):
    k.e('buffer_load_dword v%d, v%d, %s, %s offen sc1' % (vPl, vZ, S(SWS), soff))
def poll_check(k, soff, target, meanwhile=None):
    lab = k.newlab('pok')
    k.e('v_readfirstlane_b32 s%d, v%d' % (sT, vPl))
    k.e('s_cmp_ge_u32 s%d, %d' % (sT, target)); k.e('s_cbranch_scc1 %s' % lab)
    if meanwhile: meanwhile()
    poll(k, SWS, soff, str(target), vPl)
    k.label(lab)
def keeper_scc(k):
    k.e('s_bfe_u32 s%d, s%d, 0x10001' % (sC, sW)); k.e('s_cmp_eq_u32 s%d, s%d' % (sC, sKH))

def p3_body(k, opt, role, tok, kh):
    ksl = role
    WD = opt.wd
    NA = NAS() if role else 5
    AD = NA - 1
    A0 = PA0 if role else 0
    late = {}
    NW = opt.wreg
    assert NW in (0, 2, 3, 4) and NW < WD and (NW == 0 or opt.h4s < 0)
    k.ds_issued = k.ds_done = 0
    if role == 0:
        stores = tok['stores']
        if opt.h4s < 0:
            assert opt.cst0 == 8
            tst = k.last_vm()
            if not NW:
                for f in p3_w_items(k, 1, role, tok): f()
            k.wait(vm=tst)
            signal(k, SWS, 's%d' % sFl, vT0); k.vm_issued += 1
            for f in p3_a_items(k, 1, NA, tok): f()
        else:
            for f in p3_w_items(k, 1, role, tok) + p3_a_items(k, 1, NA, tok): f()
        wi = lambda st: p3_w_items(k, st, role, tok) if st > NW else []
        late[0] = stores[opt.cst0:] + [lambda: tok.__setitem__('st', k.last_vm())] + wi(2) + p3_a_items(k, 2, NA, tok)
        late[1] = wi(3) + p3_a_items(k, 3, NA, tok)
        for st in range(4, WD): late[st - 2] = wi(st)
        k.wait(vm=tok[('pa', 0, 0)])
        anext = 4
    else:
        signal(k, SWS, 's%d' % sFl, vT0); k.vm_issued += 1
        if NW:
            k.e('s_and_b32 s%d, s%d, 3' % (sT, sW)); k.e('s_mul_i32 s%d, s%d, 5120' % (sT, sT)); k.e('v_add_u32 v%d, s%d, v%d' % (vWw, sT, vL16))
            for f in wreg_writes(k, 1, tok) + wreg_writes(k, 2, tok): f()
            for st in range(3, NW + 1): late[st - 3] = wreg_writes(k, st, tok)
        for st in range(1, WD):
            if st > NW:
                for f in p3_w_items(k, st, role, tok): f()
            if st >= A0 and st < min(4, NF):
                for f in p3_a_items(k, st, NA, tok): f()
        A0 = max(A0, min(4, NF))
        k.wait(vm=tok['x'], ds=tok.get(('ww', 2)))
        for i in range(20):
            k.e('v_lshlrev_b32 v%d, 16, v%d' % (PACC + 2 * i, XR + i)); k.e('v_and_b32 v%d, 0xffff0000, v%d' % (PACC + 2 * i + 1, XR + i))
        anext = A0
    AHP = 5
    frags = [(st, e, cb) for st in range(NST) for e in range(2) for cb in range(5)]
    def read(n, half=None):
        st, e, cb = frags[n]
        if e == 0 and cb == 0 and st > 0 and half != 1:
            k.e('v_add_u32 v%d, 0x%x, v%d' % (vPR, (pslot(st) - pslot(st - 1)) & 0xffffffff, vPR))
        r = PW + 4 * (n % 8); off = e * 5120 + cb * 32
        if half != 1: k.ds('ds_read_b64_tr_b16 %s, v%d offset:%d' % (R(r, 2), vPR, off))
        if half != 0: tok[('pf', n)] = k.ds('ds_read_b64_tr_b16 %s, v%d offset:%d' % (R(r + 2, 2), vPR, off + 2560))
    k.e('s_barrier')
    stamp(k, opt, 6)
    for n in range(AHP): read(n)
    HC = max(NF - opt.h4d, 1)
    HC2 = NF + 8 - opt.h4d2
    assert opt.h4s < HC
    for st in range(NST):
        extra = {}
        ex = list(late.get(st, []))
        lim = min(st + 4, NST - 1)
        while anext <= lim and (anext < NF or st > HC) and (anext < NF + 8 or st > HC2) and anext - NA < st:
            ex += p3_a_items(k, anext, NA, tok); anext += 1
        spread(extra, ex, 0, 4)
        wit = p3_w_items(k, st + WD, role, tok) if st + WD < NST else []
        for i in range(10):
            n = st * 10 + i
            _, e, cb = frags[n]
            k.wait(ds=tok[('pf', n)])
            if cb == 0: k.wait(vm=tok[('pa', st, e)])
            ms = [mfma(PACC + (cb * 2 + q) * 4, PW + 4 * (n % 8), AR + (st % NA) * 16 + e * 8 + q * 4, PACC + (cb * 2 + q) * 4) for q in range(2)]
            if st == 0 and ksl == 0 and kh == 1: ms = [None, None]
            if ms[0]: k.e(ms[0])
            if i == 10 - AHP and st < NST - 1:
                if st == HC:
                    k.wait(vm=tok['h4'])
                    def warm():
                        k.e('s_bfe_u32 s%d, s2, 0x20003' % sT); k.e('s_lshl_b32 s%d, s%d, 3' % (sT, sT)); k.e('s_add_u32 s%d, s%d, s%d' % (sT, sT, sW))
                        k.e('s_mul_i32 s%d, s%d, 10240' % (sT, sT)); k.e('s_add_u32 s%d, s%d, s%d' % (sT, sT, sWOo))
                        k.e('v_lshlrev_b32 v%d, 7, v0' % vT0)
                        k.e('buffer_load_dword v%d, v%d, %s, s%d offen sc1' % (vPl, vT0, S(SWS), sT))
                        k.e('v_and_b32 v%d, 0x7ff, v%d' % (vT0, vT0)); k.e('s_add_u32 s%d, s%d, 8192' % (sT, sT))
                        k.e('buffer_load_dword v%d, v%d, %s, s%d offen sc1' % (vPl, vT0, S(SWS), sT))
                    poll_check(k, 's%d' % sH4, 8, warm if opt.warm else None)
                if st == HC2:
                    k.wait(vm=tok['h4'])
                    poll_check(k, 's%d' % sH4, 8)
                k.wait(vm=tok.get(('pw', st + 1)), ds=tok.get(('ww', st + 1)))
                k.e('s_barrier')
                if opt.p3st and (st - NF) in P3ST: stamp(k, opt, P3ST[st - NF])
                if role == 0 and st == opt.h4s:
                    k.wait(vm=tok['st'])
                    signal(k, SWS, 's%d' % sFl, vT0); k.vm_issued += 1
                if st == HC2 - 1: k.e('s_add_u32 s%d, s%d, 128' % (sH4, sH4))
                if st in (HC - 1, HC2 - 1):
                    poll_issue(k, 's%d' % sH4); k.vm_issued += 1; tok['h4'] = k.last_vm()
            if n + AHP < len(frags): read(n + AHP, 0 if opt.split else None)
            if ms[1]: k.e(ms[1])
            if opt.split and n + AHP < len(frags): read(n + AHP, 1)
            for f in extra.get(i, []): f()
            if i >= 10 - AHP and wit: wit.pop(0)()
        assert not wit
    stamp(k, opt, 7)
    if opt.diagsleep3: k.e('s_sleep %d' % opt.diagsleep3)
    KA = [PACC + (c * 2 + ksl) * 4 for c in range(5)]; SA = [PACC + (c * 2 + 1 - ksl) * 4 for c in range(5)]
    k.e('s_mul_i32 s%d, s%d, 5120' % (sT, sW)); k.e('v_add_u32 v%d, s%d, v%d' % (vT0, sT, vL16))
    k.e('s_xor_b32 s%d, s%d, 4' % (sT2, sW)); k.e('s_mul_i32 s%d, s%d, 5120' % (sT2, sT2)); k.e('v_add_u32 v%d, s%d, v%d' % (vPl, sT2, vL16))
    XB = [x for x in (0, 20480, 40960, 61440) if not {x, x + 20480} & {pslot(NST - 1), pslot(NST - 2)}][0]
    k.e('v_add_u32 v%d, %d, v%d' % (vT0, XB, vT0)); k.e('v_add_u32 v%d, %d, v%d' % (vPl, XB, vPl))
    k.e('s_nop 2')
    for c in range(5): k.e('ds_write_b128 v%d, %s offset:%d' % (vT0, R(SA[c]), c * 1024))
    keeper_scc(k); k.e('s_cselect_b32 s%d, 0x%x, 0' % (sC, PX)); k.e('s_xor_b32 s%d, s2, s%d' % (sT2, sC))
    k.e('s_mul_i32 s%d, s%d, 0x%x' % (sA, sT2, EX_BS)); k.e('s_add_u32 s%d, s%d, s%d' % (sA, sA, sT)); k.e('s_add_u32 s%d, s%d, 0x%x' % (sA, sA, WS_EX))
    k.e('s_lshl_b32 s%d, s%d, 7' % (sFl, sT2)); k.e('s_lshl_b32 s%d, s%d, 2' % (sT2, sW)); k.e('s_add_u32 s%d, s%d, s%d' % (sFl, sFl, sT2))
    k.e('s_add_u32 s%d, s%d, %d' % (sFl, sFl, WS_FLAGS + F_X5 * 128))
    k.e('s_waitcnt lgkmcnt(0)')
    k.e('s_barrier')
    RX = 16
    for c in range(5): k.e('ds_read_b128 %s, v%d offset:%d' % (R(RX + c * 4), vPl, c * 1024))
    keep = k.newlab('keep')
    k.e('s_cmp_lg_u32 s%d, 0' % sC); k.e('s_cbranch_scc1 %s' % keep)
    def add_sib(c):
        k.e('s_waitcnt lgkmcnt(%d)' % (4 - c))
        for e in range(2): k.e('v_pk_add_f32 %s, %s, %s' % (R(KA[c] + 2 * e, 2), R(KA[c] + 2 * e, 2), R(RX + c * 4 + 2 * e, 2)))
    for c in range(5):
        add_sib(c)
        k.e('buffer_store_dwordx4 %s, v%d, %s, s%d offen offset:%d sc1' % (R(KA[c]), vA[c >> 2], S(SWS), sA, (c & 3) * 1024))
    k.e('v_mov_b32 v%d, 1' % vT0)
    k.e('s_waitcnt vmcnt(0)')
    k.e('s_mov_b64 exec, 1')
    k.e('buffer_store_dword v%d, v%d, %s, s%d offen sc1' % (vT0, vZ, S(SWS), sFl))
    stamp(k, opt, 8)
    k.e('s_endpgm')
    k.label(keep)
    for c in range(5): add_sib(c)
    poll(k, SWS, 's%d' % sFl, '1', vPl)
    for c in range(5):
        k.e('buffer_load_dwordx4 %s, v%d, %s, s%d offen offset:%d sc1' % (R(RX + c * 4), vA[c >> 2], S(SWS), sA, (c & 3) * 1024))
    for c in range(5):
        a = KA[c]
        k.e('s_waitcnt vmcnt(4)')
        for e in range(2): k.e('v_pk_add_f32 %s, %s, %s' % (R(a + 2 * e, 2), R(a + 2 * e, 2), R(RX + c * 4 + 2 * e, 2)))
        k.e('v_cvt_pk_bf16_f32 v%d, v%d, v%d' % (a, a, a + 1)); k.e('v_cvt_pk_bf16_f32 v%d, v%d, v%d' % (a + 1, a + 2, a + 3))
        k.e('buffer_store_dwordx2 %s, v%d, %s, 0 offen offset:%d %s' % (R(a, 2), vXo, S(SOUT), c * 32, opt.opol.replace('+', ' ')))
    stamp(k, opt, 8)
    k.e('s_endpgm')

P3ST = {-5: 1, -4: 2, -1: 3, 2: 4, 4: 9, 7: 10, 11: 11, 14: 13}
def phase_attn_p3(k, opt):
    tokS = {}; tokL = {}; trk = {}
    global PA0
    PA0 = min([opt.pa0] + nfe_table(opt) + [14 - x for x in nfe_table(opt)])
    opt.psplit = min(opt.psplit, PA0)
    assert opt.early2 < opt.psplit and PA0 >= 4
    def h3_issue():
        k.e('s_lshl_b32 s%d, s%d, 7' % (sFl, sRBP)); k.e('s_add_u32 s%d, s%d, %d' % (sFl, sFl, WS_FLAGS + F_H3 * 128))
        poll_issue(k, 's%d' % sFl)
    def h3_check():
        k.e('s_waitcnt vmcnt(0)')
        poll_check(k, 's%d' % sFl, 27)
    def pre(barrier_at, mid=lambda: k.e('s_barrier'), upto=None):
        k.vm_issued = k.vm_done = 0
        k.e('s_and_b32 s%d, s%d, 3' % (sT, sW)); k.e('s_mul_i32 s%d, s%d, 5120' % (sT, sT))
        k.e('s_add_u32 s%d, s%d, s%d' % (sA, sW2o, sT)); k.e('s_add_u32 m0, s%d, %d' % (sT, pslot(0))); k.e('s_nop 0')
        for j in range(5):
            if j == 4: k.e('s_add_u32 m0, s%d, %d' % (sT, pslot(0) + 4096)); k.e('s_nop 0')
            k.vm('buffer_load_dwordx4 v%d, %s, s%d offen offset:%d sc1 lds' % (vA[j >> 2], S(SWS), sA, (j & 3) * 1024))
        k.e('s_mov_b32 s%d, s%d' % (sWq, sA))
        for f in p3_a_items(k, 0, NAS(), tokS): f()
        keeper_scc(k); k.e('s_cselect_b32 s%d, 0, 0x10000000' % sC)
        k.e('v_subrev_u32 v%d, %d, v%d' % (vT0, 16 * 1280, vXo))
        for c in range(5):
            for qb in range(2):
                tokS['x'] = k.vm('buffer_load_dwordx2 %s, v%d, %s, s%d offen offset:%d' % (R(XR + (c * 2 + qb) * 2, 2), vXo if qb else vT0, S(SX), sC, c * 32))
        k.e('s_mov_b32 s%d, %d' % (sPre, 1 if upto else 0))
        for st in range(1, upto or opt.psplit):
            if st == barrier_at: mid()
            pre_stage(st)
        if not upto: trk['S'] = (k.vm_issued, k.vm_done)
    def pre_stage(st):
        if st <= opt.wreg:
            for f in wreg_loads(k, st, tokS): f()
        for f in p3_a_items(k, st, NAS(), tokS): f()
    def preB():
        k.vm_issued, k.vm_done = trk['S']
        lab = k.newlab('preB')
        k.e('s_cmp_lg_u32 s%d, 0' % sPre); k.e('s_cbranch_scc1 %s' % lab)
        for st in range(opt.psplit, PA0): pre_stage(st)
        k.label(lab)
        trk['S'] = (k.vm_issued, k.vm_done)
    def preL():
        k.vm_issued = k.vm_done = 0
        for f in p3_a_items(k, 0, 5, tokL): f()
        tokL['stores'] = ctx_epilogue(k, defer=True)
        for f in tokL['stores'][:opt.cst0]: f()
        for i in range(20): k.e('v_mov_b64 %s, 0' % R(PACC + 2 * i, 2))
        trk['L'] = (k.vm_issued, k.vm_done)
    phase_attn(k, opt, pre, h3_issue, h3_check, preL)
    k.e('s_lshl_b32 s%d, s%d, 1' % (sFl, sRB)); k.e('s_lshr_b32 s%d, s%d, 4' % (sT, sH)); k.e('s_add_u32 s%d, s%d, s%d' % (sFl, sFl, sT))
    k.e('s_lshl_b32 s%d, s%d, 1' % (sFl, sFl)); k.e('s_add_u32 s%d, s%d, s%d' % (sFl, sFl, sKH))
    k.e('s_lshl_b32 s%d, s%d, 7' % (sFl, sFl)); k.e('s_add_u32 s%d, s%d, %d' % (sFl, sFl, WS_FLAGS + F_H4 * 128))
    k.label('L_pub2')
    k.e('s_cmp_ge_u32 s%d, 4' % sW); k.e('s_cbranch_scc1 L_p3_S')
    vals = sorted(set(nfe_table(opt)))
    keys = [(kh, v) for kh in range(2) for v in vals]
    for role, tk, nm in ((0, tokL, 'L'), (1, tokS, 'S')):
        if role: k.label('L_p3_S'); preB()
        k.e('s_lshl_b32 s%d, s%d, 4' % (sT, sKH)); k.e('s_add_u32 s%d, s%d, s%d' % (sT, sT, sNE))
        for kh, v in keys[1:]:
            k.e('s_cmp_eq_u32 s%d, %d' % (sT, kh * 16 + v)); k.e('s_cbranch_scc1 L_p3_%s%d_%d' % (nm, kh, v))
        for kh, v in keys:
            k.label('L_p3_%s%d_%d' % (nm, kh, v))
            set_half(v, kh)
            k.vm_issued, k.vm_done = trk[nm]
            p3_body(k, opt, role, dict(tk), kh)
```

```python
import sys, os
sys.path.insert(0, os.path.dirname(os.path.abspath(__file__)))
from kb import *

NAME = 'parallel_sum__compressed_kv_cla__dense_activation_relu__prompt'
WS_FLAGS = 0
WS_XN = 0x20000;   XN_BS = 40960
WS_H = WS_XN + 64 * XN_BS;   H_BS = 0x1B000
WS_KV = WS_H + 64 * H_BS;  KVS = 0x83000
WS_CTX = WS_KV + 64 * KVS; CTX_BS = 0x43000
WS_EX = WS_CTX + 64 * CTX_BS; EX_BS = 0xAC00
WS_WP = WS_EX + 256 * EX_BS; WP_CS = 183 * 5120 + 3072
WS_DBGQ = 0x6000000
WS_STAMP = 0x7000000
assert WS_WP + 8 * WP_CS <= WS_DBGQ
F_H2, F_H3, F_H4, F_X5, F_H5 = 0, 32, 96, 352, 608
SX, SCKV, SWQ, SWUK, SWUV, SWO, SW1, SW2, SOUT, SDBG, SWS = 4, 8, 12, 16, 20, 24, 28, 32, 36, 40, 44
sW, sH, sP, sRB = 48, 49, 50, 51
sW4096, sW1056 = 52, 53
sA, sB, sC, sT, sT2 = 54, 55, 56, 57, 58
sXN, sKst, sVst, sHst = 59, 60, 61, 62
sSc = 64
sSpin = 66
sRot = 63
sF, sNoF = 3, 92
KV_C = [0, 66560]; KV_W = [32768, 99328]
QA, QB, QC = 138496, 113152, 87808
QSLOT = [QA, QC, QB]
LN_BUF = QA; LN_STRIDE = 1296
LDS_BYTES = 163840
vL16, vWD, vW1D, vZ = 1, 2, 3, 4
vT0, vT3 = 5, 8
vG, vI, vU, vV = 16, 17, 18, 19
XR_LN = [8, 13, 14, 126, 127]
vWQR = [9, 10]
vW1R = [11, 12]
vCD = [112, 113, 114, 115]
vCR = [[116, 117], [118, 119]]
vWR = [120, 121]
ACCK, ACCV = 128, 192
CF = [16, 64]; WF = [48, 96]

class Opt:
    stamps = False
    dumpq = False
    stop = None
    pf = 8
    jit = 2
    g1a = 1
    kvr = 23
    slp = 2
    dsl = 0
    opol = ''
    stouch = 0
    wpol = ''
    diagsleep0 = 0
    diagsleep1 = 0
    diagsleep3 = 0
    diagsleep = 0
    split = 1
    qah = 5
    lnfirst = 0
    pfqr = 2
    pfqs = 12345
    skipm = 0x20202022
    rot = 0
    h4d = 4
    h4d2 = 4
    h4s = -1
    cst0 = 8
    pa0 = 7
    early2 = 2
    itst = 0
    pf3 = 2
    tlb = 0
    ru = 4
    hlead = 0
    dprio = 0
    dsleep = 0
    early5 = 5
    wreg = 0
    e5mid = 3
    psplit = 4
    lsplit = 2
    l2w = 0
    l2n = 2
    nbpoll = 1
    nft = '888'
    fast4 = 0
    warm = 0
    exbf = 0
    wd = 5
    p3st = 0
    rp0 = 0
    rpl = 4
    rps = 20
    prio = 'q7'
    prio2 = None
    qst = 0
    kvst = 0
    pfd = 2
    pf0 = 2
    pfp = 2
    dstamps = False
    pfi = 128
    kvpol = 'sc1'
    only = None
    pfc = 0
    abl = ''
    kvw = 24
    stw = 0
    hack = 0
    pfg = 64
    pfq = 1
    h2poll = 10
    stsched = 433222
    early = 1
    stper = 2
    h2sig = 6

def emit_interleaved(k, mf, fill, tok):
    for i, (txt, needs) in enumerate(mf):
        need = [tok[x] for x in needs if x in tok]
        if need: k.wait(ds=max(need))
        k.e(txt)
        for f in fill.get(i, []): f()

def spread(fill, items, first, last):
    n = len(items)
    for j, it in enumerate(items):
        s = first + (j * (last - first + 1)) // max(n, 1)
        fill.setdefault(s, []).append(it)

def stamp(k, opt, idx):
    vS = 3 if 'L_q_done:' in k.lines else 5
    if opt.dstamps:
        m = {0: 1, 1: 2, 2: 3, 3: 4, 9: 5, 5: 6, 7: 7, 8: 8}
        if idx not in m: return
        lab = k.newlab('st')
        k.e('s_cmp_lg_u32 s%d, %d' % (sW, opt.stw)); k.e('s_cbranch_scc1 %s' % lab)
        k.e('s_cmp_lg_u32 s2, 77'); k.e('s_cbranch_scc1 %s' % lab)
        k.e('s_memrealtime s[100:101]'); k.e('s_memtime s[88:89]'); k.e('s_waitcnt lgkmcnt(0)')
        k.e('v_mov_b32 v%d, s100' % vS)
        k.e('buffer_store_dword v%d, v%d, %s, 0 offen offset:%d' % (vS, vZ, S(SDBG), m[idx] * 4))
        if m[idx] == 1:
            k.e('v_mov_b32 v%d, s90' % vS)
            k.e('buffer_store_dword v%d, v%d, %s, 0 offen offset:%d' % (vS, vZ, S(SDBG), 36))
        if m[idx] >= 3:
            k.e('v_mov_b32 v%d, s88' % vS)
            k.e('buffer_store_dword v%d, v%d, %s, 0 offen offset:%d' % (vS, vZ, S(SDBG), (m[idx] + 7) * 4))
        k.label(lab)
        return
    if not opt.stamps: return
    if opt.p3st and idx in (1, 2, 3, 4, 9, 10, 11, 13) and 'L_pub2:' not in k.lines: return
    lab = k.newlab('st')
    k.e('s_cmp_lg_u32 s%d, %d' % (sW, opt.stw)); k.e('s_cbranch_scc1 %s' % lab)
    k.e('s_memrealtime s[100:101]'); k.e('s_memtime s[88:89]'); k.e('s_waitcnt lgkmcnt(0)')
    k.e('s_lshl_b32 s99, s2, 7'); k.e('s_add_u32 s99, s99, 0x%x' % (WS_STAMP + idx * 4))
    k.e('v_mov_b32 v%d, s100' % vS)
    k.e('buffer_store_dword v%d, v%d, %s, s99 offen' % (vS, vZ, S(SWS)))
    k.e('v_mov_b32 v%d, s88' % vS)
    k.e('buffer_store_dword v%d, v%d, %s, s99 offen offset:64' % (vS, vZ, S(SWS)))
    if idx == 0:
        k.e('v_mov_b32 v%d, s90' % vS)
        k.e('buffer_store_dword v%d, v%d, %s, s99 offen offset:48' % (vS, vZ, S(SWS)))
    k.label(lab)

SLP = [2]
def poll(k, srd, soff, target, vtmp):
    lp = k.newlab('poll'); dn = k.newlab('polld')
    k.e('s_mov_b32 s%d, 0x10000' % sSpin)
    k.label(lp)
    k.e('buffer_load_dword v%d, v%d, %s, %s offen sc1' % (vtmp, vZ, S(srd), soff))
    k.e('s_waitcnt vmcnt(0)')
    k.e('v_readfirstlane_b32 s%d, v%d' % (sT, vtmp))
    k.e('s_cmp_ge_u32 s%d, %s' % (sT, target))
    k.e('s_cbranch_scc1 %s' % dn)
    k.e('s_sleep %d' % SLP[0])
    k.e('s_sub_u32 s%d, s%d, 1' % (sSpin, sSpin))
    k.e('s_cmp_lg_u32 s%d, 0' % sSpin)
    k.e('s_cbranch_scc1 %s' % lp)
    k.label(dn)

def signal(k, srd, soff, vtmp):
    k.e('v_mov_b32 v%d, 1' % vtmp)
    k.e('s_mov_b64 exec, 1')
    k.e('buffer_atomic_add v%d, v%d, %s, %s offen' % (vtmp, vZ, S(srd), soff))
    k.e('s_mov_b64 exec, -1')

def setprio_young(k, p):
    lab = k.newlab('pr')
    k.e('s_cmp_lt_u32 s%d, 4' % sW); k.e('s_cbranch_scc1 %s' % lab)
    k.e('s_setprio %d' % p)
    k.label(lab)

def signal_w0(k, srd, sreg, vtmp):
    k.e('s_cmp_eq_u32 s%d, 0' % sW); k.e('s_cselect_b32 s%d, s%d, 0x10000000' % (sreg, sreg))
    signal(k, srd, 's%d' % sreg, vtmp)
    k.vm_issued += 1

WPOL = ['']
def dma(k, voff, srd, soff, m0base, m0imm):
    k.e('s_add_u32 m0, s%d, %d' % (m0base, m0imm))
    k.e('s_nop 0')
    return k.vm('buffer_load_dwordx4 v%d, %s, %s offen %s lds' % (voff, S(srd), soff, WPOL[0]))

vPf = 123; vPfA = 122
sPc = 93
CTOUCH = [False]
def pf_paced_setup(k):
    k.e('s_lshl_b32 s%d, s%d, 3' % (sT, sP)); k.e('s_add_u32 s%d, s%d, s%d' % (sT, sT, sW)); k.e('s_lshl_b32 s%d, s%d, 13' % (sT, sT))
    k.e('s_lshl_b32 s%d, s%d, 8' % (sT2, sH)); k.e('s_add_u32 s%d, s%d, s%d' % (sT, sT, sT2))
    k.e('v_and_b32 v%d, 1, v0' % vPfA); k.e('v_lshlrev_b32 v%d, 7, v%d' % (vPfA, vPfA)); k.e('v_add_u32 v%d, s%d, v%d' % (vPfA, sT, vPfA))
def pf_paced(k, st):
    def f0():
        k.e('s_add_u32 s%d, s%d, %d' % (sPc, sRot, st)); k.e('s_and_b32 s%d, s%d, 7' % (sPc, sPc)); k.e('s_lshl_b32 s%d, s%d, 19' % (sPc, sPc))
        k.vm('buffer_load_dword v%d, v%d, %s, s%d offen' % (vPf, vPfA, S(SWUK), sPc))
    def f1():
        k.vm('buffer_load_dword v%d, v%d, %s, s%d offen' % (vPf, vPfA, S(SWUV), sPc))
        if CTOUCH[0]:
            k.e('s_lshl_b32 s%d, s2, 3' % sPc); k.e('s_add_u32 s%d, s%d, s%d' % (sPc, sPc, sW)); k.e('s_lshl_b32 s%d, s%d, 10' % (sPc, sPc))
            k.vm('buffer_load_dword v%d, v%d, %s, s%d offen offset:%d' % (vPf, vZ, S(SCKV), sPc, st * 128))
    return [f0, f1]

vPq, vPw = 124, 125
def pfq_setup(k, R_):
    k.e('s_mul_i32 s%d, s%d, 80' % (sT, sP)); k.e('s_mul_i32 s%d, s%d, 10' % (sT2, sW)); k.e('s_add_u32 s%d, s%d, s%d' % (sT, sT, sT2))
    k.e('v_lshrrev_b32 v%d, 1, v0' % vPq); k.e('v_min_u32 v%d, %d, v%d' % (vPq, R_ - 1, vPq)); k.e('v_add_u32 v%d, s%d, v%d' % (vPq, sT, vPq))
    k.e('v_mul_u32_u24 v%d, 3456, v%d' % (vPw, vPq))
    k.e('v_and_b32 v%d, 1, v0' % vV); k.e('v_lshlrev_b32 v%d, 13, v%d' % (vPq, vPq)); k.e('v_lshl_add_u32 v%d, v%d, 7, v%d' % (vPq, vV, vPq))
    k.e('s_lshl_b32 s%d, s%d, 7' % (sT, sF)); k.e('v_add_u32 v%d, s%d, v%d' % (vPw, sT, vPw))
    k.e('s_lshl_b32 s%d, s%d, 8' % (sT, sH)); k.e('v_add_u32 v%d, s%d, v%d' % (vPq, sT, vPq))
def pfq_paced(k, row0):
    def f0():
        k.e('s_mov_b32 s%d, %d' % (sT, row0 * 8192))
        k.vm('buffer_load_dword v%d, v%d, %s, s%d offen' % (vPf, vPq, S(SWQ), sT))
    def f1():
        k.e('s_mov_b32 s%d, %d' % (sT, row0 * 3456))
        k.vm('buffer_load_dword v%d, v%d, %s, s%d offen' % (vPf, vPw, S(SW1), sT))
    return [f0, f1]

def prologue(k, opt):
    if opt.stamps or opt.dstamps: k.e('s_memrealtime s[90:91]')
    k.e('s_cmp_lt_u32 s2, 256'); k.e('s_cbranch_scc1 L_go')
    k.e('s_endpgm')
    k.label('L_go')
    if opt.diagsleep0: k.e('s_sleep %d' % opt.diagsleep0)
    k.e('s_load_dwordx16 s[64:79], s[0:1], 0')
    k.e('s_load_dwordx8 s[80:87], s[0:1], 64')
    k.e('v_lshrrev_b32 v%d, 6, v0' % vG)
    k.e('v_and_b32 v0, 63, v0')
    k.e('v_readfirstlane_b32 s%d, v%d' % (sW, vG))
    k.e('v_lshlrev_b32 v%d, 4, v0' % vL16)
    k.e('v_mov_b32 v%d, 0' % vZ)
    k.e('s_and_b32 s%d, s2, 7' % sT); k.e('s_lshr_b32 s%d, s2, 3' % sT2)
    k.e('s_lshl_b32 s%d, s%d, 2' % (sH, sT)); k.e('s_and_b32 s%d, s%d, 3' % (sT, sT2)); k.e('s_add_u32 s%d, s%d, s%d' % (sH, sH, sT))
    k.e('s_lshr_b32 s%d, s%d, 2' % (sP, sT2))
    k.e('s_lshr_b32 s%d, 0x%x, s%d' % (sNoF, opt.skipm, sH)); k.e('s_and_b32 s%d, s%d, 1' % (sNoF, sNoF))
    k.e('s_bfm_b32 s%d, s%d, 0' % (sF, sH)); k.e('s_and_b32 s%d, s%d, 0x%x' % (sF, sF, opt.skipm)); k.e('s_bcnt1_i32_b32 s%d, s%d' % (sF, sF))
    k.e('s_sub_u32 s%d, s%d, s%d' % (sF, sH, sF))
    if opt.rot == 1: k.e('s_lshl_b32 s%d, s%d, 1' % (sRot, sH))
    elif opt.rot == 2: k.e('s_lshr_b32 s%d, s%d, 2' % (sRot, sH)); k.e('s_lshl_b32 s%d, s%d, 1' % (sT, sH)); k.e('s_add_u32 s%d, s%d, s%d' % (sRot, sRot, sT))
    else: k.e('s_mov_b32 s%d, 0' % sRot)
    k.e('s_sub_u32 s%d, 15, s%d' % (sT, sP))
    k.e('s_cmp_lt_u32 s%d, 4' % sW); k.e('s_cselect_b32 s%d, s%d, s%d' % (sT, sT, sP))
    k.e('s_lshl_b32 s%d, s%d, 2' % (sRB, sT)); k.e('s_and_b32 s%d, s%d, 3' % (sT, sW)); k.e('s_add_u32 s%d, s%d, s%d' % (sRB, sRB, sT))
    k.e('s_lshl_b32 s%d, s%d, 12' % (sW4096, sW)); k.e('s_mul_i32 s%d, s%d, 1056' % (sW1056, sW))
    k.e('v_lshrrev_b32 v%d, 4, v0' % vG); k.e('v_and_b32 v%d, 15, v0' % vI)
    k.e('v_lshrrev_b32 v%d, 3, v0' % vU); k.e('v_and_b32 v%d, 7, v0' % vV)
    k.e('s_lshl_b32 s%d, s%d, 8' % (sT, sP)); k.e('s_lshl_b32 s%d, s%d, 5' % (sT2, sW)); k.e('s_add_u32 s%d, s%d, s%d' % (sT, sT, sT2))
    k.e('v_add_u32 v%d, s%d, v%d' % (vU, sT, vU)); k.e('v_lshlrev_b32 v%d, 10, v%d' % (vU, vU))
    k.e('v_xor_b32 v%d, v%d, v%d' % (vV, vV, vG)); k.e('v_lshlrev_b32 v%d, 4, v%d' % (vV, vV))
    k.e('v_add_u32 v%d, v%d, v%d' % (vCD[0], vU, vV))
    k.e('v_xor_b32 v%d, 64, v%d' % (vCD[1], vCD[0])); k.e('v_add_u32 v%d, 0x2000, v%d' % (vCD[1], vCD[1]))
    k.e('v_add_u32 v%d, 0x4000, v%d' % (vCD[2], vCD[0])); k.e('v_add_u32 v%d, 0x4000, v%d' % (vCD[3], vCD[1]))
    k.e('v_and_b32 v%d, 1, v%d' % (vU, vG)); k.e('v_lshlrev_b32 v%d, 2, v%d' % (vU, vU))
    k.e('v_lshrrev_b32 v%d, 1, v%d' % (vV, vG)); k.e('v_lshl_add_u32 v%d, v%d, 4, v%d' % (vU, vV, vU))
    k.e('s_lshr_b32 s%d, s%d, 2' % (sT, sW)); k.e('s_lshl_b32 s%d, s%d, 3' % (sT, sT)); k.e('s_and_b32 s%d, s%d, 3' % (sT2, sW)); k.e('s_add_u32 s%d, s%d, s%d' % (sT, sT, sT2))
    k.e('v_add_u32 v%d, s%d, v%d' % (vU, sT, vU)); k.e('v_lshlrev_b32 v%d, 13, v%d' % (vU, vU))
    k.e('v_lshl_add_u32 v%d, v%d, 4, v%d' % (vU, vI, vU))
    k.e('s_lshl_b32 s%d, s%d, 8' % (sT, sH)); k.e('v_add_u32 v%d, s%d, v%d' % (vWD, sT, vU))
    k.e('s_waitcnt lgkmcnt(0)')
    if opt.stouch:
        for i, p_ in enumerate((70, 72, 64, 86, 68, 78)[:opt.stouch]): k.e('s_load_dword s%d, s[%d:%d], 0' % (88 + i, p_, p_ + 1))
    sizes = [(SX, 64, 2621440), (SCKV, 66, 2097152), (SWQ, 68, 5242880), (SWUK, 70, 4194304), (SWUV, 72, 4194304), (SWO, 74, 5242880),
             (SW1, 78, 2211840), (SW2, 80, 2211840), (SOUT, 82, 2621440), (SDBG, 84, 256), (SWS, 86, 0x10000000)]
    order = [1, 3, 4, 0, 10, 2, 6, 9, 5, 7, 8]
    def mk(i):
        d, p, n = sizes[i]
        k.e('s_mov_b32 s%d, s%d' % (d, p)); k.e('s_and_b32 s%d, s%d, 0xffff' % (d + 1, p + 1))
        k.e('s_mov_b32 s%d, 0x%x' % (d + 2, n)); k.e('s_mov_b32 s%d, 0x20000' % (d + 3))
    for i in order[:4]: mk(i)
    return lambda: [mk(i) for i in order[4:]]

def kv_dma_items(k, s):
    b = s & 1
    it = []
    def setoff():
        k.e('s_add_u32 s%d, s%d, %d' % (sA, sRot, s)); k.e('s_and_b32 s%d, s%d, 7' % (sA, sA))
        k.e('s_lshl_b32 s%d, s%d, 19' % (sB, sA)); k.e('s_lshl_b32 s%d, s%d, 7' % (sA, sA)); k.e('s_add_u32 s%d, s%d, 0x40000' % (sC, sB))
    first = [True]
    def mkc(jj):
        def f():
            if first[0]: setoff(); first[0] = False
            dma(k, vCD[jj], SCKV, 's%d' % sA, sW4096, KV_C[b] + jj * 1024)
        return f
    def mkw(mat, ks):
        def f():
            dma(k, vWD, [SWUK, SWUV][mat], 's%d' % [sB, sC][ks], sW1056, KV_W[b] + (mat * 2 + ks) * 8448)
        return f
    it += [mkc(0), mkw(0, 0), mkc(1), mkw(1, 0), mkc(2), mkw(0, 1), mkc(3), mkw(1, 1)]
    return it

def kv_read_items(k, t, tok):
    s, ks, rb = t >> 1, t & 1, t & 1
    lb = s & 1
    it = []
    for mat in range(2):
        for db in range(2):
            for hf in range(2):
                def f(mat=mat, db=db, hf=hf):
                    r = WF[rb] + (mat * 2 + db) * 4 + hf * 2
                    tok[('w', t, mat, db)] = k.ds('ds_read_b64_tr_b16 %s, v%d offset:%d' % (R(r, 2), vWR[lb], (mat * 2 + ks) * 8448 + hf * 256 + db * 32))
                it.append(f)
    for kb in range(8):
        def f(kb=kb):
            tok[('c', t, kb)] = k.ds('ds_read_b128 %s, v%d offset:%d' % (R(CF[rb] + kb * 4), vCR[lb][ks], kb * 2048))
        it.append(f)
    return it

def rowsum64(k, v, t):
    for r in (8, 4, 2, 1):
        k.e('s_nop 1')
        k.e('v_add_f32_dpp v%d, v%d, v%d row_ror:%d row_mask:0xf bank_mask:0xf' % (v, v, v, r))
    k.e('v_mov_b32 v%d, v%d' % (t, v)); k.e('s_nop 1')
    k.e('v_permlane16_swap_b32 v%d, v%d' % (v, t)); k.e('v_add_f32 v%d, v%d, v%d' % (v, v, t))
    k.e('v_mov_b32 v%d, v%d' % (t, v)); k.e('s_nop 1')
    k.e('v_permlane32_swap_b32 v%d, v%d' % (v, t)); k.e('v_add_f32 v%d, v%d, v%d' % (v, v, t))

def rbf(k, v):
    k.e('v_cvt_pk_bf16_f32 v%d, v%d, v%d' % (v, v, v)); k.e('v_lshlrev_b32 v%d, 16, v%d' % (v, v))

def phase_ln_kv(k, opt, rest_srds):
    import attn
    tok = {}
    if not opt.lnfirst:
        for f in kv_dma_items(k, 0): f()
        t_st0 = k.last_vm()
    X = XR_LN; F = 24
    k.e('s_lshl_b32 s%d, s2, 3' % sT); k.e('s_add_u32 s%d, s%d, s%d' % (sT, sT, sW)); k.e('s_mul_i32 s%d, s%d, 1280' % (sT, sT))
    k.e('v_lshlrev_b32 v%d, 2, v0' % vU)
    for j in range(5):
        k.vm('buffer_load_dword v%d, v%d, %s, s%d offen offset:%d' % (X[j], vU, S(SX), sT, j * 256))
    t_ln = k.last_vm()
    if opt.lnfirst:
        for f in kv_dma_items(k, 0): f()
        t_st0 = k.last_vm()
    for f in kv_dma_items(k, 1): f()
    t_st1 = k.last_vm()
    rest_srds()
    if opt.prio == 'all': setprio_young(k, 1)
    stamp(k, opt, 0)
    if opt.pfi:
        lab = k.newlab('pfi')
        k.e('s_cmp_lg_u32 s%d, 6' % sW); k.e('s_cbranch_scc1 %s' % lab)
        k.e('s_getpc_b64 s[98:99]')
        k.label('L_pc')
        k.e('s_lshr_b32 s%d, s2, 3' % sT); k.e('s_mul_i32 s%d, s%d, %d' % (sT, sT, opt.pfi * 64))
        k.e('v_mul_u32_u24 v%d, %d, v0' % (vPfA, opt.pfi)); k.e('v_add_u32 v%d, s%d, v%d' % (vPfA, sT, vPfA)); k.e('v_and_b32 v%d, 0xfffffffc, v%d' % (vPfA, vPfA))
        k.e('v_min_u32 v%d, L_exit-L_pc, v%d' % (vPfA, vPfA))
        k.e('global_load_dword v%d, v%d, s[98:99]' % (vPf, vPfA))
        k.label(lab)
    lab = k.newlab('zf')
    k.e('s_cmp_lg_u32 s%d, 7' % sW); k.e('s_cbranch_scc1 %s' % lab)
    k.e('s_lshl_b32 s%d, s2, 9' % sT)
    k.e('buffer_store_dword v%d, v%d, %s, s%d offen sc1' % (vZ, vU, S(SWS), sT))
    k.e('buffer_store_dword v%d, v%d, %s, s%d offen offset:256 sc1' % (vZ, vU, S(SWS), sT))
    k.label(lab)
    k.e('v_lshrrev_b32 v%d, 1, v%d' % (vV, vI)); k.e('v_xor_b32 v%d, v%d, v%d' % (vV, vV, vG)); k.e('v_lshlrev_b32 v%d, 4, v%d' % (vV, vV))
    k.e('v_lshl_add_u32 v%d, v%d, 7, v%d' % (vV, vI, vV))
    k.e('s_lshr_b32 s%d, s%d, 2' % (sT, sW)); k.e('s_lshl_b32 s%d, s%d, 14' % (sT, sT))
    k.e('v_add_u32 v%d, s%d, v%d' % (vCR[0][0], sT, vV)); k.e('v_xor_b32 v%d, 64, v%d' % (vCR[0][1], vCR[0][0]))
    k.e('v_add_u32 v%d, %d, v%d' % (vCR[1][0], KV_C[1], vCR[0][0])); k.e('v_add_u32 v%d, %d, v%d' % (vCR[1][1], KV_C[1], vCR[0][1]))
    k.e('v_lshrrev_b32 v%d, 2, v%d' % (vV, vI)); k.e('v_and_b32 v22, 1, v%d' % vG); k.e('v_lshl_add_u32 v%d, v22, 2, v%d' % (vV, vV))
    k.e('v_lshrrev_b32 v22, 1, v%d' % vG); k.e('v_lshlrev_b32 v22, 9, v22')
    k.e('v_and_b32 v23, 3, v%d' % vI); k.e('v_lshl_add_u32 v22, v23, 3, v22')
    k.e('v_mul_u32_u24 v23, 1056, v%d' % vV); k.e('v_add_u32 v23, v23, v22')
    k.e('v_add_u32 v%d, %d, v23' % (vWQR[0], QC)); k.e('v_add_u32 v%d, %d, v23' % (vWQR[1], QA))
    k.e('s_and_b32 s%d, s%d, 3' % (sT, sW)); k.e('s_lshl_b32 s%d, s%d, 6' % (sT, sT))
    k.e('v_add_u32 v23, s%d, v23' % sT)
    k.e('v_add_u32 v%d, %d, v23' % (vWR[0], KV_W[0])); k.e('v_add_u32 v%d, %d, v23' % (vWR[1], KV_W[1]))
    k.e('v_lshrrev_b32 v23, 1, v%d' % vV); k.e('v_mul_u32_u24 v23, 1056, v23'); k.e('v_add_u32 v23, v23, v22')
    k.e('v_and_b32 v%d, 1, v%d' % (vV, vV)); k.e('v_lshl_add_u32 v23, v%d, 7, v23' % vV)
    k.e('v_add_u32 v%d, %d, v23' % (vW1R[0], QC + 16896)); k.e('v_add_u32 v%d, %d, v23' % (vW1R[1], QA + 16896))
    k.e('v_bfe_u32 v22, v0, 3, 1'); k.e('v_bfe_u32 v23, v0, 4, 1'); k.e('v_lshl_add_u32 v22, v23, 2, v22')
    k.e('v_lshrrev_b32 v23, 5, v0'); k.e('v_lshl_add_u32 v22, v23, 4, v22')
    k.e('s_and_b32 s%d, s%d, 1' % (sT, sW)); k.e('s_lshl_b32 s%d, s%d, 1' % (sT, sT))
    k.e('s_bfe_u32 s%d, s%d, 0x10001' % (sT2, sW)); k.e('s_lshl_b32 s%d, s%d, 3' % (sT2, sT2)); k.e('s_add_u32 s%d, s%d, s%d' % (sT, sT, sT2))
    k.e('s_lshr_b32 s%d, s%d, 2' % (sT2, sW)); k.e('s_lshl_b32 s%d, s%d, 5' % (sT2, sT2)); k.e('s_add_u32 s%d, s%d, s%d' % (sT, sT, sT2))
    k.e('v_add_u32 v22, s%d, v22' % sT); k.e('v_mul_u32_u24 v22, 3456, v22')
    k.e('v_and_b32 v23, 7, v0'); k.e('v_lshl_add_u32 v22, v23, 4, v22')
    k.e('s_lshl_b32 s%d, s%d, 7' % (sT, sF)); k.e('v_add_u32 v%d, s%d, v22' % (vW1D, sT))
    k.e('s_mul_i32 s%d, s%d, %d' % (sXN, sRB, XN_BS)); k.e('s_add_u32 s%d, s%d, 0x%x' % (sXN, sXN, WS_XN))
    k.e('s_mul_i32 s%d, s%d, 0x%x' % (sKst, sH, 2 * KVS)); k.e('s_add_u32 s%d, s%d, 0x%x' % (sKst, sKst, WS_KV))
    k.e('s_lshl_b32 s%d, s%d, 16' % (sT, sP)); k.e('s_add_u32 s%d, s%d, s%d' % (sKst, sKst, sT))
    k.e('s_lshr_b32 s%d, s%d, 2' % (sT, sW)); k.e('s_lshl_b32 s%d, s%d, 15' % (sT, sT)); k.e('s_add_u32 s%d, s%d, s%d' % (sKst, sKst, sT))
    k.e('s_and_b32 s%d, s%d, 3' % (sT, sW)); k.e('s_lshl_b32 s%d, s%d, 11' % (sT2, sT)); k.e('s_add_u32 s%d, s%d, s%d' % (sVst, sKst, sT2))
    k.e('s_add_u32 s%d, s%d, 0x%x' % (sVst, sVst, KVS))
    k.e('s_lshl_b32 s%d, s%d, 10' % (sT, sT)); k.e('s_add_u32 s%d, s%d, s%d' % (sKst, sKst, sT))
    k.e('s_mul_i32 s%d, s%d, 0x%x' % (sHst, sRB, H_BS)); k.e('s_lshl_b32 s%d, s%d, 12' % (sT, sF)); k.e('s_add_u32 s%d, s%d, s%d' % (sHst, sHst, sT))
    k.e('s_add_u32 s%d, s%d, 0x%x' % (sHst, sHst, WS_H))
    k.e('s_mov_b32 s%d, 0x3e0293ee' % sSc); k.e('s_mov_b32 s%d, 0x3e0293ee' % (sSc + 1))
    pf_paced_setup(k)
    pfq_setup(k, opt.pfqr)
    attn.early_setup(k)
    def layer_norm():
        k.wait(vm=t_ln)
        for j in range(5):
            k.e('v_lshlrev_b32 v%d, 16, v%d' % (F + 2 * j, X[j])); k.e('v_and_b32 v%d, 0xffff0000, v%d' % (F + 2 * j + 1, X[j]))
        k.e('v_add_f32 v34, v%d, v%d' % (F, F + 1))
        for j in range(2, 10): k.e('v_add_f32 v34, v34, v%d' % (F + j))
        rowsum64(k, 34, 35)
        k.e('v_mul_f32 v34, 0x3acccccd, v34')
        k.e('v_sub_f32 v36, v%d, v34' % F); k.e('v_mul_f32 v37, v36, v36')
        for j in range(1, 10):
            k.e('v_sub_f32 v36, v%d, v34' % (F + j)); k.e('v_fmac_f32 v37, v36, v36')
        rowsum64(k, 37, 35)
        k.e('v_mul_f32 v37, 0x3acccccd, v37')
        rbf(k, 34); rbf(k, 37)
        k.e('v_add_f32 v37, 0x3727c5ac, v37'); rbf(k, 37)
        k.e('v_sqrt_f32 v37, v37'); k.e('s_nop 0'); rbf(k, 37)
        k.e('v_rcp_f32 v37, v37')
        for j in range(10): k.e('v_sub_f32 v%d, v%d, v34' % (F + j, F + j))
        for j in range(5): k.e('v_cvt_pk_bf16_f32 v%d, v%d, v%d' % (X[j], F + 2 * j, F + 2 * j + 1))
        for j in range(5):
            k.e('v_lshlrev_b32 v%d, 16, v%d' % (F + 2 * j, X[j])); k.e('v_and_b32 v%d, 0xffff0000, v%d' % (F + 2 * j + 1, X[j]))
        for j in range(10): k.e('v_mul_f32 v%d, v%d, v37' % (F + j, F + j))
        for j in range(5): k.e('v_cvt_pk_bf16_f32 v%d, v%d, v%d' % (X[j], F + 2 * j, F + 2 * j + 1))
        k.e('s_mul_i32 s%d, s%d, %d' % (sT, sW, LN_STRIDE)); k.e('s_add_u32 s%d, s%d, %d' % (sT, sT, LN_BUF))
        k.e('v_lshl_add_u32 v38, v0, 2, s%d' % sT)
        for j in range(5): k.ds('ds_write_b32 v%d, v%d offset:%d' % (38, X[j], j * 256))
    def xn_store():
        lab = k.newlab('xs')
        k.e('s_cmp_ge_u32 s%d, 5' % sW); k.e('s_cbranch_scc1 %s' % lab)
        k.e('v_and_b32 v%d, 7, v0' % 32); k.e('v_lshrrev_b32 v%d, 3, v0' % 33)
        k.e('v_mul_u32_u24 v34, %d, v%d' % (LN_STRIDE, 32)); k.e('v_lshl_add_u32 v34, v%d, 4, v34' % 33)
        k.e('s_lshl_b32 s%d, s%d, 8' % (sT, sW)); k.e('s_add_u32 s%d, s%d, %d' % (sT, sT, LN_BUF)); k.e('v_add_u32 v34, s%d, v34' % sT)
        k.e('ds_read_b128 v[40:43], v34'); k.e('ds_read_b128 v[44:47], v34 offset:128')
        k.e('v_lshrrev_b32 v35, 2, v%d' % 33); k.e('v_lshlrev_b32 v35, 11, v35'); k.e('v_and_b32 v36, 3, v%d' % 33)
        k.e('v_lshl_add_u32 v35, v36, 8, v35'); k.e('v_lshl_add_u32 v35, v%d, 4, v35' % 32)
        k.e('s_lshr_b32 s%d, s2, 2' % sT); k.e('s_mul_i32 s%d, s%d, %d' % (sT, sT, XN_BS))
        k.e('s_bfe_u32 s%d, s2, 0x10001' % sT2); k.e('s_lshl_b32 s%d, s%d, 10' % (sT2, sT2)); k.e('s_add_u32 s%d, s%d, s%d' % (sT, sT, sT2))
        k.e('s_and_b32 s%d, s2, 1' % sT2); k.e('s_lshl_b32 s%d, s%d, 7' % (sT2, sT2)); k.e('s_add_u32 s%d, s%d, s%d' % (sT, sT, sT2))
        k.e('s_lshl_b32 s%d, s%d, 13' % (sT2, sW)); k.e('s_add_u32 s%d, s%d, s%d' % (sT, sT, sT2)); k.e('s_add_u32 s%d, s%d, 0x%x' % (sT, sT, WS_XN))
        k.e('s_add_u32 s%d, s%d, 4096' % (sT2, sT))
        k.e('s_waitcnt lgkmcnt(0)')
        k.e('buffer_store_dwordx4 v[40:43], v35, %s, s%d offen sc1' % (S(SWS), sT))
        k.e('buffer_store_dwordx4 v[44:47], v35, %s, s%d offen sc1' % (S(SWS), sT2))
        k.e('s_nop 0')
        k.label(lab)
    if opt.stouch: k.e('s_waitcnt lgkmcnt(0)')
    if opt.lnfirst == 2: layer_norm()
    k.wait(vm=t_st0)
    k.e('s_barrier')
    stamp(k, opt, 1)
    for f in kv_read_items(k, 0, tok): f()
    for st in range(opt.pf0, 2 + opt.pfd):
        if 'nokv' not in opt.abl:
            for f in pf_paced(k, st): f()
    st_tok = {0: t_st0, 1: t_st1}
    def mf_step(t):
        b = t & 1; out = []
        for kb in range(8):
            for db in range(2):
                D = ACCK + (kb * 2 + db) * 4
                out.append((mfma(D, WF[b] + db * 4, CF[b] + kb * 4, '0' if t == 0 else D), [('w', t, 0, db), ('c', t, kb)]))
            for db in range(2):
                D = ACCV + (kb * 2 + db) * 4
                out.append((mfma(D, CF[b] + kb * 4, WF[b] + 8 + db * 4, '0' if t == 0 else D), [('w', t, 1, db), ('c', t, kb)]))
        return out
    qtok = {}
    late = {}
    for s in range(8):
        fill = {}
        spread(fill, kv_read_items(k, 2 * s + 1, tok), 0, opt.kvr)
        for sl, its in late.items(): fill.setdefault(sl, []).extend(its)
        late = {}
        emit_interleaved(k, mf_step(2 * s), fill, tok)
        if 1 <= s < 7 and opt.kvw >= 32: st_tok[s + 1] = k.last_vm()
        if s == 0 and opt.lnfirst != 2: layer_norm()
        if s == 6:
            lab = k.newlab('g1')
            if opt.g1a: k.wait(vm=st_tok['g1'])
            k.e('s_cmp_ge_u32 s%d, 2' % sW); k.e('s_cbranch_scc1 %s' % lab)
            if opt.g1a:
                k.e('v_readfirstlane_b32 s%d, v%d' % (sT, vT0)); k.e('s_cmp_ge_u32 s%d, 0x80' % sT); k.e('s_cbranch_scc1 %s' % lab)
            k.e('s_lshl_b32 s%d, s%d, 7' % (sT2, sW))
            poll(k, SDBG, 's%d' % sT2, '0x80', vT0)
            k.label(lab)
        if s < 7:
            k.wait(vm=st_tok[s + 1], ds=k.last_ds())
            if 'kvb' not in opt.abl or s in (1, 6): k.e('s_barrier')
            if opt.kvst: stamp(k, opt, 4 + s)
            if s == 0: xn_store()
        fill = {}
        if s < 7:
            spread(fill, kv_read_items(k, 2 * s + 2, tok), 0, opt.kvr)
        if s < 6 and 'kvd' not in opt.abl:
            both = {}
            spread(both, kv_dma_items(k, s + 2), 1, opt.kvw)
            for sl, its in both.items():
                if sl < 32: fill.setdefault(sl, []).extend(its)
                else: late[sl - 32] = its
            if opt.kvw < 32:
                fill.setdefault(opt.kvw, []).append(lambda s=s: st_tok.__setitem__(s + 2, k.last_vm()))
                if s == 5 and opt.g1a:
                    fill[opt.kvw].append(lambda: (k.e('s_lshl_b32 s%d, s%d, 7' % (sT, sW)),
                        st_tok.__setitem__('g1', k.vm('buffer_load_dword v%d, v%d, %s, s%d offen sc1' % (vT0, vZ, S(SDBG), sT)))))
                if s + 2 + opt.pfd < 8 and 'nokv' not in opt.abl:
                    its = pf_paced(k, s + 2 + opt.pfd)
                    fill.setdefault(29, []).append(its[0]); fill.setdefault(30, []).append(its[1])
                qs = [int(c) for c in str(opt.pfqs)]
                if s in qs and 'noq' not in opt.abl:
                    its = pfq_paced(k, min(qs.index(s) * opt.pfqr, 10 - opt.pfqr))
                    fill.setdefault(30, []).append(its[0]); fill.setdefault(31, []).append(its[1])
        if s == 1:
            def g1sig():
                k.e('s_and_b32 s%d, s2, 1' % sT); k.e('s_lshl_b32 s%d, s%d, 7' % (sT, sT))
                signal_w0(k, SDBG, sT, vT0)
            fill.setdefault(31, []).append(g1sig)
        if s == 6:
            spread(fill, q_dma_items(k, 0, True, qtok), 1, 20)
        if s == 7:
            spread(fill, q_xn_items(k, 0, qtok) + q_xn_items(k, 1, qtok), 0, 20)
        emit_interleaved(k, mf_step(2 * s + 1), fill, tok)
    return qtok

XN = 16
QW = [112, 116, 120, 124, 96, 100, 104, 108]
KPK, VPK = 64, 128
ACCQ, ACCH = 160, 224
QF, HPK = 16, 64
def xslot(s): return XN + ((s + 2) % 3) * 16

def q_dma_items(k, s, ffn, tok):
    slot = QSLOT[s % 3]
    def f0():
        k.e('s_mov_b32 s%d, 0x%x' % (sB, s * 64 * 8192))
        dma(k, vWD, SWQ, 's%d' % sB, sW1056, slot)
    def f1():
        k.e('s_mov_b32 s%d, 0x%x' % (sC, (s * 64 + 32) * 8192))
        tok[('dq', s)] = dma(k, vWD, SWQ, 's%d' % sC, sW1056, slot + 8448)
    def f2():
        k.e('s_mov_b32 s%d, 0x%x' % (sA, s * 64 * 3456))
        tok[('dq', s)] = dma(k, vW1D, SW1, 's%d' % sA, sW1056, slot + 16896)
    return [f0, f1, f2] if ffn else [f0, f1]

def q_xn_items(k, s, tok):
    it = []
    for j in range(4):
        def f(j=j):
            if j == 0: k.e('s_add_u32 s%d, s%d, %d' % (sT2, sXN, s * 4096))
            tok[('x', 2 * s + (j >> 1), j & 1)] = k.vm('buffer_load_dwordx4 %s, v%d, %s, s%d offen offset:%d sc1' % (R(xslot(s) + j * 4), vL16, S(SWS), sT2, j * 1024))
        it.append(f)
    return it

def kv_pack_items(k):
    it = {}
    def mk(d, a_): return lambda: k.e('v_cvt_pk_bf16_f32 v%d, v%d, v%d' % (d, a_, a_ + 1))
    for kb in range(8):
        for db in range(2):
            a = ACCK + (kb * 2 + db) * 4
            for e in range(2): it[a + 2 * e] = mk(KPK + kb * 4 + db * 2 + e, a + 2 * e)
    for j in range(4):
        for db in range(2):
            for hh in range(2):
                a = ACCV + ((2 * j + hh) * 2 + db) * 4
                for e in range(2): it[a + 2 * e] = mk(VPK + (j * 2 + db) * 4 + hh * 2 + e, a + 2 * e)
    return it

def kv_store_items(k, tok):
    it = []
    for i in range(8):
        def fk(i=i):
            k.e('s_add_u32 s%d, s%d, %d' % (sT, sKst, i * 4096))
            tok['kvst'] = k.vm('buffer_store_dwordx4 %s, v%d, %s, s%d offen sc1' % (R(KPK + i * 4), vL16, S(SWS), sT))
        def fv(i=i):
            k.e('s_add_u32 s%d, s%d, %d' % (sT, sVst, (i >> 1) * 8192))
            tok['kvst'] = k.vm('buffer_store_dwordx4 %s, v%d, %s, s%d offen offset:%d sc1' % (R(VPK + i * 4), vL16, S(SWS), sT, (i & 1) * 1024))
        it += [fk, fv]
    return it

def phase_q(k, opt, tok, ffn, hooks):
    nf = 12 if ffn else 8
    AH = opt.qah
    frags = [(t, c) for t in range(18) for c in range(nf)]
    corder = (list(range(8, nf)) + list(range(8))) if opt.jit else None
    frags += [(t, c) for c in corder for t in (18, 19)] if opt.jit else [(t, c) for t in (18, 19) for c in range(nf)]
    def epi(c):
        it = []
        for qb in range(2):
            if c < 8:
                a = ACCQ + (c * 2 + qb) * 4; d = QF + (qb * 4 + (c >> 1)) * 4 + (c & 1) * 2
                it.append(lambda a=a: [k.e('v_pk_mul_f32 %s, %s, s[%d:%d]' % (R(a + 2 * e, 2), R(a + 2 * e, 2), sSc, sSc + 1)) for e in range(2)])
                it.append(lambda a=a, d=d: [k.e('v_cvt_pk_bf16_f32 v%d, v%d, v%d' % (d + e, a + 2 * e, a + 2 * e + 1)) for e in range(2)])
                it.append(lambda a=a: [k.e('v_mov_b64 %s, 0' % R(a + 2 * e, 2)) for e in range(2)])
            else:
                a = ACCH + ((c - 8) * 2 + qb) * 4; i_ = ((c - 8) >> 1) * 2 + qb; d = HPK + i_ * 4 + (c & 1) * 2
                it.append(lambda a=a, d=d: [k.e('v_cvt_pk_bf16_f32 v%d, v%d, v%d' % (d + e, a + 2 * e, a + 2 * e + 1)) for e in range(2)])
                it.append(lambda d=d: [k.e('v_pk_max_i16 v%d, v%d, 0' % (d + e, d + e)) for e in range(2)])
                if c & 1: it.append(lambda i_=i_: tok.__setitem__('hst', k.vm('buffer_store_dwordx4 %s, v%d, %s, s%d offen offset:%d sc1' % (R(HPK + i_ * 4), vL16, S(SWS), sHst, i_ * 1024))))
        return it
    def read(n, half=None):
        t, c = frags[n]; s, ks = t >> 1, t & 1
        slot = QSLOT[s % 3]; bi = 1 if slot == QA else 0; rel = 0 if slot != QB else QB - QC
        r = QW[n % 8]
        if c < 8: a, off = vWQR[bi], rel + ks * 8448 + c * 32
        else: a, off = vW1R[bi], rel + ks * 4224 + (c - 8) * 32
        if 'qr' in opt.abl and (n & 8) and n > 16:
            tok[('f', n)] = -1
            return
        if half != 1: k.ds('ds_read_b64_tr_b16 %s, v%d offset:%d' % (R(r, 2), a, off))
        if half != 0: tok[('f', n)] = k.ds('ds_read_b64_tr_b16 %s, v%d offset:%d' % (R(r + 2, 2), a, off + 256))
    k.wait(vm=tok[('dq', 0)])
    k.e('s_barrier')
    if opt.qst: stamp(k, opt, 14)
    for f in q_dma_items(k, 1, ffn, tok): f()
    for n in range(4): read(n)
    pk = kv_pack_items(k)
    for r_ in range(ACCK, ACCQ + 8, 2): pk.pop(r_)()
    for n in range(4, AH): read(n)
    stores = kv_store_items(k, tok)
    per = 2 * nf
    for s in range(10):
        extra = {}
        ex = []
        if s + 2 < 10:
            if 'qx' in opt.abl:
                for t_ in (2 * s + 4, 2 * s + 5): tok[('x', t_, 1)] = tok[('x', 0, 1)]
            else: ex += q_xn_items(k, s + 2, tok)
        sched = [int(c) for c in str(opt.stsched)] + [0] * 10
        assert sum(sched) in (0, 16) and all(x == 0 for x in sched[opt.h2sig:])
        ex += stores[sum(sched[:s]): sum(sched[:s + 1])]
        spread(extra, ex, 1 if s else 4, per - AH - 3)
        tailwork = []
        if s == 8: spread(extra, hooks('fill9', s)[4:], 0, per - AH - 2)
        if s == 9:
            spread(extra, hooks('fill9', s)[:4], 0, 3)
            if opt.jit:
                for j, c_ in enumerate(corder):
                    its = epi(c_); first_ = 2 * j + 1 + opt.jit
                    if first_ + 1 < per: spread(extra, its, first_, first_ + 1)
                    else: tailwork += its
            else:
                for c_ in list(range(8, nf)) + list(range(8)): tailwork += epi(c_)
        for i in range(per):
            n = s * per + i
            t, c = frags[n]
            k.wait(ds=tok[('f', n)])
            k.wait(vm=tok[('x', t, 1)])
            for qb in range(2):
                D = (ACCQ + (c * 2 + qb) * 4) if c < 8 else (ACCH + ((c - 8) * 2 + qb) * 4)
                k.e(mfma(D, QW[n % 8], xslot(s) + (t & 1) * 8 + qb * 4, '0' if t == 0 else D))
                if qb == 0:
                    if i == per - AH and s < 9:
                        hooks('preB', s)
                        k.wait(vm=tok[('dq', s + 1)])
                        if 'qb' not in opt.abl or s == 8: k.e('s_barrier')
                        hooks('postB', s)
                        if opt.qst: stamp(k, opt, 4 + s if s < 8 else 13)
                    if n + AH < len(frags): read(n + AH, 0 if opt.split else None)
                elif opt.split and n + AH < len(frags): read(n + AH, 1)
            if s == 0:
                for r_ in sorted(pk)[:4]: pk.pop(r_)()
            for f in extra.get(i, []): f()
            if s + 2 < 10 and i >= per - AH:
                items = q_dma_items(k, s + 2, ffn, tok)
                j = i - (per - AH)
                if 'qd' in opt.abl: tok[('dq', s + 2)] = tok[('dq', 1)]
                elif j < len(items): items[j]()
            hooks('slot', s, i)
    if opt.qst: stamp(k, opt, 15)
    hooks('end', 9)
    k.e('s_nop 7')
    for f in tailwork: f()

def build(opt):
    k = KB()
    rest = prologue(k, opt)
    import attn
    attn.OPT[0] = opt
    SLP[0] = opt.slp
    attn.set_ru(opt.ru)
    CTOUCH[0] = (opt.rot == 0) and 'noc' not in opt.abl
    WPOL[0] = opt.wpol.replace('+', ' ')
    opt.kvpol = opt.kvpol.replace('+', ' ')
    if opt.only == 'p3':
        rest(); stamp(k, opt, 0)
        attn.phase_attn_p3(k, opt)
        return finish(k, opt)
    qtok = phase_ln_kv(k, opt, rest)
    stamp(k, opt, 2)
    if opt.diagsleep1: k.e('s_sleep %d' % opt.diagsleep1)
    import attn
    hk = {}
    def hooks(kind, s, i=None):
        if kind == 'fill9': return attn.att_init_items(k)
        if kind == 'postB' and opt.prio == 'q%d' % s: setprio_young(k, 1)
        if kind == 'slot' and s == opt.h2sig + 1 and i == 0:
            k.e('s_lshl_b32 s%d, s%d, 7' % (sT, sH))
            signal_w0(k, SWS, sT, vT0)
        if opt.early:
            if kind == 'preB' and s == 8:
                lab = k.newlab('h2')
                k.e('s_cmp_lg_u32 s%d, 4' % sW); k.e('s_cbranch_scc1 %s' % lab)
                k.e('s_lshl_b32 s%d, s%d, 7' % (sT2, sH))
                poll(k, SWS, 's%d' % sT2, '8', vT0)
                k.label(lab)
            if kind == 'postB' and s == 8:
                attn.ld_setup(k)
            if kind == 'slot' and s == 9 and i in (0, 2, 4, 6, 8, 10):
                lab = k.newlab('kvp')
                k.e('s_cmp_lt_u32 s%d, 4' % sW); k.e('s_cbranch_scc1 %s' % lab)
                for f in attn.ld_group(k, (i >> 1) & 1, i == 2): f()
                k.label(lab)
        elif kind == 'slot' and s == 9 and i == opt.h2poll:
            k.e('s_lshl_b32 s%d, s%d, 7' % (sT2, sH))
            hk['h2'] = k.vm('buffer_load_dword v%d, v%d, %s, s%d offen sc1' % (vT3, vZ, S(SWS), sT2))
        elif kind == 'end':
            lab = k.newlab('h2'); lab2 = k.newlab('h2ok')
            k.e('s_cmp_lt_u32 s%d, 4' % sW); k.e('s_cbranch_scc1 %s' % lab)
            k.e('s_waitcnt vmcnt(0)')
            k.e('v_readfirstlane_b32 s%d, v%d' % (sT, vT3))
            k.e('s_cmp_ge_u32 s%d, 8' % sT); k.e('s_cbranch_scc1 %s' % lab2)
            poll(k, SWS, 's%d' % sT2, '8', vT0)
            k.label(lab2)
            attn.ld_stage(k, True); attn.ld_stage(k)
            k.label(lab)
        elif kind == 'end2':
            lab = k.newlab('h2')
            k.e('s_cmp_lt_u32 s%d, 4' % sW); k.e('s_cbranch_scc1 %s' % lab)
            attn.ld_stage(k)
            k.label(lab)
    st = (k.vm_issued, k.vm_done, k.ds_issued, k.ds_done)
    k.e('s_cmp_lg_u32 s%d, 0' % sNoF); k.e('s_cbranch_scc1 L_q_noffn')
    phase_q(k, opt, dict(qtok), True, hooks)
    k.e('s_branch L_q_done')
    k.label('L_q_noffn')
    k.vm_issued, k.vm_done, k.ds_issued, k.ds_done = st
    phase_q(k, opt, dict(qtok), False, hooks)
    k.label('L_q_done')
    hooks('end2', 9)
    if opt.diagsleep: k.e('s_sleep %d' % opt.diagsleep)
    if opt.prio2 is not None: k.e('s_setprio %d' % opt.prio2)
    stamp(k, opt, 3)
    if opt.dumpq:
        k.e('s_lshl_b32 s%d, s2, 3' % sT); k.e('s_add_u32 s%d, s%d, s%d' % (sT, sT, sW)); k.e('s_lshl_b32 s%d, s%d, 13' % (sT, sT))
        k.e('s_add_u32 s%d, s%d, 0x%x' % (sT, sT, WS_DBGQ)); k.e('s_add_u32 s%d, s%d, 4096' % (sT2, sT))
        for i in range(8):
            k.e('buffer_store_dwordx4 %s, v%d, %s, s%d offen offset:%d' % (R(QF + i * 4), vL16, S(SWS), sT if i < 4 else sT2, (i & 3) * 1024))
    if opt.stop != 'q':
        attn.phase_attn_p3(k, opt)
    return finish(k, opt)

MACROS = r""".macro MF d, a, b, c
v_mfma_f32_16x16x32_bf16 v[\d:\d+3], v[\a:\a+3], v[\b:\b+3], v[\c:\c+3]
.endm
.macro TR d, a, o
ds_read_b64_tr_b16 v[\d:\d+1], v\a offset:\o
.endm
.macro RD d, a, o
ds_read_b128 v[\d:\d+3], v\a offset:\o
.endm
"""
def compact(lines):
    import re
    out = []
    for l in lines:
        t = l.strip()
        m = re.fullmatch(r'v_mfma_f32_16x16x32_bf16 v\[(\d+):\d+\], v\[(\d+):\d+\], v\[(\d+):\d+\], v\[(\d+):\d+\]', t)
        if m: t = 'MF %s,%s,%s,%s' % m.groups()
        m = re.fullmatch(r'ds_read_b64_tr_b16 v\[(\d+):\d+\], v(\d+) offset:(\d+)', t)
        if m: t = 'TR %s,%s,%s' % m.groups()
        m = re.fullmatch(r'ds_read_b128 v\[(\d+):\d+\], v(\d+) offset:(\d+)', t)
        if m: t = 'RD %s,%s,%s' % m.groups()
        out.append(t if t.endswith(':') else ' ' + t)
    return '\n'.join(out) + '\n'

def finish(k, opt):
    k.e('s_waitcnt vmcnt(0)')
    k.label('L_exit')
    k.e('s_endpgm')
    errs = check_hazards(k.lines)
    for e in errs: print('HAZARD', e, file=sys.stderr)
    hdr = open(os.path.join(os.path.dirname(os.path.abspath(__file__)), 'header.txt')).read()
    t = hdr + '; @launch grid=(256,1,1) block=(512,1,1) lds=%d\n' % LDS_BYTES
    t += '.amdgcn_target "amdgcn-amd-amdhsa--gfx950"\n.text\n.globl %s_kernel\n.p2align 8\n.type %s_kernel,@function\n%s_kernel:\n' % (NAME, NAME, NAME)
    t = t.replace('.text\n', MACROS + '.text\n')
    t += compact(k.lines)
    t += '''.section .rodata,"a"
.p2align 6
.amdhsa_kernel %s_kernel
  .amdhsa_next_free_vgpr 256
  .amdhsa_next_free_sgpr 102
  .amdhsa_accum_offset 256
  .amdhsa_group_segment_fixed_size 0
  .amdhsa_kernarg_size 96
  .amdhsa_user_sgpr_count 2
  .amdhsa_user_sgpr_kernarg_segment_ptr 1
  .amdhsa_system_sgpr_workgroup_id_x 1
.end_amdhsa_kernel
''' % NAME
    return t, len(errs)

if __name__ == '__main__':
    opt = Opt()
    out = sys.argv[1]
    for a in sys.argv[2:]:
        kk, _, v = a.partition('=')
        setattr(opt, kk, v if kk == 'nft' else (int(v) if v.lstrip('-').isdigit() else (int(v, 16) if v.startswith('0x') else v)) if v else True)
    t, ne = build(opt)
    open(out, 'w').write(t)
    print('wrote', out, len(t.splitlines()), 'lines', ne, 'hazards')
```
